```python
import torch

def _softmax(x, axis=-1):
    return torch.softmax(x, dim=axis)

def _gelu(x):
    return torch.nn.functional.gelu(x, approximate='tanh')

def _silu(x):
    return torch.nn.functional.silu(x)

def _sigmoid(x):
    return torch.sigmoid(x)

def _layernorm(x, axis=-1, eps=1e-05):
    m = x.mean(dim=axis, keepdim=True)
    v = x.var(dim=axis, keepdim=True, unbiased=False)
    return (x - m) / torch.sqrt(v + eps)

def _scatter_add(tgt, idx, src, axis=0):
    return tgt.clone().index_add_(axis, idx, src)

def _segment_sum(src, seg, n):
    out = torch.zeros((n,) + src.shape[1:], dtype=src.dtype)
    return out.index_add_(0, seg, src)

def _pad(x, pw):
    flat = tuple((v for pair in reversed(pw) for v in pair))
    return torch.nn.functional.pad(x, flat)
kernel_name = 'concat_heads__softmax_full_mha__memory_aug_recurrent_mem_tr__prompt'

def setup_inputs():

    _w = lambda a: (lambda t: t.to(torch.bfloat16) if t.is_floating_point() else t)(torch.as_tensor(a))

    def _A_setup():
        B, S, D = (1, 2048, 576)
        return {'x': _w((lambda *s: torch.randn(*s, dtype=torch.bfloat16) * 0.2)(B, S, D)), 'wqkv': _w((lambda *s: torch.randn(*s, dtype=torch.bfloat16) * 0.2)(D, 3 * D)), 'wo': _w((lambda *s: torch.randn(*s, dtype=torch.bfloat16) * 0.05)(D, D))}
    _A_in = _A_setup()

    def _B_setup():
        B, S, Dm = (1, 2048, 576)
        H, Dh = (32, 128)
        M, seg = (8, 32)
        seg = min(seg, S)
        S = S // seg * seg
        return {'x': _w((lambda *s: torch.randn(*s, dtype=torch.bfloat16) * 0.05)(B, S, Dm)), 'mem0': _w((lambda *s: torch.randn(*s, dtype=torch.bfloat16) * 0.8)(B, M, Dm)), 'Wq': _w((lambda *s: torch.randn(*s, dtype=torch.bfloat16) * 1.6)(Dm, H, Dh) * Dm ** (-0.5)), 'Wk': _w((lambda *s: torch.randn(*s, dtype=torch.bfloat16) * 1.6)(Dm, H, Dh) * Dm ** (-0.5)), 'Wv': _w((lambda *s: torch.randn(*s, dtype=torch.bfloat16) * 0.8)(Dm, H, Dh) * Dm ** (-0.5)), 'Wo': _w((lambda *s: torch.randn(*s, dtype=torch.bfloat16) * 0.8)(H, Dh, Dm) * (H * Dh) ** (-0.5)), 'seg_len': seg}
    _B_in = _B_setup()
    return {'A_x': _A_in['x'], 'A_wqkv': _A_in['wqkv'], 'A_wo': _A_in['wo'], 'B_x': _B_in['x'], 'B_mem0': _B_in['mem0'], 'B_Wq': _B_in['Wq'], 'B_Wk': _B_in['Wk'], 'B_Wv': _B_in['Wv'], 'B_Wo': _B_in['Wo'], 'B_seg_len': _B_in['seg_len']}

def reference(A_x, A_wqkv, A_wo, B_x, B_mem0, B_Wq, B_Wk, B_Wv, B_Wo, B_seg_len):

    def _A_ref(x, wqkv, wo):
        B, S, D = x.shape
        H = 32
        Dh = D // H
        qkv = (lambda x, *d: x.permute(*d))((x @ wqkv).reshape(B, S, 3, H, Dh), 2, 0, 3, 1, 4)
        q, k, v = (qkv[0], qkv[1], qkv[2])
        scale = Dh ** (-0.5)
        scores = torch.einsum('bhqd,bhkd->bhqk', q, k) * scale
        p = _softmax(scores, axis=-1)
        o = torch.einsum('bhqk,bhkd->bhqd', p, v)
        return (lambda x, *d: x.permute(*d))(o, 0, 2, 1, 3).reshape(B, S, D) @ wo

    def _B_ref(x, mem0, Wq, Wk, Wv, Wo, seg_len):
        B, S, Dm = x.shape
        H, Dh = (Wq.shape[1], Wq.shape[2])
        M = mem0.shape[1]
        scale = Dh ** (-0.5)
        n_seg = S // seg_len
        L = M + seg_len
        idx = torch.arange(L)
        mask = (idx[:, None] < M) | (idx[:, None] >= idx[None, :])
        mem = mem0
        outs = []
        for s in range(n_seg):
            xs = x[:, s * seg_len:(s + 1) * seg_len, :].clone()
            h = torch.concatenate([mem, xs], axis=1)
            q = torch.einsum('btd,dhe->bhte', h, Wq)
            k = torch.einsum('btd,dhe->bhte', h, Wk)
            v = torch.einsum('btd,dhe->bhte', h, Wv)
            scores = torch.einsum('bhqe,bhke->bhqk', q, k) * scale
            scores = torch.where(mask[None, None], scores, -1000000000.0)
            p = _softmax(scores, axis=-1)
            o = torch.einsum('bhqk,bhke->bhqe', p, v)
            o = torch.einsum('bhte,hed->btd', o, Wo)
            mem = o[:, :M, :].clone()
            outs.append(o[:, M:, :])
        return torch.concatenate(outs, axis=1)
    a = _A_ref(A_x, A_wqkv, A_wo)
    b = _B_ref(B_x, B_mem0, B_Wq, B_Wk, B_Wv, B_Wo, B_seg_len)
    return torch.concatenate([a, b], axis=-1)
```

```python
import re, os
CONSERVATIVE = bool(os.environ.get('CONS'))

REG_RE = re.compile(r'^(-|abs\()?([vas])(\d+)\)?$')
RNG_RE = re.compile(r'^(-|abs\()?([vas])\[(\d+):(\d+)\]\)?$')

def regs_of(tok):
    tok = tok.strip()
    m = REG_RE.match(tok)
    if m:
        return {(m.group(2), int(m.group(3)))}
    m = RNG_RE.match(tok)
    if m:
        return {(m.group(2), r) for r in range(int(m.group(3)), int(m.group(4)) + 1)}
    if tok == 'vcc':
        return {('s', 106), ('s', 107)}
    if tok == 'vcc_lo':
        return {('s', 106)}
    if tok == 'vcc_hi':
        return {('s', 107)}
    if tok == 'exec':
        return {('s', 126), ('s', 127)}
    if tok == 'm0':
        return {('s', 124)}
    return set()

def split_ops(s):
    out, depth, cur = [], 0, ''
    for ch in s:
        if ch in '[(':
            depth += 1
        elif ch in '])':
            depth -= 1
        if ch == ',' and depth == 0:
            out.append(cur.strip()); cur = ''
        else:
            cur += ch
    if cur.strip():
        out.append(cur.strip())
    return out

TRANS = ('v_exp_f32', 'v_log_f32', 'v_rcp_f32', 'v_rsq_f32', 'v_sqrt_f32', 'v_sin_f32', 'v_cos_f32', 'v_rcp_iflag_f32')

class Ins:
    __slots__ = ('text', 'mn', 'kind', 'rd', 'wr', 'mf_a', 'mf_b', 'mf_c', 'passes', 'is_dpp', 'st_data', 'wide',
                 'manual', 'lanesel', 'sgpr_rd', 'cond', 'soft')
    def __init__(self, text, manual=False):
        self.text = text
        self.manual = manual
        self.cond = False
        self.soft = False
        self.rd, self.wr = set(), set()
        self.mf_a = self.mf_b = self.mf_c = set()
        self.passes = 0
        self.is_dpp = False
        self.st_data = set()
        self.wide = False
        self.lanesel = set()
        t = text.split(';')[0].strip()
        if not t or t.endswith(':') or t.startswith('.'):
            self.mn = ''
            self.kind = 'label' if t.endswith(':') else 'none'
            return
        parts = t.split(None, 1)
        mn = parts[0]
        self.mn = mn
        rest = parts[1] if len(parts) > 1 else ''
        ops = split_ops(rest)
        mods = ''
        if ops:
            lp = ops[-1].split(None, 1)
            ops[-1] = lp[0]
            mods = lp[1] if len(lp) > 1 else ''
        R = [regs_of(o) for o in ops]
        U = lambda xs: set().union(*xs) if xs else set()
        if mn.startswith('v_mfma') or mn.startswith('v_smfmac'):
            self.kind = 'mfma'
            self.passes = 8 if '32x32' in mn else 4
            self.wr = R[0]
            self.mf_a, self.mf_b = R[1], R[2]
            if mn.startswith('v_smfmac'):
                self.mf_c = R[0]
                self.mf_b = R[2] | R[3]
            else:
                self.mf_c = R[3]
            self.rd = self.mf_a | self.mf_b | self.mf_c
        elif mn.startswith('v_'):
            self.kind = 'valu'
            self.is_dpp = mn.endswith('_dpp') or 'row_' in mods or 'quad_perm' in mods
            if mn.startswith('v_cmp'):
                self.wr = R[0]; self.rd = U(R[1:])
            elif 'permlane' in mn and 'swap' in mn:
                self.wr = R[0] | R[1]; self.rd = R[0] | R[1]
            elif mn.startswith(('v_add_co', 'v_sub_co', 'v_addc_co', 'v_subb_co', 'v_mad_u64')):
                self.wr = R[0] | R[1]; self.rd = U(R[2:])
            elif mn.startswith(('v_fmac', 'v_dot2c', 'v_pk_fmac')):
                self.wr = R[0]; self.rd = U(R)
            elif mn.startswith(('v_readlane', 'v_writelane')):
                self.wr = R[0]; self.rd = U(R[1:]); self.lanesel = R[2]
                if mn.startswith('v_writelane'):
                    self.rd |= R[0]
            elif mn == 'v_nop':
                pass
            else:
                self.wr = R[0]; self.rd = U(R[1:])
                if self.is_dpp:
                    self.rd |= R[0]
                if mn.startswith('v_cndmask') and len(ops) == 3:
                    self.rd |= regs_of('vcc')
        elif mn.startswith('ds_'):
            self.kind = 'ds'
            if mn.startswith(('ds_read', 'ds_bpermute', 'ds_permute', 'ds_swizzle')):
                self.wr = R[0]; self.rd = U(R[1:])
            else:
                self.rd = U(R)
        elif mn.startswith(('global_', 'buffer_')):
            self.kind = 'vm'
            if mn in ('buffer_wbl2', 'buffer_inv'):
                self.kind = 'vmx'
            elif 'load_lds' in mn or re.search(r'\blds\b', mods):
                self.rd = U(R) | regs_of('m0')
                self.kind = 'dma'
            elif '_load_' in mn:
                self.wr = R[0]; self.rd = U(R[1:])
                if 'd16' in mn:
                    self.rd |= R[0]
            elif '_store_' in mn:
                self.rd = U(R)
                self.st_data = R[1] if mn.startswith('global_') else R[0]
                self.wide = mn.endswith(('x3', 'x4'))
            elif 'atomic' in mn:
                if 'sc0' in mods.split():
                    if mn.startswith('global_'):
                        self.wr = R[0]; self.rd = U(R[1:])
                    else:
                        self.wr = R[0]; self.rd = U(R)
                else:
                    self.rd = U(R)
            else:
                raise ValueError('unknown vmem ' + text)
        elif mn.startswith('s_'):
            self.kind = 'salu'
            if mn.startswith(('s_load', 's_memtime', 's_memrealtime', 's_buffer_load')):
                self.kind = 'smem'
                self.wr = R[0]; self.rd = U(R[1:])
            elif mn.startswith(('s_cmp', 's_bitcmp')):
                self.rd = U(R)
            elif mn.startswith(('s_cbranch', 's_branch')):
                self.kind = 'branch'
            elif mn in ('s_waitcnt', 's_nop', 's_barrier', 's_sleep', 's_endpgm', 's_setprio'):
                self.kind = mn
            elif 'saveexec' in mn:
                self.wr = R[0] | regs_of('exec'); self.rd = U(R[1:]) | regs_of('exec')
            else:
                self.wr = R[0] if R else set(); self.rd = U(R[1:])
        else:
            raise ValueError('unknown instr ' + text)

    def states(self):
        if self.kind in ('label', 'none') or self.cond:
            return 0
        if self.mn == 's_nop':
            return int(self.text.split(';')[0].split()[1], 0) + 1
        return 1


def need_states(p, c):
    n = 0
    pv = {r for r in p.wr if r[0] in 'va'}
    ps = {r for r in p.wr if r[0] == 's'}
    if p.kind == 'valu':
        if c.kind == 'mfma' and pv & c.rd:
            n = max(n, 2)
        if c.kind == 'valu':
            if p.mn.startswith(TRANS) and not c.mn.startswith(TRANS) and pv & c.rd:
                n = max(n, 1)
            if p.mn.startswith(TRANS) and c.mn.startswith(TRANS) and pv & c.rd:
                n = max(n, 1)
            if ('permlane' in c.mn or c.is_dpp) and pv & c.rd:
                n = max(n, 2)
            if c.mn.startswith(('v_readlane', 'v_readfirstlane')) and pv & c.rd:
                n = max(n, 1)
            if ps & c.lanesel:
                n = max(n, 4)
            if ps & c.rd:
                n = max(n, 2)
        if p.mn.startswith(TRANS) and c.kind in ('vm', 'ds') and pv & c.rd:
            n = max(n, 1)
        if c.kind in ('vm', 'dma') and ps & c.rd:
            n = max(n, 5)
        if c.kind in ('salu', 'branch', 'smem') and ps & c.rd:
            n = max(n, 1)
    if p.kind == 'mfma':
        big = p.passes == 8
        if c.kind == 'mfma':
            if pv & (c.mf_a | c.mf_b):
                n = max(n, 12 if big else 8)
            if pv & c.mf_c:
                if c.mf_c == p.wr and c.mn == p.mn:
                    pass
                else:
                    n = max(n, 10 if big else 6)
            elif pv & c.wr:
                n = max(n, 10 if big else 6)
        elif c.kind in ('valu', 'vm', 'ds', 'dma'):
            if pv & (c.rd | c.wr):
                n = max(n, 12 if big else 8)
            if c.kind == 'valu' and p.mf_c & c.wr:
                n = max(n, 7 if big else 3)
            if c.kind == 'valu' and p.mn.startswith('v_smfmac') and (p.mf_a | p.mf_b) & c.wr:
                n = max(n, 4)
    if p.kind == 'vm' and p.wide and p.st_data & c.wr and c.kind in ('valu', 'mfma'):
        n = max(n, 2)
    if p.kind == 'vm' and p.wide and p.st_data & c.wr and c.kind in ('vm', 'ds'):
        n = max(n, 1)
    if p.kind == 'salu' and c.kind == 'dma' and ('s', 124) in p.wr:
        n = max(n, 1)
    return n


class Asm:
    def __init__(self):
        self.items = []
    def __call__(self, text, manual=False):
        for line in text.split('\n'):
            if line.strip():
                self.items.append(Ins(line.strip(), manual))
    def label(self, name):
        soft = name.endswith(' ;soft')
        if soft:
            name = name[:-6]
        i = Ins(name + ':')
        i.soft = soft
        self.items.append(i)
    def extend(self, other):
        self.items.extend(other.items)

    def finalize(self):
        out = []
        hist = []
        lg = []
        vm = []
        opened = set()
        softs = {x.text[:-1] for x in self.items if x.kind == 'label' and x.soft}
        seen = set()
        def emit(i):
            if opened:
                i.cond = True
            out.append(i)
            if i.kind not in ('none',):
                hist.append(i)
                if len(hist) > 24:
                    hist.pop(0)
        def gap(k, nxt):
            t = 0
            pipe = hist[k].passes if hist[k].kind == 'mfma' and not hist[k].cond else 0
            t = 1
            for q in hist[k + 1:]:
                if q.cond:
                    continue
                if q.kind == 'mfma' and not CONSERVATIVE:
                    t = max(t, pipe)
                    pipe = t + q.passes
                t += q.states()
            if nxt.kind == 'mfma' and not CONSERVATIVE:
                t = max(t, pipe)
            return t - 1
        def fence_states(n):
            dist = 0
            need = 0
            for p in reversed(hist):
                if p.kind == 'mfma':
                    need = max(need, (12 if p.passes == 8 else 8) - dist)
                elif p.kind == 'valu':
                    ps = any(r[0] == 's' for r in p.wr)
                    need = max(need, (5 if ps else 2) - dist)
                elif p.kind == 'vm' and p.wide:
                    need = max(need, 2 - dist)
                elif p.kind == 'salu' and ('s', 124) in p.wr:
                    need = max(need, 1 - dist)
                dist += p.states()
            while need > 0:
                k = min(need, 16)
                emit(Ins('s_nop %d' % (k - 1)))
                need -= k
        for i in self.items:
            if i.kind == 'none':
                out.append(i); continue
            if i.kind == 'label':
                seen.add(i.text[:-1])
                if i.soft:
                    opened.discard(i.text[:-1])
                    out.append(i)
                    continue
                pend = [x for x in lg if x[0]] + [x for x in vm if x[0]]
                if pend:
                    raise ValueError('tracked loads pending at label %s: %s' % (i.text, pend[:3]))
                out.append(i)
                lg, vm = [], []
                continue
            if i.kind == 'branch' and ';exit' in i.text:
                emit(i)
                continue
            if i.kind == 'branch' and ';nofence' in i.text:
                tgt = i.text.split(';')[0].split()[1]
                if tgt in seen:
                    pend = [x for x in lg if x[0]] + [x for x in vm if x[0]]
                    if pend:
                        raise ValueError('tracked loads pending at back branch %s' % i.text)
                    emit(i)
                else:
                    assert tgt in softs, tgt
                    emit(i)
                    opened.add(tgt)
                continue
            if i.kind == 'branch':
                pend = [x for x in lg if x[0]] + [x for x in vm if x[0]]
                if pend:
                    raise ValueError('tracked loads pending at branch %s: %s' % (i.text, pend[:3]))
                fence_states(0)
                emit(i)
                continue
            if i.kind == 's_waitcnt':
                m = re.search(r'lgkmcnt\((\d+)\)', i.text)
                if m:
                    n = int(m.group(1))
                    if n == 0 or not any(x[1] for x in lg):
                        lg = lg[len(lg) - n:] if n else []
                m = re.search(r'vmcnt\((\d+)\)', i.text)
                if m:
                    n = int(m.group(1))
                    vm = vm[len(vm) - n:] if n and n < len(vm) else ([] if n == 0 else vm)
                emit(i)
                continue
            touched = i.rd | i.wr
            w = []
            idx = max((k for k, x in enumerate(lg) if x[0] & touched), default=None)
            if idx is not None:
                n = len(lg) - 1 - idx
                if any(x[1] for x in lg):
                    n = 0
                n = min(n, 15)
                w.append('lgkmcnt(%d)' % n)
                lg = lg[len(lg) - n:] if n else []
            idx = max((k for k, x in enumerate(vm) if x[0] & touched), default=None)
            if idx is not None:
                n = min(len(vm) - 1 - idx, 63)
                w.append('vmcnt(%d)' % n)
                vm = vm[len(vm) - n:] if n else []
            if w:
                emit(Ins('s_waitcnt ' + ' '.join(w)))
            added = 0
            while True:
                if added:
                    hist.append(Ins('s_nop %d' % (added - 1)))
                ok = all(need_states(hist[k], i) <= gap(k, i) for k in range(len(hist)))
                if added:
                    hist.pop()
                if ok:
                    break
                added += 1
                assert added <= 16
            if added:
                was = set(opened)
                nop = Ins('s_nop %d' % (added - 1))
                emit(nop)
            emit(i)
            if opened:
                if i.kind in ('ds', 'smem', 'vm') and i.wr and not i.manual:
                    raise ValueError('tracked load inside conditional region: ' + i.text)
                continue
            if i.kind == 'ds':
                lg.append((set() if i.manual else set(i.wr), False))
            elif i.kind == 'smem':
                lg.append((set() if i.manual else set(i.wr), True))
            elif i.kind in ('vm', 'dma'):
                vm.append((set() if i.manual else set(i.wr), False))
        return '\n'.join(('' if x.kind == 'label' else '    ') + x.text for x in out) + '\n'
```

```python
from asmlib import Asm
from layout import *
import struct, math

NSTEPS = 64
C_SCALE = (128 ** -0.5) * math.log2(math.e)
def fbits(x): return struct.unpack('<I', struct.pack('<f', x))[0]

ORDER = [0, 1, 8, 3, 2, 4, 5, 6, 7]
LDS_CHUNKS = [('o', (3, 1)), ('o', (2, 0)), ('o', (0, 0)), ('k', 8), ('q', 0), ('q', 2), ('k', 1), ('k', 3), ('o', 8)]
def slot_base(s): return L_SLOT8 if s == 8 else L_SLOT0 + s * 16384
REG_CHUNKS = [(m, j) for m in 'qkv' for j in (0, 2, 1, 3, 4, 6, 5, 7, 8) if (m, j) not in LDS_CHUNKS] + \
             [('o', (0, 1)), ('o', (1, 1)), ('o', (1, 0)), ('o', (3, 0)), ('o', (2, 1))]
assert len(REG_CHUNKS) == 27
_blk = {}
def _regblock(n):
    return ('a', 8 * n) if n < 32 else ('v', 72 + 8 * (n - 32))
n = 0
for ch in REG_CHUNKS:
    for tt in range(2):
        _blk[(ch, tt)] = _regblock(n); n += 1
_blk[(('o', 8), 1)] = _regblock(n); n += 1
assert n == 55
def rng(f, b, n): return '%s[%d:%d]' % (f, b, b + n - 1)
def blk_regs(ch, tt):
    f, b = _blk[(ch, tt)]
    return rng(f, b, 8)

vDummy, vL16, vL8, vIdx, vQKw, vOw, vPst, vMst, vW, vW2 = 0, 1, 2, 3, 4, 5, 6, 7, 8, 9
VX = 64
sH, sW = 3, 4
SRD_Q, SRD_K, SRD_V, SRD_O, SRD_WS = 8, 12, 16, 20, 24
sDBG, sMEM0 = 28, 30
sStep, sPart, sMw, sMp, sR1, sRole, sFast, sC = 32, 33, 34, 35, 36, 38, 39, 40
sT0, sT1, sT2, sT3 = 41, 42, 43, 44
sSeg = 45
sSingle = 46
sCnt = 47
sEx = 48
sEx2 = 50
sTm = 52
sW15, sW11, sTouch = 76, 77, 78
sKMa, sTa, sVMa, sVXa, sKXa, sP0, sP1, sP2, sRa, sGa, sGb = 60, 61, 62, 63, 64, 65, 66, 67, 68, 69, 70
sOnes, sBig, sRep = 72, 74, 75
POLL_MAX = 20000
import os
EXP = os.environ.get('EXP', '')
WS = f"s[{SRD_WS}:{SRD_WS+3}]"
SRD_PZ = 96
PZ = f"s[{SRD_PZ}:{SRD_PZ+3}]"
sRz, sMz = 71, 79

def srd(A, d, ptr, nbytes):
    A(f"""s_mov_b32 s{d}, s{ptr}
s_and_b32 s{d+1}, s{ptr+1}, 0xffff
s_mov_b32 s{d+2}, {nbytes}
s_mov_b32 s{d+3}, 0x20000""")

def gen_chain(A, dbg=0, tag='C'):
    L = lambda x: f'{tag}_{x}'
    NST = 12
    if dbg:
        A(f"s_memtime s[{sTm+6}:{sTm+7}]")
    A(f"""s_lshr_b32 s{sH}, s2, 3
s_load_dwordx4 s[60:63], s[0:1], 32
s_load_dwordx4 s[64:67], s[0:1], 48
s_load_dwordx2 s[68:69], s[0:1], 64
s_load_dwordx4 s[72:75], s[0:1], 88
v_lshrrev_b32 v10, 6, v0
v_and_b32 v0, 63, v0
v_readfirstlane_b32 s{sW}, v10
s_waitcnt lgkmcnt(0)""")
    srd(A, SRD_Q, 62, 576 * 4096 * 2)
    srd(A, SRD_K, 64, 576 * 4096 * 2)
    srd(A, SRD_V, 66, 576 * 4096 * 2)
    srd(A, SRD_O, 68, 576 * 4096 * 2)
    srd(A, SRD_WS, 74, WS_BYTES)
    A(f"""s_mov_b32 s{sDBG}, s72
s_mov_b32 s{sDBG+1}, s73
s_mov_b32 s{sMEM0}, s60
s_mov_b32 s{sMEM0+1}, s61
s_mov_b32 s{sC}, {fbits(C_SCALE):#x}
s_lshl_b32 s{sW15}, s{sW}, 15
s_lshl_b32 s{sW11}, s{sW}, 11
v_lshlrev_b32 v{vL16}, 4, v0
v_lshlrev_b32 v{vL8}, 3, v0""")
    A(f"""s_and_b32 s{sT0}, s{sW}, 1
s_lshl_b32 s{sT0}, s{sT0}, 3
v_lshrrev_b32 v11, 4, v0
v_lshlrev_b32 v10, 1, v11
v_or_b32 v10, s{sT0}, v10
v_and_b32 v12, 15, v0
v_xor_b32 v10, v10, v12
v_lshlrev_b32 v10, 4, v10
s_lshl_b32 s{sT1}, s{sW}, 4
v_add_u32 v11, s{sT1}, v11
v_lshlrev_b32 v12, 13, v11
s_lshl_b32 s{sT1}, s{sH}, 8
v_add3_u32 v58, v12, v10, s{sT1}
v_lshrrev_b32 v12, 6, v10""")
    for p in range(4):
        A(f"""v_xor_b32 v13, {p}, v12
v_lshl_add_u32 v{54+p}, v13, 20, v58""")
    A(f"""v_bfe_u32 v10, v0, 4, 1
v_lshlrev_b32 v10, 1, v10
v_or_b32 v10, s{sT0}, v10
v_and_b32 v12, 15, v0
v_xor_b32 v10, v10, v12
v_xor_b32 v13, 4, v10
s_lshl_b32 s{sT1}, s{sH}, 7
v_add_u32 v11, s{sT1}, v11
v_mul_u32_u24 v11, 1152, v11""")
    for src, dst, dst8 in ((10, 60, 62), (13, 61, 63)):
        A(f"""v_lshrrev_b32 v14, 2, v{src}
v_lshl_add_u32 v14, v14, 7, v11
v_and_b32 v15, 3, v{src}
v_lshl_add_u32 v{dst}, v15, 4, v14
v_and_b32 v14, 7, v{src}
v_lshl_add_u32 v14, v14, 4, v11
v_add_u32 v14, 1024, v14
v_add_u32 v15, {64*1152}, v14
v_cmp_gt_u32 vcc, 8, v{src}
v_cndmask_b32 v{dst8}, v14, v15, vcc""")
    seq = REG_CHUNKS + LDS_CHUNKS
    A(f"s_lshl_b32 s{sT2}, s{sW}, 12")
    def dma(ci):
        ch = seq[ci]; sb = slot_base(ci % 9)
        for ii in range(4):
            if ch[0] != 'o':
                s = {'q': SRD_Q, 'k': SRD_K, 'v': SRD_V}[ch[0]]
                if ch[1] == 8:
                    so = (64 * 8 + 4 * ii) * 8192; vo = 58
                else:
                    so = (64 * (ch[1] & 1) + 4 * ii) * 8192; vo = 54 + (ch[1] >> 1)
            elif ch[1] == 8:
                s = SRD_O; so = 4 * ii * 1152; vo = 62 + (ii & 1)
            else:
                r, jj = ch[1]
                s = SRD_O; so = (64 * jj + 4 * ii) * 1152 + (r & 1) * 64 + (r >> 1) * 512; vo = 60 + (ii & 1)
            A(f"""s_add_u32 m0, s{sT2}, {sb + ii * 1024}
s_mov_b32 s{sT0}, {so}
buffer_load_dwordx4 v{vo}, s[{s}:{s+3}], s{sT0} offen lds""")
    for ci in range(9):
        dma(ci)
    A(f"""v_and_b32 v10, 2, v0
v_cmp_eq_u32 vcc, 0, v10
v_mov_b32 v11, 0xeeee
v_mov_b32 v12, 0x4444
v_cndmask_b32 v{vIdx}, v11, v12, vcc""")
    A(f"""v_and_b32 v10, 15, v0
v_lshrrev_b32 v11, 4, v0
v_lshlrev_b32 v10, 5, v10
v_lshl_add_u32 v10, v11, 3, v10
s_lshl_b32 s{sT0}, s{sW}, 10
s_add_u32 s{sT0}, s{sT0}, {L_QK}
v_add_u32 v{vQKw}, s{sT0}, v10""")
    A(f"""v_and_b32 v10, 13, v0
v_bfe_u32 v11, v0, 4, 1
v_lshl_add_u32 v10, v11, 1, v10
v_lshlrev_b32 v10, 4, v10
v_lshrrev_b32 v11, 5, v0
v_lshl_add_u32 v10, v11, 8, v10
s_lshl_b32 s{sT0}, s{sW}, 9
s_add_u32 s{sT0}, s{sT0}, {L_O}
v_add_u32 v{vOw}, s{sT0}, v10""")
    A(f"""v_lshrrev_b32 v10, 3, v0
v_lshlrev_b32 v10, 12, v10
v_and_b32 v11, 7, v0
v_lshl_add_u32 v10, v11, 4, v10
s_lshl_b32 s{sT0}, s{sH}, 7
v_add_u32 v{vPst}, s{sT0}, v10
s_lshl_b32 s{sT0}, s{sW}, 2
s_add_u32 s{sSingle}, s{sT0}, {8 * 32768}""")
    A(f"""s_lshl_b32 s{sT0}, s{sH}, 1
s_add_u32 s{sT0}, s{sT0}, s{sW}
s_add_u32 s{sT1}, s{sH}, 64
s_cmp_lt_u32 s{sW}, 2
s_cselect_b32 s{sT0}, s{sT0}, s{sT1}
s_min_u32 s{sT0}, s{sT0}, 71
s_lshl_b32 s{sR1}, s{sT0}, 12
s_mov_b32 s{sRole}, 0
s_cmp_lt_u32 s{sH}, 8
s_cselect_b32 s{sT1}, 0, 1
s_cmp_eq_u32 s{sW}, 2
s_cselect_b32 s{sRole}, s{sT1}, s{sRole}
s_cmp_eq_u32 s{sW}, 3
s_cselect_b32 s{sRole}, 2, s{sRole}
s_and_b32 s{sT1}, s{sW}, 1
s_mul_i32 s{sTouch}, s{sT1}, {VX_OFF}
s_lshr_b32 s{sT1}, s{sW}, 1
s_lshl_b32 s{sT1}, s{sT1}, 12
s_add_u32 s{sTouch}, s{sTouch}, s{sT1}
s_mov_b32 s{SRD_PZ}, s{SRD_WS}
s_mov_b32 s{SRD_PZ+1}, s{SRD_WS+1}
s_cmp_eq_u32 s{sRole}, 0
s_cselect_b32 s{SRD_PZ+2}, {WS_BYTES}, 0
s_mov_b32 s{SRD_PZ+3}, 0x20000
s_mov_b32 s{sOnes}, 0x3f803f80
s_mov_b32 s{sOnes+1}, 0x3f803f80
s_mov_b32 s{sBig}, {fbits(2.0**60):#x}""")
    A(f"""s_lshr_b32 s{sT1}, s{sT0}, 3
s_lshl_b32 s{sT1}, s{sT1}, 10
s_and_b32 s{sT3}, s{sT0}, 1
s_lshl_b32 s{sT3}, s{sT3}, 9
s_add_u32 s{sT1}, s{sT1}, s{sT3}
s_bfe_u32 s{sT3}, s{sT0}, 0x20001
s_lshl_b32 s{sT3}, s{sT3}, 6
s_add_u32 s{sT1}, s{sT1}, s{sT3}
v_bfe_u32 v10, v0, 2, 1
v_lshlrev_b32 v10, 8, v10
v_bfe_u32 v11, v0, 1, 1
v_lshl_add_u32 v10, v11, 5, v10
v_bfe_u32 v11, v0, 4, 1
v_lshl_add_u32 v10, v11, 4, v10
v_and_b32 v11, 1, v0
v_lshl_add_u32 v10, v11, 3, v10
v_lshrrev_b32 v11, 5, v0
v_bfe_u32 v12, v0, 3, 1
v_lshl_add_u32 v11, v11, 1, v12
v_mul_u32_u24 v11, {MREP}, v11
v_add3_u32 v{vMst}, v10, v11, s{sT1}
s_add_u32 s{sT1}, s{sH}, s{sW}
s_and_b32 s{sT1}, s{sT1}, 3
s_mul_i32 s{sRep}, s{sT1}, {MREP}""")
    A(f"""s_add_u32 s{sT0}, s{sT2}, {L_SLOT0}
v_add_u32 v{vW}, s{sT0}, v{vL16}
v_add_u32 v{vW2}, 65536, v{vW}
s_mov_b32 s{sEx}, 0xcccccccc
s_mov_b32 s{sEx+1}, 0xcccccccc
s_mov_b32 s{sEx2}, 0x00ff00ff
s_mov_b32 s{sEx2+1}, 0""")
    A(f"""v_lshrrev_b32 v10, 5, v0
v_bfe_u32 v11, v0, 4, 1
v_bfe_u32 v12, v0, 3, 1
v_bfe_u32 v13, v0, 2, 1
v_and_b32 v14, 3, v0
v_lshlrev_b32 v14, 3, v14
v_lshl_add_u32 v15, v13, 12, v14
v_lshl_add_u32 v15, v10, 10, v15
v_lshl_add_u32 v15, v12, 9, v15
v_lshl_add_u32 v15, v11, 8, v15
v_lshl_add_u32 v16, v12, 1, v11
v_lshl_add_u32 v16, v13, 2, v16
s_lshl_b32 s{sT0}, s{sW}, 1
v_xor_b32 v17, s{sT0}, v16
v_lshl_add_u32 v64, v17, 5, v15
v_xor_b32 v65, 32, v64
v_lshl_add_u32 v15, v11, 12, v14
v_lshl_add_u32 v15, v10, 11, v15
v_lshl_add_u32 v15, v12, 10, v15
v_lshl_add_u32 v15, v13, 8, v15
v_lshl_add_u32 v16, v12, 1, v13
v_lshl_add_u32 v16, v11, 2, v16
v_xor_b32 v17, s{sT0}, v16
v_lshl_add_u32 v66, v17, 5, v15
v_xor_b32 v67, 32, v66
v_xor_b32 v17, s{sW}, v16
v_lshl_add_u32 v68, v17, 5, v15
v_xor_b32 v69, 128, v68""")
    for R in range(12):
        A(f"s_waitcnt vmcnt({24 if R <= 9 else (12 if R == 10 else 0)})")
        A("s_barrier")
        for k in range(3):
            ci = 3 * R + k; ch = seq[ci]; sb = slot_base(ci % 9)
            for tt in range(2):
                if ch[0] != 'o':
                    av = 64 + tt; st5, st2 = 2048, 8192
                elif ch[1] == 8:
                    av = 68 + (1 - tt); st5, st2 = 8192, 512
                else:
                    av = 66 + tt; st5, st2 = 8192, 512
                A(f"v_add_u32 v{70 + tt}, {sb}, v{av}")
                if (ch, tt) in _blk:
                    f, b = _blk[(ch, tt)]
                else:
                    f, b = 'v', 10 + 16 * k + 8 * tt
                for k5 in range(2):
                    for k2 in range(2):
                        A(f"ds_read_b64_tr_b16 {rng(f, b + 4*k5 + 2*k2, 2)}, v{70+tt} offset:{k5*st5 + k2*st2}")
        A("s_waitcnt lgkmcnt(0)")
        A("s_barrier")
        if R + 3 < 12:
            for k in range(3):
                dma(3 * (R + 3) + k)
        if R >= 9:
            for k in range(3):
                ci = 3 * R + k; ch = seq[ci]; sl = ci % 9
                for tt in range(2):
                    if (ch, tt) in _blk:
                        continue
                    b = 10 + 16 * k + 8 * tt
                    if sl == 8:
                        A(f"""s_add_u32 s{sT0}, s{sW11}, {L_SLOT8 + 8192}
v_add_u32 v70, s{sT0}, v{vL16}""")
                        off = 0
                    else:
                        A(f"v_add_u32 v70, {sl * 16384}, v{vW}")
                        off = tt * 2048
                    A(f"ds_write_b128 v70, v[{b}:{b+3}] offset:{off}")
                    A(f"ds_write_b128 v70, v[{b+4}:{b+7}] offset:{off + 1024}")
    A(f"""s_cmp_lg_u32 s{sRole}, 0
s_cbranch_scc1 {L('nopoison')}
v_mov_b32 v12, -1
v_mov_b32 v13, -1
v_mov_b32 v14, -1
v_mov_b32 v15, -1""")
    for slot in range(2):
        A(f"s_add_u32 s{sT0}, s{sR1}, {PART_OFF + slot * PART_SLOT}")
        for i in range(4):
            A(f"buffer_store_dwordx4 v[12:15], v{vL16}, {WS}, s{sT0} offen offset:{i*1024} sc1")
    for slot in range(3):
        A(f"s_mov_b32 s{sT0}, {MIMG_OFF + slot * MIMG_SLOT}")
        A(f"buffer_store_dwordx2 v[12:13], v{vMst}, {WS}, s{sT0} offen sc1")
    A.label(L('nopoison'))
    A(f"""v_bfe_u32 v10, v0, 2, 2
v_and_b32 v11, 1, v0
v_lshl_add_u32 v10, v10, 1, v11
v_mul_u32_u24 v10, 1152, v10
v_lshrrev_b32 v11, 4, v0
v_lshl_add_u32 v10, v11, 3, v10
v_bfe_u32 v11, v0, 1, 1
v_lshl_add_u32 v10, v11, 2, v10
s_lshl_b32 s{sT0}, s{sW}, 7
v_add_u32 v11, s{sT0}, v10
s_lshl_b32 s{sT0}, s{sW}, 10
v_add_u32 v12, s{sT0}, v{vL16}
s_mov_b32 s{sT0}, 0x05040100
s_mov_b32 s{sT1}, 0x07060302""")
    for n, (av, go, lv, lo) in enumerate(((11, 0, 12, 0), (11, 512, 12, 4096), (10, 1024, vL16, 8192))):
        for t in range(4):
            A(f"global_load_dword v{14+t}, v{av}, s[{sMEM0}:{sMEM0+1}] offset:{go + 32*t}")
        A(f"""v_perm_b32 v20, v15, v14, s{sT0}
v_perm_b32 v21, v17, v16, s{sT0}
v_perm_b32 v22, v15, v14, s{sT1}
v_perm_b32 v23, v17, v16, s{sT1}
ds_write_b128 v{lv}, v[20:23] offset:{L_M + lo}""")
    A(f"""v_and_b32 v10, 4, v0
v_cmp_eq_u32 vcc, 0, v10
v_mov_b32 v11, 0x3f800000
v_mov_b32 v12, 0x3f80
v_cndmask_b32 v11, v11, v12, vcc
v_and_b32 v10, 3, v0""")
    for d in range(4):
        A(f"""v_cmp_eq_u32 vcc, {d}, v10
v_cndmask_b32 v{20+d}, 0, v11, vcc""")
    A(f"ds_write_b128 v{vL16}, v[20:23] offset:{L_SEL}")
    A("s_waitcnt lgkmcnt(0) vmcnt(0)")
    A("s_barrier")
    A(f"""s_getreg_b32 s{sT0}, hwreg(HW_REG_XCC_ID)
s_and_b32 s{sT0}, s{sT0}, 15
s_lshl_b32 s{sT0}, 1, s{sT0}
v_mov_b32 v10, 0
v_mov_b32 v11, s{sT0}
v_mov_b32 v12, 1
s_cmp_lg_u32 s{sW}, 0
s_cbranch_scc1 {L('rdv_wait')}
s_mov_b64 exec, 1
global_atomic_or v10, v11, s[{sDBG}:{sDBG+1}] offset:4
s_waitcnt vmcnt(0)
global_atomic_add v10, v12, s[{sDBG}:{sDBG+1}]
s_mov_b64 exec, -1""")
    A.label(L('rdv_wait'))
    A(f"""s_lshl_b32 s{sSeg}, s{sH}, 13
s_add_u32 s{sT0}, s{sSeg}, s{sW11}
s_add_u32 m0, s{sW11}, {L_KX}
s_add_u32 s{sT2}, s{sT0}, {VX_OFF}
buffer_load_dwordx4 v{vL16}, {WS}, s{sT0} offen lds
buffer_load_dwordx4 v{vL16}, {WS}, s{sT0} offen offset:1024 lds""")
    A(f"""buffer_load_dwordx4 v[{VX}:{VX+3}], v{vL16}, {WS}, s{sT2} offen
buffer_load_dwordx4 v[{VX+4}:{VX+7}], v{vL16}, {WS}, s{sT2} offen offset:1024""", manual=True)
    A(f"s_mov_b32 s{sCnt}, 0")
    A.label(L('rdv_loop'))
    A(f"""global_load_dwordx2 v[12:13], v10, s[{sDBG}:{sDBG+1}] sc1
s_add_u32 s{sCnt}, s{sCnt}, 1
s_waitcnt vmcnt(0)
v_readfirstlane_b32 s{sT0}, v12
v_readfirstlane_b32 s{sT1}, v13
s_cmp_gt_u32 s{sCnt}, {POLL_MAX}
s_cbranch_scc1 {L('rdv_done')}
s_and_b32 s{sT0}, s{sT0}, 0xff
s_cmp_lt_u32 s{sT0}, 32
s_cbranch_scc1 {L('rdv_loop')}""")
    A.label(L('rdv_done'))
    A(f"""s_and_b32 s{sT1}, s{sT1}, 0xffff
s_bcnt1_i32_b32 s{sT1}, s{sT1}
s_cmp_eq_u32 s{sT1}, 1
s_cselect_b32 s{sFast}, 1, 0
s_mov_b32 s{sStep}, 0
s_mov_b32 s{sPart}, {PART_OFF}
s_mov_b32 s{sMp}, {MIMG_OFF}
s_mov_b32 s{sMw}, {MIMG_OFF + MIMG_SLOT}""")
    if dbg:
        A(f"s_memtime s[{sTm}:{sTm+1}]")
        A("s_waitcnt lgkmcnt(0)")
        A(f"s_mov_b32 s{sTm+5}, s{sTm}")
        A("s_memrealtime s[92:93]")
        A("s_waitcnt lgkmcnt(0)")
        for n in range(NST): A(f"s_mov_b32 s{80+n}, 0")
    A(f"s_cmp_eq_u32 s{sFast}, 0")
    A(f"s_cbranch_scc1 {L('S_pre')}")
    gen_loop(A, dbg, tag + '_F', '', L('end'))
    gen_loop(A, dbg, tag + '_S', ' sc1', L('end'))
    A.label(L('end'))
    if dbg:
        A("s_memrealtime s[94:95]")
        A(f"s_memtime s[{sTm+2}:{sTm+3}]")
        A("s_waitcnt lgkmcnt(0)")
        pass
        for n in range(64):
            A(f"v_smfmac_f32_16x16x64_bf16 v[{10+4*(n%4)}:{13+4*(n%4)}], v[30:33], a[{8*(n%32)}:{8*(n%32)+7}], v{vIdx}")
        A("s_nop 7")
        A(f"s_memtime s[{sTm+4}:{sTm+5}]")
        A("s_waitcnt lgkmcnt(0)")
        pass
        A(f"""s_memtime s[{sTm+2}:{sTm+3}]
s_waitcnt lgkmcnt(0)
s_sub_u32 s{sT0}, s{sTm+2}, s{sTm}
v_mov_b32 v10, s{sT0}
v_mov_b32 v11, s{sFast}
s_lshl_b32 s{sT1}, s{sH}, 8
s_lshl_b32 s{sT2}, s{sW}, 6
s_add_u32 s{sT1}, s{sT1}, s{sT2}
s_add_u32 s{sT1}, s{sT1}, {DBG_OFF + 0x200000}
v_mov_b32 v12, 0
s_sub_u32 s{sT0}, s{sTm}, s{sTm+6}
v_mov_b32 v13, s{sT0}
s_mov_b64 exec, 1
buffer_store_dwordx2 v[10:11], v12, {WS}, s{sT1} offen
buffer_store_dword v13, v12, {WS}, s{sT1} offen offset:8""")
        for n in range(NST):
            A(f"v_mov_b32 v13, s{80+n}")
            A(f"buffer_store_dword v13, v12, {WS}, s{sT1} offen offset:{16+4*n}")
    A("s_endpgm")


def gen_loop(A, dbg, tag, SC, endlab):
    L = lambda x: f'{tag}_{x}'
    def stamp(n):
        if dbg not in (2, 3): return
        A(f"""s_memtime s[{sTm+2}:{sTm+3}]
s_waitcnt lgkmcnt(0)
s_sub_u32 s{sTm+4}, s{sTm+2}, s{sTm+5}
s_add_u32 s{80+n}, s{80+n}, s{sTm+4}
s_mov_b32 s{sTm+5}, s{sTm+2}""")
    aQ, aK, aV = 10, 18, 26
    R0, R1, R2 = 34, 38, 58
    SB = 42
    def lds_blk(ch, tt, dst, manual=False):
        sl = LDS_CHUNKS.index(ch)
        if sl == 8:
            base, off = 62, 0
        elif sl < 4:
            base, off = vW, sl * 16384 + tt * 2048
        else:
            base, off = vW2, (sl - 4) * 16384 + tt * 2048
        A(f"ds_read_b128 v[{dst}:{dst+3}], v{base} offset:{off}", manual)
        A(f"ds_read_b128 v[{dst+4}:{dst+7}], v{base} offset:{off+1024}", manual)
    def zero(b, n):
        for r in range(b, b + n, 2):
            A(f"v_mov_b64 v[{r}:{r+1}], 0")
    def smf(acc, a, b):
        A(f"v_smfmac_f32_16x16x64_bf16 v[{acc}:{acc+3}], v[{a}:{a+3}], {b}, v{vIdx}")
    cur_p = [None]
    def xr(p):
        A(f"v_xor_b32 v62, {p * 2048}, v63")
        cur_p[0] = p
    def rdA(slot, buf, manual=False):
        if slot == 8:
            A(f"ds_read_b128 v[{buf}:{buf+3}], v{vL16} offset:{L_M + 8192}", manual)
            return
        p = slot >> 1
        if p == 0:
            base = 63
        else:
            if cur_p[0] != p:
                xr(p)
            base = 62
        A(f"ds_read_b128 v[{buf}:{buf+3}], v{base} offset:{L_M + (slot & 1) * 1024}", manual)
    def ps(a, dst, part):
        if part == 0: A(f"v_add_f32 v{a}, v{a}, v{a+2}")
        elif part == 1: A(f"v_add_f32 v{a+1}, v{a+1}, v{a+3}")
        else: A(f"v_cvt_pk_bf16_f32 v{dst}, v{a}, v{a+1}")
    def psum(a, dst):
        for part in range(3): ps(a, dst, part)
    def rdX(u, x):
        A(f"ds_read_b64_tr_b16 v[{x}:{x+1}], v{vL8} offset:{L_QK + u*1024}")
        A(f"ds_read_b64_tr_b16 v[{x+2}:{x+3}], v{vL8} offset:{L_QK + u*1024 + 512}")
    def pre_a():
        lds_blk(('q', 0), 0, SB, True); lds_blk(('q', 0), 1, SB + 8, True)
        zero(aQ, 12)
        A(f"""s_lshr_b32 s{sKMa}, s{sSeg}, 1
s_add_u32 s{sKMa}, s{sKMa}, {KM_OFF}
s_lshr_b32 s{sVMa}, s{sSeg}, 2
s_lshr_b32 s{sT1}, s{sW11}, 2
s_add_u32 s{sVMa}, s{sVMa}, s{sT1}
s_add_u32 s{sVMa}, s{sVMa}, {VM_OFF}
s_add_u32 s{sSeg}, s{sSeg}, {0 if 'a' in EXP else 32 * 8192}
s_min_u32 s{sT0}, s{sSeg}, {VX_OFF - 8192}
s_add_u32 s{sTa}, s{sT0}, s{sTouch}
s_add_u32 s{sKXa}, s{sT0}, s{sW11}
s_add_u32 s{sVXa}, s{sKXa}, {VX_OFF}
s_add_u32 s{sP0}, s{sW15}, s{sPart}
s_add_u32 s{sP1}, s{sP0}, {4 * 32768}
s_add_u32 s{sP2}, s{sSingle}, s{sPart}""")
    def pre_b():
        A(f"""s_lshr_b32 s{sT1}, s{sW11}, 1
v_add_u32 v62, s{sT1}, v{vL8}
s_add_u32 s{sKMa}, s{sKMa}, s{sT1}""")
        A(f"""ds_read_b64_tr_b16 v[30:31], v62 offset:{L_QK}
ds_read_b64_tr_b16 v[32:33], v62 offset:{L_QK + 512}""", manual=True)
        zero(22, 4)
        A(f"""v_mov_b64 v[26:27], -1
v_mov_b64 v[28:29], -1
v_add_u32 v63, s{sW11}, v{vL16}
s_mov_b32 s{sRz}, s{sRa}
s_mov_b32 s{sMz}, s{sMp}
s_add_u32 s{sRa}, s{sR1}, s{sPart}""")
    A.label(L('pre'))
    A(f"s_add_u32 m0, s{sW11}, {L_KX}")
    A(f"s_add_u32 s{sRa}, s{sR1}, {PART_OFF + PART_SLOT}")
    pre_a(); pre_b()
    rdA(0, R0, True); rdA(1, R1, True); rdA(8, R2, True)
    A("s_waitcnt vmcnt(0) lgkmcnt(0)")
    A(f"s_branch {L('top')}")
    A.label(L('gather'))
    def gpoll():
        A(f"""buffer_load_dwordx4 v[{R0}:{R0+3}], v{vL16}, {WS}, s{sGa} offen sc1
buffer_load_dwordx4 v[{R1}:{R1+3}], v{vL16}, {WS}, s{sGa} offen offset:1024 sc1
buffer_load_dwordx4 v[{R2}:{R2+3}], v{vL16}, {WS}, s{sGb} offen sc1""", manual=True)
    pre_b()
    A(f"""s_add_u32 s{sGb}, s{sMw}, s{sRep}
s_add_u32 s{sGa}, s{sGb}, s{sW11}
s_add_u32 s{sGb}, s{sGb}, 8192
s_mov_b32 s{sCnt}, 0
s_mov_b32 s{sMp}, s{sMw}
s_add_u32 s{sMw}, s{sMw}, {MIMG_SLOT}
s_cmp_eq_u32 s{sMw}, {MIMG_OFF + 3 * MIMG_SLOT}
s_cselect_b32 s{sMw}, {MIMG_OFF}, s{sMw}""")
    if 'x' in EXP: A("s_waitcnt vmcnt(0)")
    A("s_barrier")
    stamp(5)
    if 'c' in EXP:
        rdA(0, R0, True); rdA(1, R1, True); rdA(8, R2, True)
        A("s_waitcnt lgkmcnt(0) vmcnt(0)")
        A(f"s_branch {L('top')}")
    A("s_waitcnt lgkmcnt(0)")
    A.label(L('g_poll'))
    NU = 3
    for n in range(NU):
        gpoll()
        A(f"""s_waitcnt vmcnt(2)
v_max_u32 v{vDummy}, v{R0}, v{R0+2}
v_cmp_eq_u32 vcc, -1, v{vDummy}""")
        if dbg in (2, 3): A(f"s_add_u32 s91, s91, 1")
        A(f"s_cbranch_vccz {L('top')} ;exit")
    A(f"""s_add_u32 s{sCnt}, s{sCnt}, 1
s_cmp_lt_u32 s{sCnt}, {POLL_MAX}
s_cbranch_scc1 {L('g_poll')} ;nofence""")
    A.label(L('top'))
    stamp(6)
    if 'h' in EXP:
        A(f"""s_waitcnt vmcnt(0)
v_mov_b64 v[58:59], 0
v_mov_b64 v[60:61], 0
s_cmp_eq_u32 s{sStep}, {NSTEPS - 1}
s_cbranch_scc1 {L('last')} ;exit
s_barrier
buffer_store_dwordx4 v[58:61], v{vPst}, {WS}, s{sP0} offen{SC}
buffer_store_dwordx4 v[58:61], v{vPst}, {WS}, s{sP1} offen{SC}
buffer_store_dword v58, v{vPst}, {WS}, s{sP2} offen{SC}
s_branch {L('wend')}""")
    groups = [('q', 0), ('k', 0), ('q', 1), ('k', 1), ('q', 8), ('k', 8), ('q', 3), ('v', 8), ('k', 2), ('k', 3),
              ('q', 4), ('k', 4), ('q', 2), ('q', 5), ('q', 6), ('q', 7), ('k', 5), ('k', 6), ('k', 7)]
    abuf = {0: R0, 1: R1, 8: R2, 3: R0, 2: R1, 4: R2, 5: R0, 6: R2, 7: R1}
    nxt = {('q', 0): ('k', 1), ('k', 1): ('k', 8), ('k', 8): ('k', 3), ('k', 3): ('q', 2)}
    KB = [SB, SB + 8]
    def rdK(u):
        k = KB[u & 1]
        A(f"ds_read_b128 v[{k}:{k+3}], v{vL16} offset:{L_KX + u*1024}")
        A(f"ds_read_b128 v[{k+4}:{k+7}], v{vL16} offset:{L_KX + 4096 + u*1024}")
    def barrier0():
        A("s_waitcnt lgkmcnt(4)")
        A("s_barrier")
        rdA(3, R0)
    pz = lambda i: A(f"buffer_store_dwordx4 v[26:29], v{vL16}, {PZ}, s{sRz} offen offset:{i*1024}{SC}")
    def chk(buf, lab):
        A(f"""v_max_u32 v{vDummy}, v{buf}, v{buf+2}
v_cmp_eq_u32 vcc, -1, v{vDummy}
s_cbranch_vccnz {L(lab)} ;exit""")
        A.label(L(lab + 'r') + ' ;soft')
    extra = {
        2: lambda: A(f"ds_write_b128 v63, v[{R0}:{R0+3}] offset:{L_M}"),
        3: lambda: (A("s_waitcnt vmcnt(1)"), chk(R1, 'late1'), A(f"ds_write_b128 v63, v[{R1}:{R1+3}] offset:{L_M + 1024}")),
        4: lambda: (A("s_waitcnt vmcnt(0)"), chk(R2, 'late2')),
        5: lambda: xr(1),
        6: lambda: A(f"v_lshlrev_b32 v{vDummy}, 2, v{vL16}"),
        8: barrier0,
        9: lambda: (rdA(2, R1), pz(0), pz(1), xr(2)),
        10: lambda: (pz(2), pz(3)),
        11: lambda: (A(f"buffer_store_dwordx2 v[26:27], v{vMst}, {PZ}, s{sMz} offen{SC}"),
                     A(f"buffer_store_dwordx4 v[30:33], v{vL16}, {WS}, s{sKMa} offen{'' if 'b' in EXP else ' sc1'}")),
        12: lambda: (A(f"buffer_load_dword v{vDummy}, v{vDummy}, {WS}, s{sTa} offen", manual=True), zero(26, 4)),
        13: lambda: zero(30, 4),
        15: lambda: rdA(4, R2),
        20: lambda: (rdA(5, R0), xr(3)),
        23: lambda: rdA(6, R2),
        25: lambda: rdA(7, R1),
        26: lambda: rdK(0),
        27: lambda: rdK(1),
        32: lambda: ps(aQ, aQ + 3, 0),
        33: lambda: ps(aQ, aQ + 3, 1),
        34: lambda: ps(aQ + 4, aQ + 7, 0),
        35: lambda: ps(aQ + 4, aQ + 7, 1),
        36: lambda: ps(aQ, aQ + 3, 2),
        37: lambda: ps(aQ + 4, aQ + 7, 2),
    }
    g = 0
    for ch in groups:
        acc = {'q': aQ, 'k': aK, 'v': aV}[ch[0]]
        for tt in range(2):
            res = (ch, tt) in _blk
            smf(acc + 4 * tt, abuf[ch[1]], blk_regs(ch, tt) if res else rng('v', SB + 8 * tt, 8))
            if not res and ch in nxt:
                lds_blk(nxt[ch], tt, SB + 8 * tt)
            if g in extra:
                extra[g]()
            if dbg == 1 and g == 4:
                A(f"""s_mul_i32 s{sT0}, s{sStep}, 16384
s_add_u32 s{sT0}, s{sT0}, {DBG_OFF}
s_cmp_eq_u32 s{sH}, 0
s_cselect_b32 s{sT0}, s{sT0}, {DBG_OFF + 0x100000}
s_add_u32 s{sT1}, s{sT0}, 8192
buffer_store_dwordx4 v[{R0}:{R0+3}], v63, {WS}, s{sT0} offen
buffer_store_dwordx4 v[{R1}:{R1+3}], v63, {WS}, s{sT0} offen offset:1024
buffer_store_dwordx4 v[{R2}:{R2+3}], v{vL16}, {WS}, s{sT1} offen""")
            g += 1
    def vs(slot, buf, tts=(0, 1)):
        for tt in tts:
            smf(aV + 4 * tt, buf, blk_regs(('v', slot), tt))
    vs(6, R2, (0,))
    psum(aK, aQ + 2)
    A(f"ds_write_b64 v{vQKw}, v[{aQ+2}:{aQ+3}]")
    psum(aK + 4, aQ + 6)
    A(f"ds_write_b64 v{vQKw}, v[{aQ+6}:{aQ+7}] offset:512")
    vs(6, R2, (1,))
    vs(5, R0); rdA(0, R0)
    vs(7, R1); rdA(1, R1)
    A("s_waitcnt lgkmcnt(2)")
    A("s_barrier")
    stamp(0)
    S0, S1, SM = 10, 14, 18
    XB = [22, R2]
    def sc(u, ex=()):
        x, k = XB[u & 1], KB[u & 1]
        c = lambda r: '0' if u == 0 else f'v[{r}:{r+3}]'
        ops = [f"v_mfma_f32_16x16x32_bf16 v[{SM}:{SM+3}], v[{x}:{x+3}], v[{x}:{x+3}], {c(SM)}",
               f"v_mfma_f32_16x16x32_bf16 v[{S0}:{S0+3}], v[{k}:{k+3}], v[{x}:{x+3}], {c(S0)}",
               f"v_mfma_f32_16x16x32_bf16 v[{S1}:{S1+3}], v[{k+4}:{k+7}], v[{x}:{x+3}], {c(S1)}"]
        for n, o in enumerate(ops):
            A(o)
            if n < len(ex) and ex[n]: ex[n]()
    rdX(0, XB[0]); rdX(1, XB[1])
    vs(0, R0, (0,)); xr(1)
    vs(0, R0, (1,)); rdA(3, R0)
    vs(1, R1); rdA(2, R1)
    sc(0, (lambda: xr(2), None, lambda: (rdX(2, XB[0]), rdK(2))))
    sc(1, (None, None, lambda: (rdX(3, XB[1]), rdK(3))))
    vs(3, R0); rdA(4, R0)
    sc(2, (None, None, lambda: lds_blk(('o', (0, 0)), 0, 42)))
    sc(3, (None, None, lambda: lds_blk(('o', (0, 0)), 1, 50)))
    stamp(1)
    sv = [S0, S0+1, S0+2, S0+3, S1, S1+1, S1+2, S1+3, SM, SM+1]
    PX, VMr = 58, 28
    O0, O1, LSUM, ONE = 34, 38, 30, 22
    A(f"v_mul_f32 v{SM}, s{sC}, v{SM}")
    vs(2, R1, (0,))
    A(f"v_mul_f32 v{SM+1}, s{sC}, v{SM+1}")
    vs(2, R1, (1,))
    A(f"v_exp_f32 v62, v{SM}")
    vs(4, R0, (0,))
    A(f"v_exp_f32 v63, v{SM+1}")
    vs(4, R0, (1,))
    A(f"""v_exp_f32 v22, v{sv[0]}
v_exp_f32 v23, v{sv[1]}
v_cvt_pk_bf16_f32 v20, v62, v63
v_exp_f32 v24, v{sv[2]}
v_exp_f32 v25, v{sv[3]}
v_cvt_pk_bf16_f32 v{PX}, v22, v23""")
    psum(aV, VMr)
    psum(aV + 4, VMr + 1)
    A(f"""v_mov_b32 v21, 0
v_cvt_pk_bf16_f32 v63, v62, v63
v_mov_b32 v62, 0
v_exp_f32 v22, v{sv[4]}
v_mfma_f32_16x16x16_bf16 v[{O0}:{O0+3}], v[{VMr}:{VMr+1}], v[20:21], 0
v_exp_f32 v23, v{sv[5]}
v_cvt_pk_bf16_f32 v{PX+1}, v24, v25
v_mfma_f32_16x16x16_bf16 v[{O1}:{O1+3}], v[{VMr}:{VMr+1}], v[62:63], 0
buffer_store_dwordx2 v[{VMr}:{VMr+1}], v{vL8}, {WS}, s{sVMa} offen{'' if 'b' in EXP else ' sc1'}
s_cmp_eq_u32 s{sStep}, {NSTEPS - 1}
v_exp_f32 v24, v{sv[6]}
s_cbranch_scc1 {L('last')} ;exit
v_exp_f32 v25, v{sv[7]}
v_cvt_pk_bf16_f32 v{PX+2}, v22, v23
v_mov_b64 v[{ONE}:{ONE+1}], s[{sOnes}:{sOnes+1}]
v_cvt_pk_bf16_f32 v{PX+3}, v24, v25
v_mov_b64 v[{ONE+2}:{ONE+3}], s[{sOnes}:{sOnes+1}]
v_mfma_f32_16x16x16_bf16 v[{LSUM}:{LSUM+3}], v[{ONE}:{ONE+1}], v[20:21], 0
v_mfma_f32_16x16x32_bf16 v[{O0}:{O0+3}], v[{VX}:{VX+3}], v[{PX}:{PX+3}], v[{O0}:{O0+3}]
s_add_u32 s{sT0}, s{sW11}, {L_SLOT8 + 8192}
v_mfma_f32_16x16x32_bf16 v[{LSUM}:{LSUM+3}], v[{ONE}:{ONE+3}], v[{PX}:{PX+3}], v[{LSUM}:{LSUM+3}]
v_add_u32 v62, s{sT0}, v{vL16}
v_mfma_f32_16x16x32_bf16 v[{O1}:{O1+3}], v[{VX+4}:{VX+7}], v[{PX}:{PX+3}], v[{O1}:{O1+3}]
v_rcp_f32 v31, v30""")
    def norm():
        for n, o in enumerate((O0, O0 + 2, O1, O1 + 2)):
            A(f"v_mul_f32 v{o}, v{o}, v31")
            A(f"v_mul_f32 v{o+1}, v{o+1}, v31")
            A(f"v_cvt_pk_bf16_f32 v{PX + n}, v{o}, v{o+1}")
    norm()
    A(f"""s_mov_b64 exec, s[{sEx}:{sEx+1}]
ds_write_b128 v{vOw}, v[{PX}:{PX+3}]
v_max_f32 v32, v30, v31
v_cmp_nlt_f32 vcc, v32, s{sBig}
s_mov_b64 exec, -1
s_cbranch_vccnz {L('slow')} ;exit""")
    A.label(L('slowret') + ' ;soft')
    zero(18, 8); zero(VX, 8)
    A("s_waitcnt lgkmcnt(0)")
    A("s_barrier")
    stamp(2)
    OA = [10, 14]
    A(f"ds_read_b128 v[{OA[0]}:{OA[0]+3}], v{vL16} offset:{L_O}")
    A(f"ds_read_b128 v[{OA[1]}:{OA[1]+3}], v{vL16} offset:{L_O + 1024}")
    A(f"""buffer_load_dwordx4 v{vL16}, {WS}, s{sKXa} offen lds
buffer_load_dwordx4 v{vL16}, {WS}, s{sKXa} offen offset:1024 lds""")
    zero(26, 16)
    ACS = [18, VX, 26, 34]
    RES = 58
    wnxt = {(0, 0): (2, 0), (2, 0): (3, 1)}
    side = []
    def q_psum(a, dst):
        for part in range(3): side.append(lambda part=part: ps(a, dst, part))
    g = 0
    for r in range(4):
        a = ACS[r]
        if r >= 1:
            q = r - 1
            q_psum(ACS[q], RES + 2 * (q & 1)); q_psum(ACS[q] + 4, RES + 2 * (q & 1) + 1)
        for jj in range(2):
            for tt in range(2):
                res = (('o', (r, jj)), tt) in _blk
                smf(a + 4 * tt, OA[jj], blk_regs(('o', (r, jj)), tt) if res else rng('v', SB + 8 * tt, 8))
                if not res and (r, jj) in wnxt:
                    lds_blk(('o', wnxt[(r, jj)]), tt, SB + 8 * tt)
                n = 2 * jj + tt
                for _ in range((1, 2, 1, 2)[n]):
                    if side: side.pop(0)()
                if n == 3 and r == 1:
                    lds_blk(('o', 8), 0, 18)
                if n == 3 and r == 2:
                    A(f"buffer_store_dwordx4 v[{RES}:{RES+3}], v{vPst}, {WS}, s{sP0} offen{SC}")
                    A(f"""buffer_load_dwordx4 v[{VX}:{VX+3}], v{vL16}, {WS}, s{sVXa} offen
buffer_load_dwordx4 v[{VX+4}:{VX+7}], v{vL16}, {WS}, s{sVXa} offen offset:1024""", manual=True)
    zero(26, 4)
    smf(26, OA[0], 'v[18:25]')
    ps(34, RES + 2, 0); ps(34, RES + 2, 1)
    smf(26, OA[1], blk_regs(('o', 8), 1))
    ps(34, RES + 2, 2)
    psum(38, RES + 3)
    A(f"buffer_store_dwordx4 v[{RES}:{RES+3}], v{vPst}, {WS}, s{sP1} offen{SC}")
    psum(26, 30)
    A(f"buffer_store_dword v30, v{vPst}, {WS}, s{sP2} offen{SC}")
    A.label(L('wend') + ' ;soft')
    A(f"ds_read_b128 v[58:61], v{vL16} offset:{L_SEL}", manual=True)
    stamp(3)
    A(f"""s_add_u32 s{sStep}, s{sStep}, 1
s_xor_b32 s{sPart}, s{sPart}, {PART_OFF ^ (PART_OFF + PART_SLOT)}""")
    pre_a()
    if 'c' in EXP:
        A(f"s_branch {L('gather')}")
    A(f"s_cmp_lg_u32 s{sRole}, 0")
    A(f"s_cbranch_scc1 {L('gather')}")
    def rpoll():
        for i in range(4):
            A(f"buffer_load_dwordx4 v[{26+4*i}:{29+4*i}], v{vL16}, {WS}, s{sRa} offen offset:{i*1024} sc1", manual=True)
    A(f"s_mov_b32 s{sCnt}, 0")
    A("s_waitcnt lgkmcnt(0) vmcnt(0)" if 'w' in EXP else "s_waitcnt lgkmcnt(0)")
    A.label(L('r_poll'))
    for n in range(NU):
        rpoll()
        for i in range(4):
            A(f"s_waitcnt vmcnt({3 - i})")
            A(f"v_mfma_f32_16x16x32_bf16 v[22:25], v[58:61], v[{26+4*i}:{29+4*i}], {'0' if i == 0 else 'v[22:25]'}")
        for r in range(22, 26):
            A(f"v_add_f32_dpp v{r}, v{r}, v{r} row_ror:8 row_mask:0xf bank_mask:0xf")
        A(f"""v_cmp_u_f32 vcc, v22, v22
v_cvt_pk_bf16_f32 v22, v22, v23
v_cvt_pk_bf16_f32 v23, v24, v25""")
        if dbg == 2: A(f"s_add_u32 s90, s90, 1")
        A(f"s_cbranch_vccz {L('r_go')} ;exit")
    A(f"""s_add_u32 s{sCnt}, s{sCnt}, 1
s_cmp_lt_u32 s{sCnt}, {POLL_MAX}
s_cbranch_scc1 {L('r_poll')} ;nofence
v_min_u32 v22, -2, v22
v_min_u32 v23, -2, v23""")
    A.label(L('r_go'))
    A(f"buffer_store_dwordx2 v[22:23], v{vMst}, {WS}, s{sMw} offen{SC}")
    stamp(4)
    A(f"s_branch {L('gather')}")
    for lab, buf, so, off in (('late1', R1, sGa, 1024), ('late2', R2, sGb, 0)):
        A.label(L(lab))
        A(f"s_mov_b32 s{sCnt}, 0")
        A.label(L(lab + 'l'))
        A(f"""buffer_load_dwordx4 v[{buf}:{buf+3}], v{vL16}, {WS}, s{so} offen offset:{off} sc1
s_add_u32 s{sCnt}, s{sCnt}, 1
v_max_u32 v{vDummy}, v{buf}, v{buf+2}
v_cmp_eq_u32 vcc, -1, v{vDummy}
s_cmp_gt_u32 s{sCnt}, {POLL_MAX}
s_cbranch_scc1 {L(lab + 'r')}
s_cbranch_vccnz {L(lab + 'l')} ;nofence
s_branch {L(lab + 'r')}""")
    A.label(L('slow'))
    A("s_nop 15")
    A(f"""v_max3_f32 v30, v{sv[0]}, v{sv[1]}, v{sv[2]}
v_max3_f32 v31, v{sv[3]}, v{sv[4]}, v{sv[5]}
v_max3_f32 v30, v30, v{sv[6]}, v{sv[7]}
v_max3_f32 v31, v31, v{sv[8]}, v{sv[9]}
v_max_f32 v30, v30, v31
v_mov_b32 v31, v30
v_permlane32_swap_b32 v30, v31
v_max_f32 v30, v30, v31
v_mov_b32 v31, v30
v_permlane16_swap_b32 v30, v31
v_max_f32 v30, v30, v31""")
    for r in sv:
        A(f"v_sub_f32 v{r}, v{r}, v30")
    for r in sv:
        A(f"v_exp_f32 v{r}, v{r}")
    for n in range(4):
        A(f"v_cvt_pk_bf16_f32 v{PX+n}, v{sv[2*n]}, v{sv[2*n+1]}")
    A(f"""v_cvt_pk_bf16_f32 v20, v{SM}, v{SM+1}
v_mov_b32 v21, 0
v_mov_b32 v18, 0
v_mov_b32 v19, v20
v_mfma_f32_16x16x32_bf16 v[{O1}:{O1+3}], v[{VX+4}:{VX+7}], v[{PX}:{PX+3}], 0
v_mfma_f32_16x16x32_bf16 v[{O0}:{O0+3}], v[{VX}:{VX+3}], v[{PX}:{PX+3}], 0
v_mfma_f32_16x16x32_bf16 v[{LSUM}:{LSUM+3}], v[{ONE}:{ONE+3}], v[{PX}:{PX+3}], 0
v_mfma_f32_16x16x16_bf16 v[{O1}:{O1+3}], v[{VMr}:{VMr+1}], v[18:19], v[{O1}:{O1+3}]
v_mfma_f32_16x16x16_bf16 v[{O0}:{O0+3}], v[{VMr}:{VMr+1}], v[20:21], v[{O0}:{O0+3}]
v_mfma_f32_16x16x16_bf16 v[{LSUM}:{LSUM+3}], v[{ONE}:{ONE+1}], v[20:21], v[{LSUM}:{LSUM+3}]
v_rcp_f32 v31, v30""")
    norm()
    A(f"""s_mov_b64 exec, s[{sEx}:{sEx+1}]
ds_write_b128 v{vOw}, v[{PX}:{PX+3}]
s_mov_b64 exec, -1
s_waitcnt lgkmcnt(0)
s_branch {L('slowret')}""")
    A.label(L('last'))
    A("s_nop 15")
    A("s_waitcnt lgkmcnt(0)")
    A(f"""s_lshr_b32 s{sT1}, s{sW11}, 1
v_add_u32 v62, s{sT1}, v{vL8}
ds_read_b64_tr_b16 v[10:11], v62 offset:{L_QK}
ds_read_b64_tr_b16 v[12:13], v62 offset:{L_QK + 512}
s_add_u32 s{sT0}, s{sKMa}, {32 * 4096}
buffer_store_dwordx4 v[10:13], v{vL16}, {WS}, s{sT0} offen sc1
s_branch {endlab}""")
```

```python
from asmlib import Asm
from layout import *

def rng(f, b, n): return '%s[%d:%d]' % (f, b, b + n - 1)

def wreg(n):
    return ('a', 4 * n) if n < 64 else ('v', 80 + 4 * (n - 64))

def emit_lane_consts(A, vL16, vTr, t0, t1):
    A(f"""v_lshlrev_b32 v{vL16}, 4, v0
v_lshrrev_b32 v{t0}, 5, v0
v_lshlrev_b32 v{vTr}, 10, v{t0}
v_bfe_u32 v{t0}, v0, 4, 1
v_lshl_add_u32 v{vTr}, v{t0}, 8, v{vTr}
v_lshl_add_u32 v{vTr}, v{t0}, 5, v{vTr}
v_bfe_u32 v{t0}, v0, 2, 2
v_lshl_add_u32 v{vTr}, v{t0}, 6, v{vTr}
v_and_b32 v{t0}, 3, v0
v_lshl_add_u32 v{vTr}, v{t0}, 3, v{vTr}""")

def emit_wdma_off(A, dst, ldw_bytes, t0, t1, rowmap='nat'):
    if rowmap == 'nat':
        A(f"""v_bfe_u32 v{t0}, v0, 2, 2
v_bfe_u32 v{t1}, v0, 4, 1
v_lshl_add_u32 v{t0}, v{t1}, 3, v{t0}
v_lshrrev_b32 v{t1}, 5, v0
v_lshl_add_u32 v{t0}, v{t1}, 2, v{t0}""")
        d1 = 16
    else:
        A(f"""v_bfe_u32 v{t0}, v0, 2, 2
v_bfe_u32 v{t1}, v0, 4, 1
v_lshl_add_u32 v{t0}, v{t1}, 2, v{t0}
v_lshrrev_b32 v{t1}, 5, v0
v_lshl_add_u32 v{t0}, v{t1}, 4, v{t0}""")
        d1 = 8
    A(f"""v_mul_u32_u24 v{t0}, {ldw_bytes}, v{t0}
v_bfe_u32 v{t1}, v0, 4, 1
v_lshlrev_b32 v{t1}, 1, v{t1}
v_xor_b32 v{t1}, v{t1}, v0
v_and_b32 v{t1}, 3, v{t1}
v_lshl_add_u32 v{dst}, v{t1}, 4, v{t0}""")
    return d1

def emit_wload(A, items, vTr, vTr1, sLds, sT, depth=16, vt=None):
    n = len(items)
    def issue(k):
        srd, voff, sb, imm, d1, f0, f1 = items[k]
        slot = (k % depth) * 2048
        for i in range(2):
            A(f"s_add_u32 m0, s{sLds}, {slot + i * 1024}")
            A(f"s_add_u32 s{sT}, s{sb}, {imm + i * d1}")
            A(f"buffer_load_dwordx4 v{voff}, s[{srd}:{srd+3}], s{sT} offen lds")
    for k in range(min(depth, n)):
        issue(k)
    G = 4
    assert depth % G == 0 and n % 2 == 0
    k = 0
    while k < n:
        e = min(k + G, n)
        issued = min(k + depth, n)
        A(f"s_waitcnt vmcnt({2 * (issued - e)})")
        for q in range(k, e):
            slot = (q % depth) * 2048
            for v, fr in ((vTr, items[q][5]), (vTr1, items[q][6])):
                f, b = wreg(fr)
                A(f"ds_read_b64_tr_b16 {rng(f, b, 2)}, v{v} offset:{slot}")
                A(f"ds_read_b64_tr_b16 {rng(f, b + 2, 2)}, v{v} offset:{slot + 512}")
        A("s_waitcnt lgkmcnt(0)")
        for q in range(issued, min(e + depth, n)):
            issue(q)
        k = e

def emit_xdma_off(A, dst, ld_bytes, t0):
    A(f"""v_and_b32 v{t0}, 15, v0
v_mul_u32_u24 v{t0}, {ld_bytes}, v{t0}
v_lshrrev_b32 v{dst}, 4, v0
v_lshl_add_u32 v{dst}, v{dst}, 4, v{t0}""")

def emit_xdma(A, srd, voff, sRow, sW9, sLdsBuf, sT, sT2, ld_bytes, mods=''):
    for k in range(9):
        A(f"s_add_u32 m0, s{sLdsBuf}, {k * 1024}")
        A(f"s_add_u32 s{sT}, s{sRow}, {k * 64}")
        A(f"buffer_load_dwordx4 v{voff}, s[{srd}:{srd+3}], s{sT} offen{mods} lds")

def emit_group_mma(A, tiles, vX, XB, acc0, side=None):
    def rd(u):
        for tt in range(2):
            b = XB[2 * (u & 1) + tt]
            A(f"ds_read_b128 v[{b}:{b+3}], v{vX} offset:{(tt * 18 + u) * 1024}")
    rd(0); rd(1)
    for u in range(18):
        for t, (fb, o) in enumerate(tiles):
            f, b = wreg(fb + u)
            w = rng(f, b, 4)
            for tt in range(2):
                x = rng('v', XB[2 * (u & 1) + tt], 4)
                a = acc0 + (2 * t + tt) * 4
                c = '0' if u == 0 else rng('v', a, 4)
                if o == 'F':
                    A(f"v_mfma_f32_16x16x32_bf16 v[{a}:{a+3}], {w}, {x}, {c}")
                else:
                    A(f"v_mfma_f32_16x16x32_bf16 v[{a}:{a+3}], {x}, {w}, {c}")
        if u + 2 < 18:
            rd(u + 2)
        if side and u in side:
            side[u]()
```

```python
KX_OFF   = 0x0000000
VX_OFF   = 0x1000000
KM_OFF   = 0x2000000
VM_OFF   = 0x2900000
PART_OFF = 0x2D00000
PART_SLOT = 0x80000
MIMG_OFF = 0x2E00000
MIMG_SLOT = 65536
MREP = 9472
DBG_OFF  = 0x2F00000
WS_BYTES = 0x10000000

L_M   = 0
L_QK  = 9216
L_O   = 13312
L_SEL = 15360
L_KX  = 16384
L_SLOT8 = 16384
L_SLOT0 = 32768
LDS_BYTES = 163840

OB_OFF   = 0x3400000
QKA_OFF  = 0x4400000
VTA_OFF  = 0x4900000
OA_OFF   = 0x4C00000
FLG_OFF  = 0x4F00000
```

```python
from asmlib import Asm
from layout import *
from gemm import *
from chain import fbits, srd
import math
POLL_MAX = 400000
CA = (18 ** -0.5) * math.log2(math.e)

sA, sW = 3, 4
SXA, SWQ, SWO, SWOB, SWS, SOUT = 8, 12, 16, 20, 24, 76
sDBG = 28
sT0, sT1, sT2, sLds, sCol, sSeg, sPair, sBuf, sXw, sLw, sSc, sOut, sCnt, sNext, sBufN, sFirst = range(32, 48)
WS = f"s[{SWS}:{SWS+3}]"
OUT = f"s[{SOUT}:{SOUT+3}]"
vL16, vTr, vTr1, vWo, vXo, vX, vTr0 = 1, 2, 3, 4, 5, 6, 7
XB = [8, 12, 16, 20]
ACC = 24
DEPTH = 12

def a_setup(A):
    A(f"""s_load_dwordx4 s[60:63], s[0:1], 0
s_load_dwordx2 s[64:65], s[0:1], 16
s_load_dwordx2 s[66:67], s[0:1], 64
s_load_dwordx2 s[68:69], s[0:1], 80
s_load_dwordx4 s[72:75], s[0:1], 88
v_lshrrev_b32 v10, 6, v0
v_and_b32 v0, 63, v0
v_readfirstlane_b32 s{sW}, v10
s_waitcnt lgkmcnt(0)""")
    srd(A, SXA, 60, 2048 * 1152)
    srd(A, SWQ, 62, 576 * 3456)
    srd(A, SWO, 64, 576 * 1152)
    srd(A, SWOB, 66, 4096 * 1152)
    srd(A, SWS, 74, WS_BYTES)
    srd(A, SOUT, 68, 2048 * 2304)
    A(f"""s_mov_b32 s{sDBG}, s72
s_mov_b32 s{sDBG+1}, s73""")
    emit_lane_consts(A, vL16, vTr0, 10, 11)
    emit_xdma_off(A, vXo, 1152, 10)
    A(f"""s_lshr_b32 s{sT0}, s{sW}, 1
s_mul_i32 s{sXw}, s{sT0}, {16 * 1152}
s_and_b32 s{sT0}, s{sW}, 1
s_mul_i32 s{sT0}, s{sT0}, 576
s_add_u32 s{sXw}, s{sXw}, s{sT0}
s_mul_i32 s{sLw}, s{sW}, 9216""")

def divmod_const(A, sq, sr, sx, d, st):
    m = (1 << 16) // d + 1
    A(f"""s_mul_i32 s{sq}, s{sx}, {m}
s_lshr_b32 s{sq}, s{sq}, 16
s_mul_i32 s{st}, s{sq}, {d}
s_sub_u32 s{sr}, s{sx}, s{st}""")

def wait_count(A, lab, word, shift, mask, target):
    if isinstance(word, tuple):
        A(f"v_mov_b32 v10, s{word[1]}")
    else:
        A(f"v_mov_b32 v10, {4 * word}")
    A(f"s_mov_b32 s{sCnt}, 0")
    A.label(lab)
    A(f"""global_load_dword v11, v10, s[{sDBG}:{sDBG+1}] sc1
s_add_u32 s{sCnt}, s{sCnt}, 1
v_readfirstlane_b32 s{sT0}, v11
s_cmp_gt_u32 s{sCnt}, {POLL_MAX}
s_cbranch_scc1 {lab}_d
s_bfe_u32 s{sT0}, s{sT0}, {(mask << 16) | shift:#x}
s_cmp_ge_u32 s{sT0}, {target}
s_cbranch_scc1 {lab}_d
s_sleep 8
s_branch {lab}""")
    A.label(lab + '_d')

def signal_wave(A, word, inc):
    if isinstance(word, tuple):
        A(f"v_mov_b32 v10, s{word[1]}")
    else:
        A(f"v_mov_b32 v10, {4 * word}")
    A(f"""v_mov_b32 v11, {inc}
s_waitcnt vmcnt(0)
s_mov_b64 exec, 1
global_atomic_add v10, v11, s[{sDBG}:{sDBG+1}]
s_mov_b64 exec, -1""")

def gemm_phase(A, tag, SX, xbase, xmods, SWt, ldw, stride, orient, epi, pre_x=None):
    L = lambda x: f'{tag}_{x}'
    d1 = emit_wdma_off(A, vWo, ldw, 10, 11)
    A(f"""s_mul_i32 s{sLds}, s{sW}, {DEPTH * 2048}
v_add_u32 v{vTr}, s{sLds}, v{vTr0}
v_xor_b32 v{vTr1}, 32, v{vTr}
s_lshl_b32 s{sCol}, s{sPair}, 6""")
    items = [(SWt, vWo, sCol, u * 32 * ldw, d1 * ldw, u, 18 + u) for u in range(18)]
    def xdma(sseg, sbuf):
        A(f"""s_min_u32 s{sT1}, s{sseg}, 63
s_mul_i32 s{sT1}, s{sT1}, {32 * 1152}
s_add_u32 s{sT1}, s{sT1}, s{sXw}
s_add_u32 s{sT1}, s{sT1}, {xbase}
s_add_u32 s{sT2}, s{sbuf}, s{sLw}""")
        emit_xdma(A, SX, vXo, sT1, None, sT2, sT0, None, 1152, xmods)
    A(f"""s_mov_b32 s{sSeg}, s{sFirst}
s_mov_b32 s{sBuf}, {3 * 36864}
s_add_u32 s{sNext}, s{sFirst}, {stride}
s_mov_b32 s{sBufN}, 0""")
    if pre_x is None:
        xdma(sSeg, sBuf)
    emit_wload(A, items, vTr, vTr1, sLds, sT0, DEPTH)
    if pre_x is not None:
        pre_x()
        xdma(sSeg, sBuf)
    A("s_barrier")
    xdma(sNext, sBufN)
    A("s_waitcnt vmcnt(9)")
    A.label(L('loop'))
    A("s_barrier")
    A(f"""s_add_u32 s{sNext}, s{sNext}, {stride}
s_add_u32 s{sBufN}, s{sBufN}, 36864
s_cmp_eq_u32 s{sBufN}, {4 * 36864}
s_cselect_b32 s{sBufN}, 0, s{sBufN}""")
    xdma(sNext, sBufN)
    A(f"v_add_u32 v{vX}, s{sBuf}, v{vL16}")
    emit_group_mma(A, [(0, orient), (18, orient)], vX, XB, ACC)
    A("s_waitcnt vmcnt(9)")
    epi()
    A(f"""s_add_u32 s{sSeg}, s{sSeg}, {stride}
s_add_u32 s{sBuf}, s{sBuf}, 36864
s_cmp_eq_u32 s{sBuf}, {4 * 36864}
s_cselect_b32 s{sBuf}, 0, s{sBuf}
s_cmp_lt_u32 s{sSeg}, 64
s_cbranch_scc1 {L('loop')}""")
    A("s_waitcnt vmcnt(0)")

def gen_a1(A, flags, tag='A1'):
    L = lambda x: f'{tag}_{x}'
    A(f"s_cmp_ge_u32 s{sA}, 126")
    A(f"s_cbranch_scc1 {L('skip')}")
    divmod_const(A, sT1, sFirst, sA, 9, sT0)
    A(f"""s_lshl_b32 s{sPair}, s{sT1}, 2
s_add_u32 s{sPair}, s{sPair}, s{sW}
s_min_u32 s{sPair}, s{sPair}, 53
s_cmp_lt_u32 s{sPair}, 18
s_cselect_b32 s{sSc}, {fbits(CA):#x}, 1.0
s_cmp_ge_u32 s{sT1}, 9
s_cbranch_scc1 {L('v')}""")
    A(f"""v_and_b32 v10, 15, v0
v_mul_u32_u24 v10, 2304, v10
v_lshrrev_b32 v11, 4, v0
v_lshl_add_u32 v56, v11, 3, v10""")
    def epi_qk():
        A(f"""s_mul_i32 s{sOut}, s{sSeg}, {32 * 2304}
s_add_u32 s{sOut}, s{sOut}, s{sCol}
s_add_u32 s{sOut}, s{sOut}, {QKA_OFF}
s_add_u32 s{sT0}, s{sOut}, {16 * 2304}""")
        for t in range(2):
            for tt in range(2):
                a = ACC + (2 * t + tt) * 4; d = 58 + 2 * (2 * t + tt)
                for r in range(4):
                    A(f"v_mul_f32 v{a+r}, s{sSc}, v{a+r}")
                A(f"v_cvt_pk_bf16_f32 v{d}, v{a}, v{a+1}")
                A(f"v_cvt_pk_bf16_f32 v{d+1}, v{a+2}, v{a+3}")
                A(f"buffer_store_dwordx2 v[{d}:{d+1}], v56, {WS}, s{sT0 if tt else sOut} offen offset:{32*t} sc1")
    gemm_phase(A, tag + 'q', SXA, 0, '', SWQ, 3456, 9, 'F', epi_qk)
    A(f"s_branch {L('done')}")
    A.label(L('v'))
    A(f"""v_and_b32 v10, 15, v0
v_lshlrev_b32 v10, 12, v10
v_bfe_u32 v11, v0, 4, 1
v_lshl_add_u32 v10, v11, 4, v10
v_lshrrev_b32 v11, 5, v0
v_lshl_add_u32 v56, v11, 3, v10""")
    def epi_v():
        A(f"""s_sub_u32 s{sOut}, s{sPair}, 36
s_lshl_b32 s{sOut}, s{sOut}, 17
s_lshl_b32 s{sT0}, s{sSeg}, 6
s_add_u32 s{sOut}, s{sOut}, s{sT0}
s_add_u32 s{sOut}, s{sOut}, {VTA_OFF}
s_add_u32 s{sT0}, s{sOut}, 65536""")
        for t in range(2):
            for tt in range(2):
                a = ACC + (2 * t + tt) * 4; d = 58 + 2 * (2 * t + tt)
                A(f"v_cvt_pk_bf16_f32 v{d}, v{a}, v{a+1}")
                A(f"v_cvt_pk_bf16_f32 v{d+1}, v{a+2}, v{a+3}")
                A(f"buffer_store_dwordx2 v[{d}:{d+1}], v56, {WS}, s{sT0 if t else sOut} offen offset:{32*tt} sc1")
    gemm_phase(A, tag + 'v', SXA, 0, '', SWQ, 3456, 9, 'T', epi_v)
    A.label(L('done'))
    if flags:
        signal_wave(A, 2, 1 << 16)
    A.label(L('skip'))
    A("s_barrier")

def gen_a3(A, flags, tag='A3'):
    L = lambda x: f'{tag}_{x}'
    A(f"s_cmp_ge_u32 s{sA}, 125")
    A(f"s_cbranch_scc1 {L('skip')}")
    divmod_const(A, sT1, sFirst, sA, 25, sT0)
    A(f"""s_lshl_b32 s{sPair}, s{sT1}, 2
s_add_u32 s{sPair}, s{sPair}, s{sW}
s_min_u32 s{sPair}, s{sPair}, 17
v_and_b32 v10, 15, v0
v_mul_u32_u24 v10, 2304, v10
v_lshrrev_b32 v11, 4, v0
v_lshl_add_u32 v56, v11, 3, v10""")
    def epi():
        A(f"""s_mul_i32 s{sOut}, s{sSeg}, {32 * 2304}
s_add_u32 s{sOut}, s{sOut}, s{sCol}
s_add_u32 s{sT0}, s{sOut}, {16 * 2304}""")
        for t in range(2):
            for tt in range(2):
                a = ACC + (2 * t + tt) * 4; d = 58 + 2 * (2 * t + tt)
                A(f"v_cvt_pk_bf16_f32 v{d}, v{a}, v{a+1}")
                A(f"v_cvt_pk_bf16_f32 v{d+1}, v{a+2}, v{a+3}")
                A(f"buffer_store_dwordx2 v[{d}:{d+1}], v56, {OUT}, s{sT0 if tt else sOut} offen offset:{32*t}")
    def pre():
        if flags:
            wait_count(A, L('w'), 3, 16, 16, 512)
    gemm_phase(A, tag, SWS, OA_OFF, ' sc1', SWO, 1152, 25, 'F', epi, pre_x=pre)
    A.label(L('skip'))
    A("s_barrier")

def gen_a4(A, flags, tag='A4'):
    L = lambda x: f'{tag}_{x}'
    A(f"s_cmp_ge_u32 s{sA}, 120")
    A(f"s_cbranch_scc1 {L('skip')}")
    divmod_const(A, sSeg, sPair, sA, 12, sT0)
    d1 = emit_wdma_off(A, vWo, 1152, 10, 11, 'perm')
    D4 = 16
    A(f"""s_mul_i32 s{sLds}, s{sW}, {D4 * 2048}
v_add_u32 v{vTr}, s{sLds}, v{vTr0}
v_xor_b32 v{vTr1}, 32, v{vTr}
s_mul_i32 s{sCol}, s{sPair}, 96
s_mul_i32 s{sT0}, s{sW}, {1024 * 1152}
s_add_u32 s{sT2}, s{sCol}, s{sT0}""")
    items = []
    for ks in range(32):
        items.append((SWOB, vWo, sT2, ks * 32 * 1152, d1 * 1152, ks, 32 + ks))
        items.append((SWOB, vWo, sT2, ks * 32 * 1152 + 64, d1 * 1152, 64 + ks, 96))
    emit_wload(A, items, vTr, vTr1, sLds, sT0, D4)
    A("s_barrier")
    NBUF = 20
    bufs = [8 + 4 * i for i in range(10)] + [208 + 4 * i for i in range(10)]
    AC = 48
    A(f"""s_mul_i32 s{sT0}, s{sW}, 6144
v_add_u32 v72, s{sT0}, v{vL16}
s_lshl_b32 s{sT0}, s{sW}, 11
v_add_u32 v73, s{sT0}, v{vL16}
v_and_b32 v10, 15, v0
v_mul_u32_u24 v10, 2304, v10
v_lshrrev_b32 v11, 4, v0
v_lshl_add_u32 v74, v11, 3, v10""")
    A.label(L('loop'))
    if flags:
        A(f"s_lshl_b32 s{sT1}, s{sSeg}, 2")
        wait_count(A, L('w'), ('s', sT1), 8, 8, 128)
    A(f"""s_lshl_b32 s{sT0}, s{sSeg}, 18
s_lshl_b32 s{sT1}, s{sW}, 15
s_add_u32 s{sT0}, s{sT0}, s{sT1}
s_add_u32 s{sT0}, s{sT0}, {OB_OFF}
s_add_u32 s{sT1}, s{sT0}, {1 << 17}""")
    def ld(n):
        ks, tt = n >> 1, n & 1
        s_ = sT1 if tt else sT0
        if ks and ks % 4 == 0:
            A(f"s_add_u32 s{s_}, s{s_}, 4096")
        b = bufs[n % NBUF]
        A(f"buffer_load_dwordx4 v[{b}:{b+3}], v{vL16}, {WS}, s{s_} offen offset:{(ks % 4) * 1024} sc1")
    for n in range(NBUF):
        ld(n)
    for n in range(64):
        ks, tt = n >> 1, n & 1
        b = bufs[n % NBUF]
        for t in range(3):
            f, wb = wreg(t * 32 + ks)
            a = AC + (2 * t + tt) * 4
            A(f"v_mfma_f32_16x16x32_bf16 v[{a}:{a+3}], {rng(f, wb, 4)}, v[{b}:{b+3}], {'0' if ks == 0 else rng('v', a, 4)}")
        if n + NBUF < 64:
            ld(n + NBUF)
    for i in range(6):
        A(f"ds_write_b128 v72, v[{AC+4*i}:{AC+4*i+3}] offset:{i*1024}")
    A("s_waitcnt lgkmcnt(0)")
    A("s_barrier")
    A(f"s_cmp_eq_u32 s{sW}, 3")
    A(f"s_cbranch_scc1 {L('nored')}")
    for tt in range(2):
        for p in range(4):
            b = 8 + 16 * tt + 4 * p
            A(f"ds_read_b128 v[{b}:{b+3}], v73 offset:{p * 6144 + tt * 1024}")
    A(f"""s_mul_i32 s{sOut}, s{sSeg}, {32 * 2304}
s_add_u32 s{sOut}, s{sOut}, s{sCol}
s_lshl_b32 s{sT0}, s{sW}, 5
s_add_u32 s{sOut}, s{sOut}, s{sT0}
s_add_u32 s{sOut}, s{sOut}, 1152
s_add_u32 s{sT0}, s{sOut}, {16 * 2304}""")
    for tt in range(2):
        b = 8 + 16 * tt
        for h in range(2):
            A(f"v_pk_add_f32 v[{b+2*h}:{b+2*h+1}], v[{b+2*h}:{b+2*h+1}], v[{b+4+2*h}:{b+5+2*h}]")
            A(f"v_pk_add_f32 v[{b+8+2*h}:{b+9+2*h}], v[{b+8+2*h}:{b+9+2*h}], v[{b+12+2*h}:{b+13+2*h}]")
            A(f"v_pk_add_f32 v[{b+2*h}:{b+2*h+1}], v[{b+2*h}:{b+2*h+1}], v[{b+8+2*h}:{b+9+2*h}]")
            A(f"v_cvt_pk_bf16_f32 v{b+4+h}, v{b+2*h}, v{b+2*h+1}")
        A(f"buffer_store_dwordx2 v[{b+4}:{b+5}], v74, {OUT}, s{sT0 if tt else sOut} offen")
    A.label(L('nored'))
    A(f"""s_barrier
s_add_u32 s{sSeg}, s{sSeg}, 10
s_cmp_lt_u32 s{sSeg}, 64
s_cbranch_scc1 {L('loop')}""")
    A.label(L('skip'))

def gen_a2(A, flags, tag='A2'):
    L = lambda x: f'{tag}_{x}'
    LK, LT, LV = 0, 65536, 73728
    sHd, sQ0, sIt, sPass, sBig = sSeg, sFirst, sNext, sBufN, sSc
    A(f"""s_lshr_b32 s{sHd}, s{sA}, 2
s_and_b32 s{sQ0}, s{sA}, 3
s_lshl_b32 s{sQ0}, s{sQ0}, 2
s_add_u32 s{sQ0}, s{sQ0}, s{sW}
s_lshl_b32 s{sQ0}, s{sQ0}, 7
s_mul_i32 s{sCol}, s{sHd}, 36
s_mov_b32 s{sBig}, {fbits(2.0**60):#x}""")
    A(f"""v_and_b32 v10, 31, v0
v_mul_u32_u24 v10, 2304, v10
v_lshrrev_b32 v11, 5, v0
v_lshl_add_u32 v12, v11, 4, v10
v_mul_u32_u24 v13, 2304, v0""")
    for p in range(5):
        A(f"""v_add_u32 v10, {64 * p}, v0
v_mul_u32_u24 v11, 3277, v10
v_lshrrev_b32 v11, 16, v11
v_mul_u32_u24 v19, 20, v11
v_sub_u32 v10, v10, v19
v_min_u32 v10, 17, v10
v_lshlrev_b32 v10, 12, v10
v_lshl_add_u32 v{14+p}, v11, 4, v10""")
    if flags:
        wait_count(A, L('w'), 2, 16, 16, 504)
    A(f"""s_mul_i32 s{sT1}, s{sW}, {512 * 2304}
s_add_u32 s{sT1}, s{sT1}, s{sCol}
s_add_u32 s{sT1}, s{sT1}, {QKA_OFF + 1152}
s_lshl_b32 s{sT2}, s{sW}, 14""")
    for i in range(16):
        A(f"""s_add_u32 m0, s{sT2}, {LK + i * 1024}
s_add_u32 s{sT0}, s{sT1}, {i * 32 * 2304}
buffer_load_dwordx4 v12, {WS}, s{sT0} offen sc1 lds""")
    A(f"s_lshl_b32 s{sT2}, s{sW}, 11")
    for i in range(8):
        A(f"""s_add_u32 m0, s{sT2}, {LT + i * 256}
s_add_u32 s{sT0}, s{sT1}, {i * 64 * 2304 + 32}
buffer_load_dword v13, {WS}, s{sT0} offen sc1 lds""")
    A(f"""s_mul_i32 s{sT1}, s{sHd}, {18 * 4096}
s_lshl_b32 s{sT0}, s{sW}, 10
s_add_u32 s{sT1}, s{sT1}, s{sT0}
s_add_u32 s{sT1}, s{sT1}, {VTA_OFF}
s_mul_i32 s{sT2}, s{sW}, 20480""")
    for b in range(4):
        for p in range(5):
            A(f"""s_add_u32 m0, s{sT2}, {LV + b * 5120 + p * 1024}
s_add_u32 s{sT0}, s{sT1}, {b * 256}
buffer_load_dwordx4 v{14+p}, {WS}, s{sT0} offen sc1 lds""")
    QM = lambda i: 32 + 8 * i
    QT = lambda i: 36 + 8 * i
    A(f"""s_mul_i32 s{sT1}, s{sQ0}, 2304
s_add_u32 s{sT1}, s{sT1}, s{sCol}
s_add_u32 s{sT1}, s{sT1}, {QKA_OFF}""")
    for i in range(4):
        A(f"""s_add_u32 s{sT0}, s{sT1}, {i * 32 * 2304}
buffer_load_dwordx4 v[{QM(i)}:{QM(i)+3}], v12, {WS}, s{sT0} offen sc1
buffer_load_dword v{QT(i)}, v12, {WS}, s{sT0} offen offset:32 sc1
v_mov_b32 v{QT(i)+1}, 0
v_mov_b64 v[{QT(i)+2}:{QT(i)+3}], 0""")
    A("v_cmp_gt_u32 vcc, 32, v0")
    for i in range(4):
        A(f"v_cndmask_b32 v{QT(i)}, 0, v{QT(i)}, vcc")
    A(f"""v_mul_u32_u24 v10, 320, v0
s_add_u32 s{sT2}, s{sT2}, {LV + 18 * 16}
v_add_u32 v10, s{sT2}, v10
v_mov_b32 v20, 0x3f803f80
v_mov_b32 v21, 0x3f803f80
v_mov_b32 v22, 0x3f803f80
v_mov_b32 v23, 0x3f803f80
s_waitcnt vmcnt(0)
ds_write_b128 v10, v[20:23]""")
    KM = [64, 80]; KT = [68, 84]; VF = [72, 88]
    S = [96, 112]; P0, P1 = 128, 132
    O = lambda i: 16 * i
    NM = lambda i: 136 + 16 * i
    aK, aT, aV_ = 24, 25, 26
    for par in range(2):
        A(f"v_mov_b32 v{KT[par]+1}, 0")
        A(f"v_mov_b64 v[{KT[par]+2}:{KT[par]+3}], 0")
    for r in range(NM(0), NM(4), 2):
        A(f"v_mov_b64 v[{r}:{r+1}], 0")
    A(f"s_mov_b32 s{sPass}, 0")
    A("s_waitcnt lgkmcnt(0)")
    A("s_barrier")
    def addr_init():
        A(f"""v_mov_b32 v{aK}, v{vL16}
v_and_b32 v10, 31, v0
v_lshlrev_b32 v{aT}, 2, v10
v_add_u32 v{aT}, {LT}, v{aT}
v_min_u32 v10, 19, v10
v_lshlrev_b32 v10, 4, v10
v_lshrrev_b32 v11, 5, v0
v_mul_u32_u24 v11, 320, v11
v_add3_u32 v{aV_}, v10, v11, s{sT0}""")
    def rdK(par, off, manual=False):
        A(f"ds_read_b128 v[{KM[par]}:{KM[par]+3}], v{aK} offset:{off * 1024}", manual)
        A(f"ds_read_b32 v{KT[par]}, v{aT} offset:{off * 128}", manual)
    def rdV(par, off, manual=False):
        A(f"ds_read_b128 v[{VF[par]}:{VF[par]+3}], v{aV_} offset:{off * 1280}", manual)
        A(f"ds_read_b128 v[{VF[par]+4}:{VF[par]+7}], v{aV_} offset:{off * 1280 + 640}", manual)
    def qk(par, i, sb, part):
        if part == 0:
            A(f"v_mfma_f32_32x32x16_bf16 v[{sb}:{sb+15}], v[{KM[par]}:{KM[par]+3}], v[{QM(i)}:{QM(i)+3}], v[{NM(i)}:{NM(i)+15}]")
        else:
            A(f"v_mfma_f32_32x32x16_bf16 v[{sb}:{sb+15}], v[{KT[par]}:{KT[par]+3}], v[{QT(i)}:{QT(i)+3}], v[{sb}:{sb+15}]")
    def pv(par, i, half):
        v = VF[par] + 4 * half; p = P1 if half else P0
        A(f"v_mfma_f32_32x32x16_bf16 a[{O(i)}:{O(i)+15}], v[{v}:{v+3}], v[{p}:{p+3}], a[{O(i)}:{O(i)+15}]")
    A.label(L('pass'))
    A(f"s_mov_b32 s{sT0}, {LV}")
    addr_init()
    rdK(0, 0); rdV(0, 0); rdV(1, 0)
    for r in range(64):
        A(f"v_accvgpr_write_b32 a{r}, 0")
    A(f"v_mov_b64 v[{P1}:{P1+1}], 0")
    A(f"v_mov_b64 v[{P1+2}:{P1+3}], 0")
    qk(0, 0, S[0], 0); qk(0, 0, S[0], 1)
    A(f"s_mov_b32 s{sIt}, 0")
    A("s_waitcnt lgkmcnt(0)")
    A("s_nop 7")
    A.label(L('loop'))
    for n in range(8):
        par, i = n >> 2, n & 3
        npar, ni = ((n + 1) >> 2) & 1, (n + 1) & 3
        ppar, pi = ((n - 1) >> 2) & 1, (n - 1) & 3
        sb, nsb = S[n & 1], S[(n + 1) & 1]
        def ex(q):
            for r in range(4 * q, 4 * q + 4):
                A(f"v_exp_f32 v{sb+r}, v{sb+r}")
        def cv(q):
            d = (P0, P0 + 2, P1, P1 + 2)[q]
            A(f"v_cvt_pk_bf16_f32 v{d}, v{sb+4*q}, v{sb+4*q+1}")
            A(f"v_cvt_pk_bf16_f32 v{d+1}, v{sb+4*q+2}, v{sb+4*q+3}")
        if i == 3:
            A("s_waitcnt lgkmcnt(0)")
        qk(npar, ni, nsb, 0)
        if i == 0:
            rdK(1 - par, par + 1, True)
        ex(0)
        qk(npar, ni, nsb, 1)
        cv(0); ex(1)
        pv(ppar, pi, 1)
        if i == 0:
            rdV(1 - par, par + 1, True)
        cv(1); ex(2)
        pv(par, i, 0)
        cv(2); ex(3)
        if n == 7:
            A(f"""v_add_u32 v{aK}, 2048, v{aK}
v_add_u32 v{aT}, 256, v{aT}
v_add_u32 v{aV_}, 2560, v{aV_}
s_add_u32 s{sIt}, s{sIt}, 1
s_cmp_lt_u32 s{sIt}, 32""")
        cv(3)
    A(f"s_cbranch_scc1 {L('loop')} ;nofence")
    pv(1, 3, 1)
    A("s_waitcnt lgkmcnt(0)")
    for i in range(4):
        A(f"""v_accvgpr_read_b32 v{100+2*i}, a{O(i)+10}
v_accvgpr_read_b32 v{101+2*i}, a{O(i)+10}
v_permlane32_swap_b32 v{100+2*i}, v{101+2*i}
v_rcp_f32 v{101+2*i}, v{100+2*i}""")
    A(f"""v_max3_f32 v108, v100, v101, v102
v_max3_f32 v109, v103, v104, v105
v_max3_f32 v108, v108, v106, v107
v_add_f32 v110, v100, v102
v_add_f32 v111, v104, v106
v_add_f32 v110, v110, v111
v_max_f32 v108, v108, v109
v_cmp_nlt_f32 vcc, v108, s{sBig}
v_cmp_u_f32 s[50:51], v110, v110
s_or_b64 vcc, vcc, s[50:51]
s_cmp_lg_u32 s{sPass}, 0
s_cbranch_scc1 {L('store')}
s_cbranch_vccz {L('store')}""")
    A(f"s_mov_b32 s{sT0}, {LV}")
    addr_init()
    for i in range(4):
        A(f"v_mov_b32 v{200+i}, 0xff800000")
    A(f"s_mov_b32 s{sIt}, 0")
    A.label(L('mx'))
    rdK(0, 0)
    for i in range(4):
        sb = S[i & 1]
        qk(0, i, sb, 0); qk(0, i, sb, 1)
        for r in range(0, 16, 2):
            A(f"v_max3_f32 v{200+i}, v{200+i}, v{sb+r}, v{sb+r+1}")
    A(f"""v_add_u32 v{aK}, 1024, v{aK}
v_add_u32 v{aT}, 128, v{aT}
s_add_u32 s{sIt}, s{sIt}, 1
s_cmp_lt_u32 s{sIt}, 64
s_cbranch_scc1 {L('mx')}""")
    for i in range(4):
        A(f"""v_mov_b32 v204, v{200+i}
v_permlane32_swap_b32 v{200+i}, v204
v_max_f32 v204, v204, v{200+i}
v_sub_f32 v204, 0, v204""")
        for r in range(16):
            A(f"v_mov_b32 v{NM(i)+r}, v204")
    A(f"s_mov_b32 s{sPass}, 1")
    A(f"s_branch {L('pass')}")
    A.label(L('store'))
    A(f"""v_and_b32 v10, 31, v0
v_mul_u32_u24 v10, 1152, v10
v_lshrrev_b32 v11, 5, v0
v_lshl_add_u32 v12, v11, 3, v10
s_mul_i32 s{sT1}, s{sQ0}, 1152
s_add_u32 s{sT1}, s{sT1}, s{sCol}
s_add_u32 s{sT1}, s{sT1}, {OA_OFF}""")
    for i in range(4):
        o = NM(i)
        for r in range(10):
            A(f"v_accvgpr_read_b32 v{o+r}, a{O(i)+r}")
        for r in range(10):
            A(f"v_mul_f32 v{o+r}, v{o+r}, v{101+2*i}")
        for r in range(5):
            A(f"v_cvt_pk_bf16_f32 v{o+10+r}, v{o+2*r}, v{o+2*r+1}")
        A(f"""s_add_u32 s{sT0}, s{sT1}, {i * 32 * 1152}
buffer_store_dwordx2 v[{o+10}:{o+11}], v12, {WS}, s{sT0} offen sc1
buffer_store_dwordx2 v[{o+12}:{o+13}], v12, {WS}, s{sT0} offen offset:16 sc1
s_mov_b32 exec_hi, 0
buffer_store_dword v{o+14}, v12, {WS}, s{sT0} offen offset:32 sc1
s_mov_b64 exec, -1""")
    if flags:
        signal_wave(A, 3, 1 << 16)
    A("s_waitcnt vmcnt(0)")
    A("s_barrier")
```

```python
from asmlib import Asm
from layout import *
from gemm import *
from chain import C_SCALE, fbits, srd
POLL_MAX = 200000
NB = 3

def gen_b(A, do1=True, do2=True, flags=True, tag='B'):
    L = lambda x: f'{tag}_{x}'
    sH, sW, sJ = 3, 4, 5
    SQ, SK, SV, SX, SWS = 8, 12, 16, 20, 24
    sDBG = 28
    sT0, sT1, sT2, sLds, sCol, sSeg, sN, sBuf, sXw, sLw, sC, sOut, sCnt, sNext, sBufN, sPrev = range(32, 48)
    sEx = 48
    WS = f"s[{SWS}:{SWS+3}]"
    vL16, vTr, vTr1, vWo, vXo, vX, vOne = 1, 2, 3, 4, 5, 6, 7
    XB = [8, 12, 16, 20]
    ACC = 24
    A(f"""s_load_dwordx2 s[60:61], s[0:1], 24
s_load_dwordx4 s[64:67], s[0:1], 40
s_load_dwordx2 s[68:69], s[0:1], 56
s_load_dwordx4 s[72:75], s[0:1], 88
v_lshrrev_b32 v10, 6, v0
v_and_b32 v0, 63, v0
v_readfirstlane_b32 s{sW}, v10
s_waitcnt lgkmcnt(0)""")
    srd(A, SX, 60, 2048 * 1152)
    srd(A, SQ, 64, 576 * 8192); srd(A, SK, 66, 576 * 8192); srd(A, SV, 68, 576 * 8192)
    srd(A, SWS, 74, WS_BYTES)
    A(f"""s_mov_b32 s{sDBG}, s72
s_mov_b32 s{sDBG+1}, s73
s_mov_b32 s{sC}, {fbits(C_SCALE):#x}
v_mov_b32 v{vOne}, 1""")
    emit_lane_consts(A, vL16, vTr, 10, 11)
    d1 = emit_wdma_off(A, vWo, 8192, 10, 11)
    emit_xdma_off(A, vXo, 1152, 10)
    DEPTH = 12
    A(f"""s_mul_i32 s{sLds}, s{sW}, {DEPTH * 2048}
s_add_u32 s{sLds}, s{sLds}, 36864
v_add_u32 v{vTr}, s{sLds}, v{vTr}
v_xor_b32 v{vTr1}, 32, v{vTr}
s_lshl_b32 s{sCol}, s{sH}, 8
s_lshl_b32 s{sT0}, s{sW}, 6
s_add_u32 s{sCol}, s{sCol}, s{sT0}
s_lshr_b32 s{sT0}, s{sW}, 1
s_mul_i32 s{sXw}, s{sT0}, {16 * 1152}
s_and_b32 s{sT0}, s{sW}, 1
s_mul_i32 s{sT0}, s{sT0}, 576
s_add_u32 s{sXw}, s{sXw}, s{sT0}
s_mul_i32 s{sLw}, s{sW}, 9216""")
    def xdma(sseg, sbuf):
        A(f"""s_min_u32 s{sT1}, s{sseg}, 63
s_mul_i32 s{sT1}, s{sT1}, {32 * 1152}
s_add_u32 s{sT1}, s{sT1}, s{sXw}
s_add_u32 s{sT2}, s{sbuf}, s{sLw}""")
        emit_xdma(A, SX, vXo, sT1, None, sT2, sT0, None, 1152)
    def witems(mats):
        it = []
        for m, s_ in mats:
            for u in range(18):
                it.append((s_, vWo, sCol, u * 32 * 8192, d1 * 8192, (2 * m) * 18 + u, (2 * m + 1) * 18 + u))
        return it
    def signal(sseg, inc, vtmp):
        A(f"""s_lshl_b32 s{sT0}, s{sseg}, 2
v_mov_b32 v{vtmp}, s{sT0}
v_mov_b32 v{vtmp+1}, {inc}
s_mov_b64 exec, 1
global_atomic_add v{vtmp}, v{vtmp+1}, s[{sDBG}:{sDBG+1}]
s_mov_b64 exec, -1""")
    def ring_start():
        A(f"""s_mov_b32 s{sSeg}, s{sJ}
s_mov_b32 s{sBuf}, 0
s_add_u32 s{sNext}, s{sJ}, {NB}
s_mov_b32 s{sBufN}, 36864""")
    def ring_adv():
        A(f"""s_mov_b32 s{sPrev}, s{sSeg}
s_add_u32 s{sSeg}, s{sSeg}, {NB}
s_add_u32 s{sBuf}, s{sBuf}, 36864
s_cmp_eq_u32 s{sBuf}, {3 * 36864}
s_cselect_b32 s{sBuf}, 0, s{sBuf}""")
    def next_dma():
        A(f"""s_add_u32 s{sNext}, s{sNext}, {NB}
s_add_u32 s{sBufN}, s{sBufN}, 36864
s_cmp_eq_u32 s{sBufN}, {3 * 36864}
s_cselect_b32 s{sBufN}, 0, s{sBufN}""")
        xdma(sNext, sBufN)

    if do1:
        ring_start()
        xdma(sSeg, sBuf)
        if flags:
            A(f"""v_mov_b64 v[12:13], -1
v_mov_b64 v[14:15], -1
v_lshrrev_b32 v16, 1, v{vL16}
s_mov_b32 s{sN}, s{sJ}""")
            A.label(L('pz'))
            A(f"""s_lshl_b32 s{sT0}, s{sN}, 5
s_add_u32 s{sT0}, s{sT0}, s{sH}
s_lshl_b32 s{sT0}, s{sT0}, 2
s_add_u32 s{sT0}, s{sT0}, s{sW}
s_lshl_b32 s{sT1}, s{sT0}, 10
s_add_u32 s{sT1}, s{sT1}, {KM_OFF + 32 * 4096}
s_lshl_b32 s{sT2}, s{sT0}, 9
s_add_u32 s{sT2}, s{sT2}, {VM_OFF}
buffer_store_dwordx4 v[12:15], v{vL16}, {WS}, s{sT1} offen sc1
buffer_store_dwordx2 v[12:13], v16, {WS}, s{sT2} offen sc1
s_add_u32 s{sN}, s{sN}, {NB}
s_cmp_lt_u32 s{sN}, 64
s_cbranch_scc1 {L('pz')}""")
        emit_wload(A, witems([(0, SK), (1, SV)]), vTr, vTr1, sLds, sT0, DEPTH)
        A("s_barrier")
        xdma(sNext, sBufN)
        A(f"s_mov_b32 s{sPrev}, 64")
        A("s_waitcnt vmcnt(9)")
        A.label(L('kv'))
        A("s_barrier")
        next_dma()
        A(f"v_add_u32 v{vX}, s{sBuf}, v{vL16}")
        def sig_prev():
            A("s_waitcnt vmcnt(9)")
            if flags:
                A(f"""s_cmp_lt_u32 s{sPrev}, 64
s_cselect_b32 s{sT1}, s{sPrev}, 0
s_cselect_b32 s{sT2}, 1, 0
s_lshl_b32 s{sT1}, s{sT1}, 2
v_mov_b32 v72, s{sT1}
v_mov_b32 v73, s{sT2}
s_mov_b64 exec, 1
global_atomic_add v72, v73, s[{sDBG}:{sDBG+1}]
s_mov_b64 exec, -1""")
        tiles = [(0, 'F'), (18, 'F'), (36, 'T'), (54, 'T')]
        emit_group_mma(A, tiles, vX, XB, ACC, side={6: sig_prev})
        A(f"""s_lshl_b32 s{sT0}, s{sSeg}, 5
s_add_u32 s{sT0}, s{sT0}, s{sH}
s_lshl_b32 s{sT0}, s{sT0}, 13
s_lshl_b32 s{sT1}, s{sW}, 10
s_add_u32 s{sOut}, s{sT0}, s{sT1}
s_add_u32 s{sT2}, s{sOut}, 4096
s_add_u32 s{sT1}, s{sOut}, s{sT1}
s_add_u32 s{sT1}, s{sT1}, {VX_OFF}""")
        for tt in range(2):
            d = 56 + 4 * tt
            for t in range(2):
                a = ACC + (2 * t + tt) * 4
                for r in range(4):
                    A(f"v_mul_f32 v{a+r}, s{sC}, v{a+r}")
                A(f"v_cvt_pk_bf16_f32 v{d+2*t}, v{a}, v{a+1}")
                A(f"v_cvt_pk_bf16_f32 v{d+2*t+1}, v{a+2}, v{a+3}")
            A(f"buffer_store_dwordx4 v[{d}:{d+3}], v{vL16}, {WS}, s{sOut if tt == 0 else sT2} offen sc1")
        for t in range(2):
            d = 64 + 4 * t
            for tt in range(2):
                a = ACC + (2 * (2 + t) + tt) * 4
                A(f"v_cvt_pk_bf16_f32 v{d+2*tt}, v{a}, v{a+1}")
                A(f"v_cvt_pk_bf16_f32 v{d+2*tt+1}, v{a+2}, v{a+3}")
            A(f"buffer_store_dwordx4 v[{d}:{d+3}], v{vL16}, {WS}, s{sT1} offen offset:{t*1024} sc1")
        ring_adv()
        A(f"s_waitcnt vmcnt({14 if flags else 13})")
        A(f"s_cmp_lt_u32 s{sSeg}, 64")
        A(f"s_cbranch_scc1 {L('kv')}")
        A("s_waitcnt vmcnt(0)")
        if flags:
            signal(sPrev, 1, 72)
        A("s_barrier")

    if do2:
        LQ = 3 * 36864
        ring_start()
        xdma(sSeg, sBuf)
        emit_wload(A, witems([(2, SQ)]), vTr, vTr1, sLds, sT0, DEPTH)
        A("s_barrier")
        xdma(sNext, sBufN)
        sTT, sEH, sKx, sVx, sKm, sVm = 50, 51, 52, 53, 54, 55
        A(f"""s_and_b32 s{sTT}, s{sW}, 1
s_lshr_b32 s{sEH}, s{sW}, 1
v_and_b32 v10, 15, v0
v_lshrrev_b32 v11, 4, v0
v_lshlrev_b32 v11, 2, v11
s_lshl_b32 s{sT0}, s{sTT}, 4
v_add_u32 v10, s{sT0}, v10
v_mov_b32 v12, 0xf149f2ca""")
        for kt in range(2):
            for r in range(4):
                A(f"""v_add_u32 v13, {16 * kt + r}, v11
v_cmp_le_u32 vcc, v13, v10
v_cndmask_b32 v{80 + 4*kt + r}, v12, 0, vcc""")
        A(f"""v_mov_b32 v88, 0x3f803f80
v_mov_b32 v89, 0x3f803f80
v_mov_b32 v90, 0x3f803f80
v_mov_b32 v91, 0x3f803f80
v_lshrrev_b32 v92, 1, v{vL16}
s_lshl_b32 s{sT0}, s{sW}, 10
s_add_u32 s{sT0}, s{sT0}, {LQ}
v_add_u32 v93, s{sT0}, v{vL16}
s_lshl_b32 s{sT0}, s{sTT}, 12
s_add_u32 s{sT0}, s{sT0}, {LQ}
v_add_u32 v94, s{sT0}, v{vL16}
s_waitcnt vmcnt(9)""")
        A.label(L('at'))
        A("s_barrier")
        A(f"""s_lshl_b32 s{sT0}, s{sSeg}, 5
s_add_u32 s{sT0}, s{sT0}, s{sH}
s_lshl_b32 s{sKx}, s{sT0}, 13
s_add_u32 s{sT1}, s{sKx}, 4096
s_lshl_b32 s{sT2}, s{sEH}, 12
s_add_u32 s{sVx}, s{sKx}, s{sT2}
s_add_u32 s{sVx}, s{sVx}, {VX_OFF}
s_lshl_b32 s{sKm}, s{sT0}, 12
s_add_u32 s{sKm}, s{sKm}, {KM_OFF + 32 * 4096}
s_lshl_b32 s{sVm}, s{sT0}, 11
s_lshl_b32 s{sT2}, s{sEH}, 10
s_add_u32 s{sVm}, s{sVm}, s{sT2}
s_add_u32 s{sVm}, s{sVm}, {VM_OFF}""")
        for kt in range(2):
            for u in range(4):
                b = 16 * kt + 4 * u
                A(f"buffer_load_dwordx4 a[{b}:{b+3}], v{vL16}, {WS}, s{sKx if kt == 0 else sT1} offen offset:{u*1024} sc1")
        for e in range(4):
            A(f"buffer_load_dwordx4 a[{32+4*e}:{35+4*e}], v{vL16}, {WS}, s{sVx} offen offset:{e*1024} sc1")
        next_dma()
        A(f"v_add_u32 v{vX}, s{sBuf}, v{vL16}")
        emit_group_mma(A, [(72, 'F'), (90, 'F')], vX, XB, ACC)
        for tt in range(2):
            d = 56 + 4 * tt
            for t in range(2):
                a = ACC + (2 * t + tt) * 4
                A(f"v_cvt_pk_bf16_f32 v{d+2*t}, v{a}, v{a+1}")
                A(f"v_cvt_pk_bf16_f32 v{d+2*t+1}, v{a+2}, v{a+3}")
            A(f"ds_write_b128 v93, v[{d}:{d+3}] offset:{tt * 4096}")
        A("s_waitcnt lgkmcnt(0)")
        A("s_barrier")
        Q = 8
        for u in range(4):
            A(f"ds_read_b128 v[{Q+4*u}:{Q+4*u+3}], v94 offset:{u*1024}")
        S0, S1, SM = 24, 28, 32
        for u in range(4):
            for kt, s_ in ((0, S0), (1, S1)):
                c = rng('v', 80 + 4 * kt, 4) if u == 0 else rng('v', s_, 4)
                A(f"v_mfma_f32_16x16x32_bf16 v[{s_}:{s_+3}], a[{16*kt+4*u}:{16*kt+4*u+3}], v[{Q+4*u}:{Q+4*u+3}], {c}")
        A(f"s_mov_b32 s{sCnt}, 0")
        A("s_waitcnt vmcnt(9)")
        A.label(L('mp'))
        for u in range(4):
            A(f"buffer_load_dwordx4 v[{40+4*u}:{43+4*u}], v{vL16}, {WS}, s{sKm} offen offset:{u*1024} sc1")
        A(f"buffer_load_dwordx2 v[56:57], v92, {WS}, s{sVm} offen sc1")
        A(f"buffer_load_dwordx2 v[58:59], v92, {WS}, s{sVm} offen offset:512 sc1")
        if flags:
            A(f"""s_add_u32 s{sCnt}, s{sCnt}, 1
v_max3_u32 v60, v40, v44, v48
v_max3_u32 v61, v52, v56, v58
v_max3_u32 v62, v43, v47, v51
v_max3_u32 v60, v60, v61, v55
v_max_u32 v60, v60, v62
v_cmp_eq_u32 vcc, -1, v60
s_cmp_gt_u32 s{sCnt}, {POLL_MAX}
s_cbranch_scc1 {L('mg')} ;nofence
s_cbranch_vccz {L('mg')} ;nofence
s_sleep 4
s_branch {L('mp')} ;nofence""")
            A.label(L('mg') + ' ;soft')
        for u in range(4):
            c = '0' if u == 0 else rng('v', SM, 4)
            A(f"v_mfma_f32_16x16x32_bf16 v[{SM}:{SM+3}], v[{40+4*u}:{43+4*u}], v[{Q+4*u}:{Q+4*u+3}], {c}")
        sv = list(range(S0, S0 + 10))
        A(f"""v_max3_f32 v60, v{sv[0]}, v{sv[1]}, v{sv[2]}
v_max3_f32 v61, v{sv[3]}, v{sv[4]}, v{sv[5]}
v_max3_f32 v60, v60, v{sv[6]}, v{sv[7]}
v_mul_f32 v{SM}, s{sC}, v{SM}
v_mul_f32 v{SM+1}, s{sC}, v{SM+1}
v_max3_f32 v61, v61, v{sv[8]}, v{sv[9]}
v_max_f32 v60, v60, v61
v_mov_b32 v61, v60
v_permlane32_swap_b32 v60, v61
v_max_f32 v60, v60, v61
v_mov_b32 v61, v60
v_permlane16_swap_b32 v60, v61
v_max_f32 v60, v60, v61""")
        for r in sv:
            A(f"v_sub_f32 v{r}, v{r}, v60")
        for r in sv:
            A(f"v_exp_f32 v{r}, v{r}")
        PX, PM = 64, 68
        for n in range(4):
            A(f"v_cvt_pk_bf16_f32 v{PX+n}, v{sv[2*n]}, v{sv[2*n+1]}")
        A(f"""v_cvt_pk_bf16_f32 v{PM}, v{SM}, v{SM+1}
v_mov_b32 v{PM+1}, 0
v_mov_b32 v{PM+2}, 0
v_cvt_pk_bf16_f32 v{PM+3}, v{SM}, v{SM+1}""")
        O, LS = 40, 36
        A(f"v_mfma_f32_16x16x32_bf16 v[{LS}:{LS+3}], v[88:91], v[{PX}:{PX+3}], 0")
        for e in range(4):
            A(f"v_mfma_f32_16x16x32_bf16 v[{O+4*e}:{O+4*e+3}], a[{32+4*e}:{35+4*e}], v[{PX}:{PX+3}], 0")
        A(f"v_mfma_f32_16x16x16_bf16 v[{LS}:{LS+3}], v[88:89], v[{PM}:{PM+1}], v[{LS}:{LS+3}]")
        for e in range(4):
            vm = 56 + 2 * (e >> 1); p = PM + 2 * (e & 1)
            A(f"v_mfma_f32_16x16x16_bf16 v[{O+4*e}:{O+4*e+3}], v[{vm}:{vm+1}], v[{p}:{p+1}], v[{O+4*e}:{O+4*e+3}]")
        A(f"""v_rcp_f32 v60, v{LS}
s_lshl_b32 s{sT0}, s{sSeg}, 1
s_add_u32 s{sT0}, s{sT0}, s{sTT}
s_lshl_b32 s{sT0}, s{sT0}, 17
s_lshl_b32 s{sT1}, s{sH}, 12
s_add_u32 s{sT0}, s{sT0}, s{sT1}
s_lshl_b32 s{sT1}, s{sEH}, 11
s_add_u32 s{sT0}, s{sT0}, s{sT1}
s_add_u32 s{sT0}, s{sT0}, {OB_OFF}""")
        for x in range(2):
            d = 24 + 4 * x
            for n in range(4):
                o = O + 8 * x + 2 * n
                A(f"v_mul_f32 v{o}, v{o}, v60")
                A(f"v_mul_f32 v{o+1}, v{o+1}, v60")
                A(f"v_cvt_pk_bf16_f32 v{d+n}, v{o}, v{o+1}")
            A(f"buffer_store_dwordx4 v[{d}:{d+3}], v{vL16}, {WS}, s{sT0} offen offset:{x*1024} sc1")
        A("s_waitcnt vmcnt(0)")
        if flags:
            signal(sSeg, 256, 72)
        ring_adv()
        A(f"s_cmp_lt_u32 s{sSeg}, 64")
        A(f"s_cbranch_scc1 {L('at')}")
    A("s_endpgm")
```

```python
import sys, os
sys.path.insert(0, "gen")
from asmlib import Asm
from layout import *
import chain, roleb, rolea

NAME = "concat_heads__softmax_full_mha__memory_aug_recurrent_mem_tr__prompt"
HDR = open(f"cdna_kernels/{NAME}.s.ref").read().split("; Override launch")[0]

def kdesc(name):
    return f""".section .rodata,"a"
.p2align 6
.amdhsa_kernel {name}
  .amdhsa_next_free_vgpr 512
  .amdhsa_next_free_sgpr 102
  .amdhsa_accum_offset 256
  .amdhsa_group_segment_fixed_size 0
  .amdhsa_kernarg_size 104
  .amdhsa_user_sgpr_count 2
  .amdhsa_user_sgpr_kernarg_segment_ptr 1
  .amdhsa_system_sgpr_workgroup_id_x 1
.end_amdhsa_kernel
.text
"""
def khead(name):
    return f".globl {name}\n.p2align 8\n.type {name},@function\n{name}:\n"

def dispatch(A, tag, roles):
    A(f"""s_cmp_ge_u32 s2, 256
s_cbranch_scc1 {tag}_exit
s_and_b32 s6, s2, 7
s_lshr_b32 s7, s2, 3
s_cmp_eq_u32 s6, 0
s_cbranch_scc1 {tag}_rc
s_cmp_ge_u32 s6, 4
s_cbranch_scc1 {tag}_ra""")
    if 'b' in roles:
        A(f"""s_sub_u32 s6, s6, 1
s_lshl_b32 s6, s6, 5
s_add_u32 s6, s6, s7
s_mul_i32 s3, s6, 21846
s_lshr_b32 s3, s3, 16
s_mul_i32 s7, s3, 3
s_sub_u32 s5, s6, s7""")
        roles['b'](A)
    A.label(f"{tag}_exit")
    A("s_endpgm")
    A.label(f"{tag}_ra")
    if 'a' in roles:
        A(f"""s_sub_u32 s6, s6, 4
s_lshl_b32 s6, s6, 5
s_add_u32 s3, s6, s7""")
        roles['a'](A)
    A("s_endpgm")
    A.label(f"{tag}_rc")
    if 'c' in roles:
        roles['c'](A)
    A("s_endpgm")

def build_multi():
    ks = []
    def mk(name, roles):
        A = Asm(); dispatch(A, name[:2], roles)
        ks.append((name, A.finalize()))
    mk("k1_kernel", {'b': lambda A: roleb.gen_b(A, True, False, False, 'B1'), 'a': lambda A: (rolea.a_setup(A), rolea.gen_a1(A, False))})
    mk("k2_kernel", {'c': lambda A: chain.gen_chain(A, 0), 'a': lambda A: (rolea.a_setup(A), rolea.gen_a2(A, False))})
    mk("k3_kernel", {'b': lambda A: roleb.gen_b(A, False, True, False, 'B2'), 'a': lambda A: (rolea.a_setup(A), rolea.gen_a3(A, False))})
    mk("k4_kernel", {'a': lambda A: (rolea.a_setup(A), rolea.gen_a4(A, False))})
    out = HDR
    for n, _ in ks:
        out += f"; @launch kernel={n} grid=(256,1,1) block=(256,1,1) lds={LDS_BYTES}\n"
    out += '.amdgcn_target "amdgcn-amd-amdhsa--gfx950"\n.text\n'
    for n, body in ks:
        out += khead(n) + body + kdesc(n)
    return out

if __name__ == "__main__":
    mode = sys.argv[1] if len(sys.argv) > 1 else 'multi'
    dst = sys.argv[2] if len(sys.argv) > 2 else f"cdna_kernels/{NAME}.s"
    txt = build_multi() if mode == 'multi' else build_single()
    open(dst, "w").write(txt)
    print("wrote", dst, len(txt), "bytes", txt.count("\n"), "lines")
```

```python
from asmlib import Asm
from layout import *
import struct, math

NSTEPS = 64
C_SCALE = (128 ** -0.5) * math.log2(math.e)
def fbits(x): return struct.unpack('<I', struct.pack('<f', x))[0]

ORDER = [0, 1, 8, 3, 2, 4, 5, 6, 7]
LDS_CHUNKS = [('o', (3, 1)), ('o', (2, 0)), ('o', (0, 0)), ('k', 8), ('q', 0), ('q', 2), ('k', 1), ('k', 3), ('o', 8)]
def slot_base(s): return L_SLOT8 if s == 8 else L_SLOT0 + s * 16384
REG_CHUNKS = [(m, j) for m in 'qkv' for j in (0, 2, 1, 3, 4, 6, 5, 7, 8) if (m, j) not in LDS_CHUNKS] + \
             [('o', (0, 1)), ('o', (1, 1)), ('o', (1, 0)), ('o', (3, 0)), ('o', (2, 1))]
assert len(REG_CHUNKS) == 27
_blk = {}
def _regblock(n):
    return ('a', 8 * n) if n < 32 else ('v', 72 + 8 * (n - 32))
n = 0
for ch in REG_CHUNKS:
    for tt in range(2):
        _blk[(ch, tt)] = _regblock(n); n += 1
_blk[(('o', 8), 1)] = _regblock(n); n += 1
assert n == 55
def rng(f, b, n): return '%s[%d:%d]' % (f, b, b + n - 1)
def blk_regs(ch, tt):
    f, b = _blk[(ch, tt)]
    return rng(f, b, 8)

vDummy, vL16, vL8, vIdx, vQKw, vOw, vPst, vMst, vW, vW2 = 0, 1, 2, 3, 4, 5, 6, 7, 8, 9
VX = 64
vIdxT = vIdx
sH, sW = 3, 4
SRD_Q, SRD_K, SRD_V, SRD_O, SRD_WS = 8, 12, 16, 20, 24
sDBG, sMEM0 = 28, 30
sStep, sPart, sMw, sMp, sR1, sRole, sFast, sC = 32, 33, 34, 35, 36, 38, 39, 40
sT0, sT1, sT2, sT3 = 41, 42, 43, 44
sSeg = 45
sSingle = 46
sCnt = 47
sEx = 48
sEx2 = 50
sTm = 52
sW15, sW11, sTouch = 76, 77, 78
sKMa, sTa, sVMa, sVXa, sKXa, sP0, sP1, sP2, sRa, sGa, sGb = 60, 61, 62, 63, 64, 65, 66, 67, 68, 69, 70
sOnes, sBig, sRep = 72, 74, 75
POLL_MAX = 20000
import os
EXP = os.environ.get('EXP', '')
WS = f"s[{SRD_WS}:{SRD_WS+3}]"
SRD_PZ = 96
PZ = f"s[{SRD_PZ}:{SRD_PZ+3}]"
sRz, sMz = 71, 79

def srd(A, d, ptr, nbytes):
    A(f"""s_mov_b32 s{d}, s{ptr}
s_and_b32 s{d+1}, s{ptr+1}, 0xffff
s_mov_b32 s{d+2}, {nbytes}
s_mov_b32 s{d+3}, 0x20000""")

sReady, sNeed = 37, 100
def kv_wait(A, lab, vt):
    A(f"""v_lshrrev_b32 v{vt}, 2, v{vL16}
s_mov_b32 s{sCnt}, 0""")
    A.label(lab)
    A(f"""global_load_dword v{vDummy}, v{vt}, s[{sDBG}:{sDBG+1}] sc1
s_add_u32 s{sCnt}, s{sCnt}, 1
v_and_b32 v{vDummy}, 0xff, v{vDummy}
v_cmp_le_u32 vcc, 0x80, v{vDummy}
s_ff0_i32_b64 s{sReady}, vcc
s_min_u32 s{sReady}, s{sReady}, 64
s_cmp_gt_u32 s{sCnt}, {POLL_MAX * 8}
s_cbranch_scc1 {lab}_d
s_cmp_le_u32 s{sReady}, s{sNeed}
s_cbranch_scc1 {lab}""")
    A.label(lab + '_d')

def gen_chain(A, dbg=0, tag='C', flags=False):
    L = lambda x: f'{tag}_{x}'
    NST = 12
    if dbg:
        A(f"s_memtime s[{sTm+6}:{sTm+7}]")
    A(f"""s_lshr_b32 s{sH}, s2, 3
s_load_dwordx4 s[60:63], s[0:1], 32
s_load_dwordx4 s[64:67], s[0:1], 48
s_load_dwordx2 s[68:69], s[0:1], 64
s_load_dwordx4 s[72:75], s[0:1], 88
v_lshrrev_b32 v10, 6, v0
v_and_b32 v0, 63, v0
v_readfirstlane_b32 s{sW}, v10
s_waitcnt lgkmcnt(0)""")
    srd(A, SRD_Q, 62, 576 * 4096 * 2)
    srd(A, SRD_K, 64, 576 * 4096 * 2)
    srd(A, SRD_V, 66, 576 * 4096 * 2)
    srd(A, SRD_O, 68, 576 * 4096 * 2)
    srd(A, SRD_WS, 74, WS_BYTES)
    A(f"""s_mov_b32 s{sDBG}, s72
s_mov_b32 s{sDBG+1}, s73
s_mov_b32 s{sMEM0}, s60
s_mov_b32 s{sMEM0+1}, s61
s_mov_b32 s{sC}, {fbits(C_SCALE):#x}
s_lshl_b32 s{sW15}, s{sW}, 15
s_lshl_b32 s{sW11}, s{sW}, 11
v_lshlrev_b32 v{vL16}, 4, v0
v_lshlrev_b32 v{vL8}, 3, v0""")
    A(f"""s_and_b32 s{sT0}, s{sW}, 1
s_lshl_b32 s{sT0}, s{sT0}, 3
v_lshrrev_b32 v11, 4, v0
v_lshlrev_b32 v10, 1, v11
v_or_b32 v10, s{sT0}, v10
v_and_b32 v12, 15, v0
v_xor_b32 v10, v10, v12
v_lshlrev_b32 v10, 4, v10
s_lshl_b32 s{sT1}, s{sW}, 4
v_add_u32 v11, s{sT1}, v11
v_lshlrev_b32 v12, 13, v11
s_lshl_b32 s{sT1}, s{sH}, 8
v_add3_u32 v58, v12, v10, s{sT1}
v_lshrrev_b32 v12, 6, v10""")
    for p in range(4):
        A(f"""v_xor_b32 v13, {p}, v12
v_lshl_add_u32 v{54+p}, v13, 20, v58""")
    A(f"""v_bfe_u32 v10, v0, 4, 1
v_lshlrev_b32 v10, 1, v10
v_or_b32 v10, s{sT0}, v10
v_and_b32 v12, 15, v0
v_xor_b32 v10, v10, v12
v_xor_b32 v13, 4, v10
s_lshl_b32 s{sT1}, s{sH}, 7
v_add_u32 v11, s{sT1}, v11
v_mul_u32_u24 v11, 1152, v11""")
    for src, dst, dst8 in ((10, 60, 62), (13, 61, 63)):
        A(f"""v_lshrrev_b32 v14, 2, v{src}
v_lshl_add_u32 v14, v14, 7, v11
v_and_b32 v15, 3, v{src}
v_lshl_add_u32 v{dst}, v15, 4, v14
v_and_b32 v14, 7, v{src}
v_lshl_add_u32 v14, v14, 4, v11
v_add_u32 v14, 1024, v14
v_add_u32 v15, {64*1152}, v14
v_cmp_gt_u32 vcc, 8, v{src}
v_cndmask_b32 v{dst8}, v14, v15, vcc""")
    seq = REG_CHUNKS + LDS_CHUNKS
    A(f"s_lshl_b32 s{sT2}, s{sW}, 12")
    def dma(ci):
        ch = seq[ci]; sb = slot_base(ci % 9)
        for ii in range(4):
            if ch[0] != 'o':
                s = {'q': SRD_Q, 'k': SRD_K, 'v': SRD_V}[ch[0]]
                if ch[1] == 8:
                    so = (64 * 8 + 4 * ii) * 8192; vo = 58
                else:
                    so = (64 * (ch[1] & 1) + 4 * ii) * 8192; vo = 54 + (ch[1] >> 1)
            elif ch[1] == 8:
                s = SRD_O; so = 4 * ii * 1152; vo = 62 + (ii & 1)
            else:
                r, jj = ch[1]
                s = SRD_O; so = (64 * jj + 4 * ii) * 1152 + (r & 1) * 64 + (r >> 1) * 512; vo = 60 + (ii & 1)
            A(f"""s_add_u32 m0, s{sT2}, {sb + ii * 1024}
s_mov_b32 s{sT0}, {so}
buffer_load_dwordx4 v{vo}, s[{s}:{s+3}], s{sT0} offen lds""")
    for ci in range(9):
        dma(ci)
    A(f"""v_and_b32 v10, 2, v0
v_cmp_eq_u32 vcc, 0, v10
v_mov_b32 v11, 0xeeee
v_mov_b32 v12, 0x4444
v_cndmask_b32 v{vIdx}, v11, v12, vcc""")
    A(f"""v_and_b32 v10, 15, v0
v_lshrrev_b32 v11, 4, v0
v_lshlrev_b32 v10, 5, v10
v_lshl_add_u32 v10, v11, 3, v10
s_lshl_b32 s{sT0}, s{sW}, 10
s_add_u32 s{sT0}, s{sT0}, {L_QK}
v_add_u32 v{vQKw}, s{sT0}, v10""")
    A(f"""v_and_b32 v10, 13, v0
v_bfe_u32 v11, v0, 4, 1
v_lshl_add_u32 v10, v11, 1, v10
v_lshlrev_b32 v10, 4, v10
v_lshrrev_b32 v11, 5, v0
v_lshl_add_u32 v10, v11, 8, v10
s_lshl_b32 s{sT0}, s{sW}, 9
s_add_u32 s{sT0}, s{sT0}, {L_O}
v_add_u32 v{vOw}, s{sT0}, v10""")
    A(f"""v_lshrrev_b32 v10, 3, v0
v_lshlrev_b32 v10, 12, v10
v_and_b32 v11, 7, v0
v_lshl_add_u32 v10, v11, 4, v10
s_lshl_b32 s{sT0}, s{sH}, 7
v_add_u32 v{vPst}, s{sT0}, v10
s_lshl_b32 s{sT0}, s{sW}, 2
s_add_u32 s{sSingle}, s{sT0}, {8 * 32768}""")
    A(f"""s_lshl_b32 s{sT0}, s{sH}, 1
s_add_u32 s{sT0}, s{sT0}, s{sW}
s_add_u32 s{sT1}, s{sH}, 64
s_cmp_lt_u32 s{sW}, 2
s_cselect_b32 s{sT0}, s{sT0}, s{sT1}
s_min_u32 s{sT0}, s{sT0}, 71
s_lshl_b32 s{sR1}, s{sT0}, 12
s_mov_b32 s{sRole}, 0
s_cmp_lt_u32 s{sH}, 8
s_cselect_b32 s{sT1}, 0, 1
s_cmp_eq_u32 s{sW}, 2
s_cselect_b32 s{sRole}, s{sT1}, s{sRole}
s_cmp_eq_u32 s{sW}, 3
s_cselect_b32 s{sRole}, 2, s{sRole}
s_and_b32 s{sT1}, s{sW}, 1
s_mul_i32 s{sTouch}, s{sT1}, {VX_OFF}
s_lshr_b32 s{sT1}, s{sW}, 1
s_lshl_b32 s{sT1}, s{sT1}, 12
s_add_u32 s{sTouch}, s{sTouch}, s{sT1}
s_mov_b32 s{SRD_PZ}, s{SRD_WS}
s_mov_b32 s{SRD_PZ+1}, s{SRD_WS+1}
s_cmp_eq_u32 s{sRole}, 0
s_cselect_b32 s{SRD_PZ+2}, {WS_BYTES}, 0
s_mov_b32 s{SRD_PZ+3}, 0x20000
s_mov_b32 s{sOnes}, 0x3f803f80
s_mov_b32 s{sOnes+1}, 0x3f803f80
s_mov_b32 s{sBig}, {fbits(2.0**60):#x}""")
    A(f"""s_lshr_b32 s{sT1}, s{sT0}, 3
s_lshl_b32 s{sT1}, s{sT1}, 10
s_and_b32 s{sT3}, s{sT0}, 1
s_lshl_b32 s{sT3}, s{sT3}, 9
s_add_u32 s{sT1}, s{sT1}, s{sT3}
s_bfe_u32 s{sT3}, s{sT0}, 0x20001
s_lshl_b32 s{sT3}, s{sT3}, 6
s_add_u32 s{sT1}, s{sT1}, s{sT3}
v_bfe_u32 v10, v0, 2, 1
v_lshlrev_b32 v10, 8, v10
v_bfe_u32 v11, v0, 1, 1
v_lshl_add_u32 v10, v11, 5, v10
v_bfe_u32 v11, v0, 4, 1
v_lshl_add_u32 v10, v11, 4, v10
v_and_b32 v11, 1, v0
v_lshl_add_u32 v10, v11, 3, v10
v_lshrrev_b32 v11, 5, v0
v_bfe_u32 v12, v0, 3, 1
v_lshl_add_u32 v11, v11, 1, v12
v_mul_u32_u24 v11, {MREP}, v11
v_add3_u32 v{vMst}, v10, v11, s{sT1}
s_add_u32 s{sT1}, s{sH}, s{sW}
s_and_b32 s{sT1}, s{sT1}, 3
s_mul_i32 s{sRep}, s{sT1}, {MREP}""")
    A(f"""s_add_u32 s{sT0}, s{sT2}, {L_SLOT0}
v_add_u32 v{vW}, s{sT0}, v{vL16}
v_add_u32 v{vW2}, 65536, v{vW}
s_mov_b32 s{sEx}, 0xcccccccc
s_mov_b32 s{sEx+1}, 0xcccccccc
s_mov_b32 s{sEx2}, 0x00ff00ff
s_mov_b32 s{sEx2+1}, 0""")
    A(f"""v_lshrrev_b32 v10, 5, v0
v_bfe_u32 v11, v0, 4, 1
v_bfe_u32 v12, v0, 3, 1
v_bfe_u32 v13, v0, 2, 1
v_and_b32 v14, 3, v0
v_lshlrev_b32 v14, 3, v14
v_lshl_add_u32 v15, v13, 12, v14
v_lshl_add_u32 v15, v10, 10, v15
v_lshl_add_u32 v15, v12, 9, v15
v_lshl_add_u32 v15, v11, 8, v15
v_lshl_add_u32 v16, v12, 1, v11
v_lshl_add_u32 v16, v13, 2, v16
s_lshl_b32 s{sT0}, s{sW}, 1
v_xor_b32 v17, s{sT0}, v16
v_lshl_add_u32 v64, v17, 5, v15
v_xor_b32 v65, 32, v64
v_lshl_add_u32 v15, v11, 12, v14
v_lshl_add_u32 v15, v10, 11, v15
v_lshl_add_u32 v15, v12, 10, v15
v_lshl_add_u32 v15, v13, 8, v15
v_lshl_add_u32 v16, v12, 1, v13
v_lshl_add_u32 v16, v11, 2, v16
v_xor_b32 v17, s{sT0}, v16
v_lshl_add_u32 v66, v17, 5, v15
v_xor_b32 v67, 32, v66
v_xor_b32 v17, s{sW}, v16
v_lshl_add_u32 v68, v17, 5, v15
v_xor_b32 v69, 128, v68""")
    for R in range(12):
        A(f"s_waitcnt vmcnt({24 if R <= 9 else (12 if R == 10 else 0)})")
        A("s_barrier")
        for k in range(3):
            ci = 3 * R + k; ch = seq[ci]; sb = slot_base(ci % 9)
            for tt in range(2):
                if ch[0] != 'o':
                    av = 64 + tt; st5, st2 = 2048, 8192
                elif ch[1] == 8:
                    av = 68 + (1 - tt); st5, st2 = 8192, 512
                else:
                    av = 66 + tt; st5, st2 = 8192, 512
                A(f"v_add_u32 v{70 + tt}, {sb}, v{av}")
                if (ch, tt) in _blk:
                    f, b = _blk[(ch, tt)]
                else:
                    f, b = 'v', 10 + 16 * k + 8 * tt
                for k5 in range(2):
                    for k2 in range(2):
                        A(f"ds_read_b64_tr_b16 {rng(f, b + 4*k5 + 2*k2, 2)}, v{70+tt} offset:{k5*st5 + k2*st2}")
        A("s_waitcnt lgkmcnt(0)")
        A("s_barrier")
        if R + 3 < 12:
            for k in range(3):
                dma(3 * (R + 3) + k)
        if R >= 9:
            for k in range(3):
                ci = 3 * R + k; ch = seq[ci]; sl = ci % 9
                for tt in range(2):
                    if (ch, tt) in _blk:
                        continue
                    b = 10 + 16 * k + 8 * tt
                    if sl == 8:
                        A(f"""s_add_u32 s{sT0}, s{sW11}, {L_SLOT8 + 8192}
v_add_u32 v70, s{sT0}, v{vL16}""")
                        off = 0
                    else:
                        A(f"v_add_u32 v70, {sl * 16384}, v{vW}")
                        off = tt * 2048
                    A(f"ds_write_b128 v70, v[{b}:{b+3}] offset:{off}")
                    A(f"ds_write_b128 v70, v[{b+4}:{b+7}] offset:{off + 1024}")
    A(f"""s_cmp_lg_u32 s{sRole}, 0
s_cbranch_scc1 {L('nopoison')}
v_mov_b32 v12, -1
v_mov_b32 v13, -1
v_mov_b32 v14, -1
v_mov_b32 v15, -1""")
    for slot in range(2):
        A(f"s_add_u32 s{sT0}, s{sR1}, {PART_OFF + slot * PART_SLOT}")
        for i in range(4):
            A(f"buffer_store_dwordx4 v[12:15], v{vL16}, {WS}, s{sT0} offen offset:{i*1024} sc1")
    for slot in range(3):
        A(f"s_mov_b32 s{sT0}, {MIMG_OFF + slot * MIMG_SLOT}")
        A(f"buffer_store_dwordx2 v[12:13], v{vMst}, {WS}, s{sT0} offen sc1")
    A.label(L('nopoison'))
    A(f"""v_bfe_u32 v10, v0, 2, 2
v_and_b32 v11, 1, v0
v_lshl_add_u32 v10, v10, 1, v11
v_mul_u32_u24 v10, 1152, v10
v_lshrrev_b32 v11, 4, v0
v_lshl_add_u32 v10, v11, 3, v10
v_bfe_u32 v11, v0, 1, 1
v_lshl_add_u32 v10, v11, 2, v10
s_lshl_b32 s{sT0}, s{sW}, 7
v_add_u32 v11, s{sT0}, v10
s_lshl_b32 s{sT0}, s{sW}, 10
v_add_u32 v12, s{sT0}, v{vL16}
s_mov_b32 s{sT0}, 0x05040100
s_mov_b32 s{sT1}, 0x07060302""")
    for n, (av, go, lv, lo) in enumerate(((11, 0, 12, 0), (11, 512, 12, 4096), (10, 1024, vL16, 8192))):
        for t in range(4):
            A(f"global_load_dword v{14+t}, v{av}, s[{sMEM0}:{sMEM0+1}] offset:{go + 32*t}")
        A(f"""v_perm_b32 v20, v15, v14, s{sT0}
v_perm_b32 v21, v17, v16, s{sT0}
v_perm_b32 v22, v15, v14, s{sT1}
v_perm_b32 v23, v17, v16, s{sT1}
ds_write_b128 v{lv}, v[20:23] offset:{L_M + lo}""")
    A(f"""v_and_b32 v10, 4, v0
v_cmp_eq_u32 vcc, 0, v10
v_mov_b32 v11, 0x3f800000
v_mov_b32 v12, 0x3f80
v_cndmask_b32 v11, v11, v12, vcc
v_and_b32 v10, 3, v0""")
    for d in range(4):
        A(f"""v_cmp_eq_u32 vcc, {d}, v10
v_cndmask_b32 v{20+d}, 0, v11, vcc""")
    A(f"ds_write_b128 v{vL16}, v[20:23] offset:{L_SEL}")
    A("s_waitcnt lgkmcnt(0) vmcnt(0)")
    A("s_barrier")
    A(f"""s_getreg_b32 s{sT0}, hwreg(HW_REG_XCC_ID)
s_and_b32 s{sT0}, s{sT0}, 15
s_lshl_b32 s{sT0}, 0x10000, s{sT0}
v_mov_b32 v10, 0
v_mov_b32 v11, s{sT0}
v_mov_b32 v12, 0x10000
s_cmp_lg_u32 s{sW}, 0
s_cbranch_scc1 {L('rdv_wait')}
s_mov_b64 exec, 1
global_atomic_or v10, v11, s[{sDBG}:{sDBG+1}] offset:4
s_waitcnt vmcnt(0)
global_atomic_add v10, v12, s[{sDBG}:{sDBG+1}]
s_mov_b64 exec, -1""")
    A.label(L('rdv_wait'))
    if flags:
        A(f"s_mov_b32 s{sNeed}, 0")
        kv_wait(A, L('kv0'), 14)
    A(f"""s_lshl_b32 s{sSeg}, s{sH}, 13
s_add_u32 s{sT0}, s{sSeg}, s{sW11}
s_add_u32 m0, s{sW11}, {L_KX}
s_add_u32 s{sT2}, s{sT0}, {VX_OFF}
buffer_load_dwordx4 v{vL16}, {WS}, s{sT0} offen sc1 lds
buffer_load_dwordx4 v{vL16}, {WS}, s{sT0} offen offset:1024 sc1 lds""")
    A(f"""buffer_load_dwordx4 v[{VX}:{VX+3}], v{vL16}, {WS}, s{sT2} offen sc1
buffer_load_dwordx4 v[{VX+4}:{VX+7}], v{vL16}, {WS}, s{sT2} offen offset:1024 sc1""", manual=True)
    A(f"s_mov_b32 s{sCnt}, 0")
    A.label(L('rdv_loop'))
    A(f"""global_load_dwordx2 v[12:13], v10, s[{sDBG}:{sDBG+1}] sc1
s_add_u32 s{sCnt}, s{sCnt}, 1
s_waitcnt vmcnt(0)
v_readfirstlane_b32 s{sT0}, v12
v_readfirstlane_b32 s{sT1}, v13
s_cmp_gt_u32 s{sCnt}, {POLL_MAX}
s_cbranch_scc1 {L('rdv_done')}
s_lshr_b32 s{sT0}, s{sT0}, 16
s_cmp_lt_u32 s{sT0}, 32
s_cbranch_scc1 {L('rdv_loop')}""")
    A.label(L('rdv_done'))
    A(f"""s_lshr_b32 s{sT1}, s{sT1}, 16
s_bcnt1_i32_b32 s{sT1}, s{sT1}
s_cmp_eq_u32 s{sT1}, 1
s_cselect_b32 s{sFast}, 1, 0
s_mov_b32 s{sStep}, 0
s_mov_b32 s{sPart}, {PART_OFF}
s_mov_b32 s{sMp}, {MIMG_OFF}
s_mov_b32 s{sMw}, {MIMG_OFF + MIMG_SLOT}""")
    if dbg:
        A(f"s_memtime s[{sTm}:{sTm+1}]")
        A("s_waitcnt lgkmcnt(0)")
        A(f"s_mov_b32 s{sTm+5}, s{sTm}")
        A("s_memrealtime s[92:93]")
        A("s_waitcnt lgkmcnt(0)")
        for n in range(NST): A(f"s_mov_b32 s{80+n}, 0")
    A(f"s_cmp_eq_u32 s{sFast}, 0")
    A(f"s_cbranch_scc1 {L('S_pre')}")
    gen_loop(A, dbg, tag + '_F', '', L('end'), flags)
    gen_loop(A, dbg, tag + '_S', ' sc1', L('end'), flags)
    A.label(L('end'))
    if dbg:
        A("s_memrealtime s[94:95]")
        A(f"s_memtime s[{sTm+2}:{sTm+3}]")
        A("s_waitcnt lgkmcnt(0)")
        pass
        for n in range(64):
            A(f"v_smfmac_f32_16x16x64_bf16 v[{10+4*(n%4)}:{13+4*(n%4)}], v[30:33], a[{8*(n%32)}:{8*(n%32)+7}], v{vIdx}")
        A("s_nop 7")
        A(f"s_memtime s[{sTm+4}:{sTm+5}]")
        A("s_waitcnt lgkmcnt(0)")
        pass
        A(f"""s_memtime s[{sTm+2}:{sTm+3}]
s_waitcnt lgkmcnt(0)
s_sub_u32 s{sT0}, s{sTm+2}, s{sTm}
v_mov_b32 v10, s{sT0}
v_mov_b32 v11, s{sFast}
s_lshl_b32 s{sT1}, s{sH}, 8
s_lshl_b32 s{sT2}, s{sW}, 6
s_add_u32 s{sT1}, s{sT1}, s{sT2}
s_add_u32 s{sT1}, s{sT1}, {DBG_OFF + 0x200000}
v_mov_b32 v12, 0
s_sub_u32 s{sT0}, s{sTm}, s{sTm+6}
v_mov_b32 v13, s{sT0}
s_mov_b64 exec, 1
buffer_store_dwordx2 v[10:11], v12, {WS}, s{sT1} offen
buffer_store_dword v13, v12, {WS}, s{sT1} offen offset:8""")
        for n in range(NST):
            A(f"v_mov_b32 v13, s{80+n}")
            A(f"buffer_store_dword v13, v12, {WS}, s{sT1} offen offset:{16+4*n}")
    A("s_endpgm")


def gen_loop(A, dbg, tag, SC, endlab, flags):
    L = lambda x: f'{tag}_{x}'
    def stamp(n):
        if dbg not in (2, 3): return
        A(f"""s_memtime s[{sTm+2}:{sTm+3}]
s_waitcnt lgkmcnt(0)
s_sub_u32 s{sTm+4}, s{sTm+2}, s{sTm+5}
s_add_u32 s{80+n}, s{80+n}, s{sTm+4}
s_mov_b32 s{sTm+5}, s{sTm+2}""")
    aQ, aK, aV = 10, 18, 26
    R0, R1, R2 = 34, 38, 58
    SB = 42
    def lds_blk(ch, tt, dst, manual=False):
        sl = LDS_CHUNKS.index(ch)
        if sl == 8:
            base, off = 62, 0
        elif sl < 4:
            base, off = vW, sl * 16384 + tt * 2048
        else:
            base, off = vW2, (sl - 4) * 16384 + tt * 2048
        A(f"ds_read_b128 v[{dst}:{dst+3}], v{base} offset:{off}", manual)
        A(f"ds_read_b128 v[{dst+4}:{dst+7}], v{base} offset:{off+1024}", manual)
    def zero(b, n):
        for r in range(b, b + n, 2):
            A(f"v_mov_b64 v[{r}:{r+1}], 0")
    def smf(acc, a, b):
        A(f"v_smfmac_f32_16x16x64_bf16 v[{acc}:{acc+3}], v[{a}:{a+3}], {b}, v{vIdx}")
    cur_p = [None]
    def xr(p):
        A(f"v_xor_b32 v62, {p * 2048}, v63")
        cur_p[0] = p
    def rdA(slot, buf, manual=False):
        if slot == 8:
            A(f"ds_read_b128 v[{buf}:{buf+3}], v{vL16} offset:{L_M + 8192}", manual)
            return
        p = slot >> 1
        if p == 0:
            base = 63
        else:
            if cur_p[0] != p:
                xr(p)
            base = 62
        A(f"ds_read_b128 v[{buf}:{buf+3}], v{base} offset:{L_M + (slot & 1) * 1024}", manual)
    def ps(a, dst, part):
        if part == 0: A(f"v_add_f32 v{a}, v{a}, v{a+2}")
        elif part == 1: A(f"v_add_f32 v{a+1}, v{a+1}, v{a+3}")
        else: A(f"v_cvt_pk_bf16_f32 v{dst}, v{a}, v{a+1}")
    def psum(a, dst):
        for part in range(3): ps(a, dst, part)
    def rdX(u, x):
        A(f"ds_read_b64_tr_b16 v[{x}:{x+1}], v{vL8} offset:{L_QK + u*1024}")
        A(f"ds_read_b64_tr_b16 v[{x+2}:{x+3}], v{vL8} offset:{L_QK + u*1024 + 512}")
    def pre_a():
        lds_blk(('q', 0), 0, SB, True); lds_blk(('q', 0), 1, SB + 8, True)
        zero(aQ, 12)
        A(f"""s_lshr_b32 s{sKMa}, s{sSeg}, 1
s_add_u32 s{sKMa}, s{sKMa}, {KM_OFF}
s_lshr_b32 s{sVMa}, s{sSeg}, 2
s_lshr_b32 s{sT1}, s{sW11}, 2
s_add_u32 s{sVMa}, s{sVMa}, s{sT1}
s_add_u32 s{sVMa}, s{sVMa}, {VM_OFF}
s_add_u32 s{sSeg}, s{sSeg}, {0 if 'a' in EXP else 32 * 8192}
s_min_u32 s{sT0}, s{sSeg}, {VX_OFF - 8192}
s_add_u32 s{sTa}, s{sT0}, s{sTouch}
s_add_u32 s{sKXa}, s{sT0}, s{sW11}
s_add_u32 s{sVXa}, s{sKXa}, {VX_OFF}
s_add_u32 s{sP0}, s{sW15}, s{sPart}
s_add_u32 s{sP1}, s{sP0}, {4 * 32768}
s_add_u32 s{sP2}, s{sSingle}, s{sPart}
s_add_u32 s{sNeed}, s{sStep}, 1
s_min_u32 s{sNeed}, s{sNeed}, 63""")
    def pre_b():
        A(f"""s_lshr_b32 s{sT1}, s{sW11}, 1
v_add_u32 v62, s{sT1}, v{vL8}
s_add_u32 s{sKMa}, s{sKMa}, s{sT1}""")
        A(f"""ds_read_b64_tr_b16 v[30:31], v62 offset:{L_QK}
ds_read_b64_tr_b16 v[32:33], v62 offset:{L_QK + 512}""", manual=True)
        zero(22, 4)
        A(f"""v_mov_b64 v[26:27], -1
v_mov_b64 v[28:29], -1
v_add_u32 v63, s{sW11}, v{vL16}
s_mov_b32 s{sRz}, s{sRa}
s_mov_b32 s{sMz}, s{sMp}
s_add_u32 s{sRa}, s{sR1}, s{sPart}""")
    A.label(L('pre'))
    A(f"s_add_u32 m0, s{sW11}, {L_KX}")
    A(f"s_add_u32 s{sRa}, s{sR1}, {PART_OFF + PART_SLOT}")
    pre_a(); pre_b()
    rdA(0, R0, True); rdA(1, R1, True); rdA(8, R2, True)
    A("s_waitcnt vmcnt(0) lgkmcnt(0)")
    A(f"s_branch {L('top')}")
    A.label(L('gather'))
    def gpoll():
        A(f"""buffer_load_dwordx4 v[{R0}:{R0+3}], v{vL16}, {WS}, s{sGa} offen sc1
buffer_load_dwordx4 v[{R1}:{R1+3}], v{vL16}, {WS}, s{sGa} offen offset:1024 sc1
buffer_load_dwordx4 v[{R2}:{R2+3}], v{vL16}, {WS}, s{sGb} offen sc1""", manual=True)
    pre_b()
    A(f"""s_add_u32 s{sGb}, s{sMw}, s{sRep}
s_add_u32 s{sGa}, s{sGb}, s{sW11}
s_add_u32 s{sGb}, s{sGb}, 8192
s_mov_b32 s{sCnt}, 0
s_mov_b32 s{sMp}, s{sMw}
s_add_u32 s{sMw}, s{sMw}, {MIMG_SLOT}
s_cmp_eq_u32 s{sMw}, {MIMG_OFF + 3 * MIMG_SLOT}
s_cselect_b32 s{sMw}, {MIMG_OFF}, s{sMw}""")
    if 'x' in EXP: A("s_waitcnt vmcnt(0)")
    A("s_barrier")
    stamp(5)
    if 'c' in EXP:
        rdA(0, R0, True); rdA(1, R1, True); rdA(8, R2, True)
        A("s_waitcnt lgkmcnt(0) vmcnt(0)")
        A(f"s_branch {L('top')}")
    A("s_waitcnt lgkmcnt(0)")
    A.label(L('g_poll'))
    NU = 3
    for n in range(NU):
        gpoll()
        A(f"""s_waitcnt vmcnt(2)
v_max_u32 v{vDummy}, v{R0}, v{R0+2}
v_cmp_eq_u32 vcc, -1, v{vDummy}""")
        if dbg in (2, 3): A(f"s_add_u32 s91, s91, 1")
        A(f"s_cbranch_vccz {L('top')} ;exit")
    A(f"""s_add_u32 s{sCnt}, s{sCnt}, 1
s_cmp_lt_u32 s{sCnt}, {POLL_MAX}
s_cbranch_scc1 {L('g_poll')} ;nofence""")
    A.label(L('top'))
    stamp(6)
    if 'h' in EXP:
        A(f"""s_waitcnt vmcnt(0)
v_mov_b64 v[58:59], 0
v_mov_b64 v[60:61], 0
s_cmp_eq_u32 s{sStep}, {NSTEPS - 1}
s_cbranch_scc1 {L('last')} ;exit
s_barrier
buffer_store_dwordx4 v[58:61], v{vPst}, {WS}, s{sP0} offen{SC}
buffer_store_dwordx4 v[58:61], v{vPst}, {WS}, s{sP1} offen{SC}
buffer_store_dword v58, v{vPst}, {WS}, s{sP2} offen{SC}
s_branch {L('wend')}""")
    groups = [('q', 0), ('k', 0), ('q', 1), ('k', 1), ('q', 8), ('k', 8), ('q', 3), ('v', 8), ('k', 2), ('k', 3),
              ('q', 4), ('k', 4), ('q', 2), ('q', 5), ('q', 6), ('q', 7), ('k', 5), ('k', 6), ('k', 7)]
    abuf = {0: R0, 1: R1, 8: R2, 3: R0, 2: R1, 4: R2, 5: R0, 6: R2, 7: R1}
    nxt = {('q', 0): ('k', 1), ('k', 1): ('k', 8), ('k', 8): ('k', 3), ('k', 3): ('q', 2)}
    KB = [SB, SB + 8]
    def rdK(u):
        k = KB[u & 1]
        A(f"ds_read_b128 v[{k}:{k+3}], v{vL16} offset:{L_KX + u*1024}")
        A(f"ds_read_b128 v[{k+4}:{k+7}], v{vL16} offset:{L_KX + 4096 + u*1024}")
    def barrier0():
        A("s_waitcnt lgkmcnt(4)")
        A("s_barrier")
        rdA(3, R0)
    pz = lambda i: A(f"buffer_store_dwordx4 v[26:29], v{vL16}, {PZ}, s{sRz} offen offset:{i*1024}{SC}")
    def chk(buf, lab):
        A(f"""v_max_u32 v{vDummy}, v{buf}, v{buf+2}
v_cmp_eq_u32 vcc, -1, v{vDummy}
s_cbranch_vccnz {L(lab)} ;exit""")
        A.label(L(lab + 'r') + ' ;soft')
    def kvchk():
        if flags:
            A(f"""s_cmp_le_u32 s{sReady}, s{sNeed}
s_cbranch_scc1 {L('kvw')} ;exit""")
            A.label(L('kvr') + ' ;soft')
        A(f"v_lshlrev_b32 v{vDummy}, 2, v{vL16}")
    extra = {
        2: lambda: A(f"ds_write_b128 v63, v[{R0}:{R0+3}] offset:{L_M}"),
        3: lambda: (A("s_waitcnt vmcnt(1)"), chk(R1, 'late1'), A(f"ds_write_b128 v63, v[{R1}:{R1+3}] offset:{L_M + 1024}")),
        4: lambda: (A("s_waitcnt vmcnt(0)"), chk(R2, 'late2')),
        5: lambda: xr(1),
        8: barrier0,
        9: lambda: (rdA(2, R1), pz(0), pz(1), xr(2)),
        10: lambda: (pz(2), pz(3)),
        11: lambda: (A(f"buffer_store_dwordx2 v[26:27], v{vMst}, {PZ}, s{sMz} offen{SC}"),
                     A(f"buffer_store_dwordx4 v[30:33], v{vL16}, {WS}, s{sKMa} offen{'' if 'b' in EXP else ' sc1'}")),
        12: lambda: zero(26, 4),
        16: kvchk,
        17: lambda: A(f"buffer_load_dword v{vDummy}, v{vDummy}, {WS}, s{sTa} offen sc1", manual=True),
        13: lambda: zero(30, 4),
        15: lambda: rdA(4, R2),
        20: lambda: (rdA(5, R0), xr(3)),
        23: lambda: rdA(6, R2),
        25: lambda: rdA(7, R1),
        26: lambda: rdK(0),
        27: lambda: rdK(1),
        32: lambda: ps(aQ, aQ + 3, 0),
        33: lambda: ps(aQ, aQ + 3, 1),
        34: lambda: ps(aQ + 4, aQ + 7, 0),
        35: lambda: ps(aQ + 4, aQ + 7, 1),
        36: lambda: ps(aQ, aQ + 3, 2),
        37: lambda: ps(aQ + 4, aQ + 7, 2),
    }
    g = 0
    for ch in groups:
        acc = {'q': aQ, 'k': aK, 'v': aV}[ch[0]]
        for tt in range(2):
            res = (ch, tt) in _blk
            smf(acc + 4 * tt, abuf[ch[1]], blk_regs(ch, tt) if res else rng('v', SB + 8 * tt, 8))
            if not res and ch in nxt:
                lds_blk(nxt[ch], tt, SB + 8 * tt)
            if g in extra:
                extra[g]()
            if dbg == 1 and g == 4:
                A(f"""s_mul_i32 s{sT0}, s{sStep}, 16384
s_add_u32 s{sT0}, s{sT0}, {DBG_OFF}
s_cmp_eq_u32 s{sH}, 0
s_cselect_b32 s{sT0}, s{sT0}, {DBG_OFF + 0x100000}
s_add_u32 s{sT1}, s{sT0}, 8192
buffer_store_dwordx4 v[{R0}:{R0+3}], v63, {WS}, s{sT0} offen
buffer_store_dwordx4 v[{R1}:{R1+3}], v63, {WS}, s{sT0} offen offset:1024
buffer_store_dwordx4 v[{R2}:{R2+3}], v{vL16}, {WS}, s{sT1} offen""")
            g += 1
    def vs(slot, buf, tts=(0, 1)):
        for tt in tts:
            smf(aV + 4 * tt, buf, blk_regs(('v', slot), tt))
    vs(6, R2, (0,))
    psum(aK, aQ + 2)
    A(f"ds_write_b64 v{vQKw}, v[{aQ+2}:{aQ+3}]")
    psum(aK + 4, aQ + 6)
    A(f"ds_write_b64 v{vQKw}, v[{aQ+6}:{aQ+7}] offset:512")
    vs(6, R2, (1,))
    vs(5, R0); rdA(0, R0)
    vs(7, R1); rdA(1, R1)
    A("s_waitcnt lgkmcnt(2)")
    A("s_barrier")
    stamp(0)
    S0, S1, SM = 10, 14, 18
    XB = [22, R2]
    def sc(u, ex=()):
        x, k = XB[u & 1], KB[u & 1]
        c = lambda r: '0' if u == 0 else f'v[{r}:{r+3}]'
        ops = [f"v_mfma_f32_16x16x32_bf16 v[{SM}:{SM+3}], v[{x}:{x+3}], v[{x}:{x+3}], {c(SM)}",
               f"v_mfma_f32_16x16x32_bf16 v[{S0}:{S0+3}], v[{k}:{k+3}], v[{x}:{x+3}], {c(S0)}",
               f"v_mfma_f32_16x16x32_bf16 v[{S1}:{S1+3}], v[{k+4}:{k+7}], v[{x}:{x+3}], {c(S1)}"]
        for n, o in enumerate(ops):
            A(o)
            if n < len(ex) and ex[n]: ex[n]()
    rdX(0, XB[0]); rdX(1, XB[1])
    vs(0, R0, (0,)); xr(1)
    vs(0, R0, (1,)); rdA(3, R0)
    vs(1, R1); rdA(2, R1)
    sc(0, (lambda: xr(2), None, lambda: (rdX(2, XB[0]), rdK(2))))
    sc(1, (None, None, lambda: (rdX(3, XB[1]), rdK(3))))
    vs(3, R0); rdA(4, R0)
    sc(2, (None, None, lambda: lds_blk(('o', (0, 0)), 0, 42)))
    sc(3, (None, None, lambda: lds_blk(('o', (0, 0)), 1, 50)))
    stamp(1)
    sv = [S0, S0+1, S0+2, S0+3, S1, S1+1, S1+2, S1+3, SM, SM+1]
    PX, VMr = 58, 28
    O0, O1, LSUM, ONE = 34, 38, 30, 22
    A(f"v_mul_f32 v{SM}, s{sC}, v{SM}")
    vs(2, R1, (0,))
    A(f"v_mul_f32 v{SM+1}, s{sC}, v{SM+1}")
    vs(2, R1, (1,))
    A(f"v_exp_f32 v62, v{SM}")
    vs(4, R0, (0,))
    A(f"v_exp_f32 v63, v{SM+1}")
    vs(4, R0, (1,))
    A(f"""v_exp_f32 v22, v{sv[0]}
v_exp_f32 v23, v{sv[1]}
v_cvt_pk_bf16_f32 v20, v62, v63
v_exp_f32 v24, v{sv[2]}
v_exp_f32 v25, v{sv[3]}
v_cvt_pk_bf16_f32 v{PX}, v22, v23""")
    psum(aV, VMr)
    psum(aV + 4, VMr + 1)
    A(f"""v_mov_b32 v21, 0
v_cvt_pk_bf16_f32 v63, v62, v63
v_mov_b32 v62, 0
v_exp_f32 v22, v{sv[4]}
v_mfma_f32_16x16x16_bf16 v[{O0}:{O0+3}], v[{VMr}:{VMr+1}], v[20:21], 0
v_exp_f32 v23, v{sv[5]}
v_cvt_pk_bf16_f32 v{PX+1}, v24, v25
v_mfma_f32_16x16x16_bf16 v[{O1}:{O1+3}], v[{VMr}:{VMr+1}], v[62:63], 0
buffer_store_dwordx2 v[{VMr}:{VMr+1}], v{vL8}, {WS}, s{sVMa} offen{'' if 'b' in EXP else ' sc1'}
s_cmp_eq_u32 s{sStep}, {NSTEPS - 1}
v_exp_f32 v24, v{sv[6]}
s_cbranch_scc1 {L('last')} ;exit
v_exp_f32 v25, v{sv[7]}
v_cvt_pk_bf16_f32 v{PX+2}, v22, v23
v_mov_b64 v[{ONE}:{ONE+1}], s[{sOnes}:{sOnes+1}]
v_cvt_pk_bf16_f32 v{PX+3}, v24, v25
v_mov_b64 v[{ONE+2}:{ONE+3}], s[{sOnes}:{sOnes+1}]
v_mfma_f32_16x16x16_bf16 v[{LSUM}:{LSUM+3}], v[{ONE}:{ONE+1}], v[20:21], 0
v_mfma_f32_16x16x32_bf16 v[{O0}:{O0+3}], v[{VX}:{VX+3}], v[{PX}:{PX+3}], v[{O0}:{O0+3}]
s_add_u32 s{sT0}, s{sW11}, {L_SLOT8 + 8192}
v_mfma_f32_16x16x32_bf16 v[{LSUM}:{LSUM+3}], v[{ONE}:{ONE+3}], v[{PX}:{PX+3}], v[{LSUM}:{LSUM+3}]
v_add_u32 v62, s{sT0}, v{vL16}
v_mfma_f32_16x16x32_bf16 v[{O1}:{O1+3}], v[{VX+4}:{VX+7}], v[{PX}:{PX+3}], v[{O1}:{O1+3}]
v_rcp_f32 v31, v30""")
    def norm():
        for n, o in enumerate((O0, O0 + 2, O1, O1 + 2)):
            A(f"v_mul_f32 v{o}, v{o}, v31")
            A(f"v_mul_f32 v{o+1}, v{o+1}, v31")
            A(f"v_cvt_pk_bf16_f32 v{PX + n}, v{o}, v{o+1}")
    norm()
    A(f"""s_mov_b64 exec, s[{sEx}:{sEx+1}]
ds_write_b128 v{vOw}, v[{PX}:{PX+3}]
v_max_f32 v32, v30, v31
v_cmp_nlt_f32 vcc, v32, s{sBig}
s_mov_b64 exec, -1
s_cbranch_vccnz {L('slow')} ;exit""")
    A.label(L('slowret') + ' ;soft')
    zero(18, 8); zero(VX, 8)
    A("s_waitcnt lgkmcnt(0)")
    A("s_barrier")
    stamp(2)
    OA = [10, 14]
    A(f"ds_read_b128 v[{OA[0]}:{OA[0]+3}], v{vL16} offset:{L_O}")
    A(f"ds_read_b128 v[{OA[1]}:{OA[1]+3}], v{vL16} offset:{L_O + 1024}")
    A(f"""buffer_load_dwordx4 v{vL16}, {WS}, s{sKXa} offen sc1 lds
buffer_load_dwordx4 v{vL16}, {WS}, s{sKXa} offen offset:1024 sc1 lds""")
    zero(26, 16)
    ACS = [18, VX, 26, 34]
    RES = 58
    wnxt = {(0, 0): (2, 0), (2, 0): (3, 1)}
    side = []
    def q_psum(a, dst):
        for part in range(3): side.append(lambda part=part: ps(a, dst, part))
    g = 0
    for r in range(4):
        a = ACS[r]
        if r >= 1:
            q = r - 1
            q_psum(ACS[q], RES + 2 * (q & 1)); q_psum(ACS[q] + 4, RES + 2 * (q & 1) + 1)
        for jj in range(2):
            for tt in range(2):
                res = (('o', (r, jj)), tt) in _blk
                smf(a + 4 * tt, OA[jj], blk_regs(('o', (r, jj)), tt) if res else rng('v', SB + 8 * tt, 8))
                if not res and (r, jj) in wnxt:
                    lds_blk(('o', wnxt[(r, jj)]), tt, SB + 8 * tt)
                n = 2 * jj + tt
                for _ in range((1, 2, 1, 2)[n]):
                    if side: side.pop(0)()
                if n == 3 and r == 1:
                    lds_blk(('o', 8), 0, 18)
                if n == 3 and r == 2:
                    A(f"buffer_store_dwordx4 v[{RES}:{RES+3}], v{vPst}, {WS}, s{sP0} offen{SC}")
                    A(f"""buffer_load_dwordx4 v[{VX}:{VX+3}], v{vL16}, {WS}, s{sVXa} offen sc1
buffer_load_dwordx4 v[{VX+4}:{VX+7}], v{vL16}, {WS}, s{sVXa} offen offset:1024 sc1""", manual=True)
    zero(26, 4)
    smf(26, OA[0], 'v[18:25]')
    ps(34, RES + 2, 0); ps(34, RES + 2, 1)
    smf(26, OA[1], blk_regs(('o', 8), 1))
    ps(34, RES + 2, 2)
    psum(38, RES + 3)
    A(f"buffer_store_dwordx4 v[{RES}:{RES+3}], v{vPst}, {WS}, s{sP1} offen{SC}")
    psum(26, 30)
    A(f"buffer_store_dword v30, v{vPst}, {WS}, s{sP2} offen{SC}")
    A.label(L('wend') + ' ;soft')
    A(f"ds_read_b128 v[58:61], v{vL16} offset:{L_SEL}", manual=True)
    stamp(3)
    A(f"""s_add_u32 s{sStep}, s{sStep}, 1
s_xor_b32 s{sPart}, s{sPart}, {PART_OFF ^ (PART_OFF + PART_SLOT)}""")
    pre_a()
    if 'c' in EXP:
        A(f"s_branch {L('gather')}")
    A(f"s_cmp_lg_u32 s{sRole}, 0")
    A(f"s_cbranch_scc1 {L('gather')}")
    def rpoll():
        for i in range(4):
            A(f"buffer_load_dwordx4 v[{26+4*i}:{29+4*i}], v{vL16}, {WS}, s{sRa} offen offset:{i*1024} sc1", manual=True)
    A(f"s_mov_b32 s{sCnt}, 0")
    A("s_waitcnt lgkmcnt(0) vmcnt(0)" if 'w' in EXP else "s_waitcnt lgkmcnt(0)")
    A.label(L('r_poll'))
    for n in range(NU):
        rpoll()
        for i in range(4):
            A(f"s_waitcnt vmcnt({3 - i})")
            A(f"v_mfma_f32_16x16x32_bf16 v[22:25], v[58:61], v[{26+4*i}:{29+4*i}], {'0' if i == 0 else 'v[22:25]'}")
        for r in range(22, 26):
            A(f"v_add_f32_dpp v{r}, v{r}, v{r} row_ror:8 row_mask:0xf bank_mask:0xf")
        A(f"""v_cmp_u_f32 vcc, v22, v22
v_cvt_pk_bf16_f32 v22, v22, v23
v_cvt_pk_bf16_f32 v23, v24, v25""")
        if dbg == 2: A(f"s_add_u32 s90, s90, 1")
        A(f"s_cbranch_vccz {L('r_go')} ;exit")
    A(f"""s_add_u32 s{sCnt}, s{sCnt}, 1
s_cmp_lt_u32 s{sCnt}, {POLL_MAX}
s_cbranch_scc1 {L('r_poll')} ;nofence
v_min_u32 v22, -2, v22
v_min_u32 v23, -2, v23""")
    A.label(L('r_go'))
    A(f"buffer_store_dwordx2 v[22:23], v{vMst}, {WS}, s{sMw} offen{SC}")
    stamp(4)
    A(f"s_branch {L('gather')}")
    for lab, buf, so, off in (('late1', R1, sGa, 1024), ('late2', R2, sGb, 0)):
        A.label(L(lab))
        A(f"s_mov_b32 s{sCnt}, 0")
        A.label(L(lab + 'l'))
        A(f"""buffer_load_dwordx4 v[{buf}:{buf+3}], v{vL16}, {WS}, s{so} offen offset:{off} sc1
s_add_u32 s{sCnt}, s{sCnt}, 1
v_max_u32 v{vDummy}, v{buf}, v{buf+2}
v_cmp_eq_u32 vcc, -1, v{vDummy}
s_cmp_gt_u32 s{sCnt}, {POLL_MAX}
s_cbranch_scc1 {L(lab + 'r')}
s_cbranch_vccnz {L(lab + 'l')} ;nofence
s_branch {L(lab + 'r')}""")
    if flags:
        A.label(L('kvw'))
        A(f"v_mov_b32 v{vStash}, v62") if False else None
        kv_wait(A, L('kvl'), vIdxT)
        A(f"v_and_b32 v{vIdxT}, 32, v{vL16}")
        A(f"v_cmp_eq_u32 vcc, 0, v{vIdxT}")
        A(f"v_mov_b32 v{vIdxT}, 0xeeee")
        A(f"v_mov_b32 v{vDummy}, 0x4444")
        A(f"v_cndmask_b32 v{vIdxT}, v{vIdxT}, v{vDummy}, vcc")
        A(f"s_branch {L('kvr')}")
    A.label(L('slow'))
    A("s_nop 15")
    A(f"""v_max3_f32 v30, v{sv[0]}, v{sv[1]}, v{sv[2]}
v_max3_f32 v31, v{sv[3]}, v{sv[4]}, v{sv[5]}
v_max3_f32 v30, v30, v{sv[6]}, v{sv[7]}
v_max3_f32 v31, v31, v{sv[8]}, v{sv[9]}
v_max_f32 v30, v30, v31
v_mov_b32 v31, v30
v_permlane32_swap_b32 v30, v31
v_max_f32 v30, v30, v31
v_mov_b32 v31, v30
v_permlane16_swap_b32 v30, v31
v_max_f32 v30, v30, v31""")
    for r in sv:
        A(f"v_sub_f32 v{r}, v{r}, v30")
    for r in sv:
        A(f"v_exp_f32 v{r}, v{r}")
    for n in range(4):
        A(f"v_cvt_pk_bf16_f32 v{PX+n}, v{sv[2*n]}, v{sv[2*n+1]}")
    A(f"""v_cvt_pk_bf16_f32 v20, v{SM}, v{SM+1}
v_mov_b32 v21, 0
v_mov_b32 v18, 0
v_mov_b32 v19, v20
v_mfma_f32_16x16x32_bf16 v[{O1}:{O1+3}], v[{VX+4}:{VX+7}], v[{PX}:{PX+3}], 0
v_mfma_f32_16x16x32_bf16 v[{O0}:{O0+3}], v[{VX}:{VX+3}], v[{PX}:{PX+3}], 0
v_mfma_f32_16x16x32_bf16 v[{LSUM}:{LSUM+3}], v[{ONE}:{ONE+3}], v[{PX}:{PX+3}], 0
v_mfma_f32_16x16x16_bf16 v[{O1}:{O1+3}], v[{VMr}:{VMr+1}], v[18:19], v[{O1}:{O1+3}]
v_mfma_f32_16x16x16_bf16 v[{O0}:{O0+3}], v[{VMr}:{VMr+1}], v[20:21], v[{O0}:{O0+3}]
v_mfma_f32_16x16x16_bf16 v[{LSUM}:{LSUM+3}], v[{ONE}:{ONE+1}], v[20:21], v[{LSUM}:{LSUM+3}]
v_rcp_f32 v31, v30""")
    norm()
    A(f"""s_mov_b64 exec, s[{sEx}:{sEx+1}]
ds_write_b128 v{vOw}, v[{PX}:{PX+3}]
s_mov_b64 exec, -1
s_waitcnt lgkmcnt(0)
s_branch {L('slowret')}""")
    A.label(L('last'))
    A("s_nop 15")
    A("s_waitcnt lgkmcnt(0)")
    A(f"""s_lshr_b32 s{sT1}, s{sW11}, 1
v_add_u32 v62, s{sT1}, v{vL8}
ds_read_b64_tr_b16 v[10:11], v62 offset:{L_QK}
ds_read_b64_tr_b16 v[12:13], v62 offset:{L_QK + 512}
s_add_u32 s{sT0}, s{sKMa}, {32 * 4096}
buffer_store_dwordx4 v[10:13], v{vL16}, {WS}, s{sT0} offen sc1
s_branch {endlab}""")
```

```python
import sys, os
sys.path.insert(0, "gen")
from asmlib import Asm
from layout import *
import chain, roleb, rolea

NAME = "concat_heads__softmax_full_mha__memory_aug_recurrent_mem_tr__prompt"
HDR = open(f"cdna_kernels/{NAME}.s.ref").read().split("; Override launch")[0]

def kdesc(name):
    return f""".section .rodata,"a"
.p2align 6
.amdhsa_kernel {name}
  .amdhsa_next_free_vgpr 512
  .amdhsa_next_free_sgpr 102
  .amdhsa_accum_offset 256
  .amdhsa_group_segment_fixed_size 0
  .amdhsa_kernarg_size 104
  .amdhsa_user_sgpr_count 2
  .amdhsa_user_sgpr_kernarg_segment_ptr 1
  .amdhsa_system_sgpr_workgroup_id_x 1
.end_amdhsa_kernel
.text
"""
def khead(name):
    return f".globl {name}\n.p2align 8\n.type {name},@function\n{name}:\n"

def dispatch(A, tag, roles):
    A(f"""s_cmp_ge_u32 s2, 256
s_cbranch_scc1 {tag}_exit
s_and_b32 s6, s2, 7
s_lshr_b32 s7, s2, 3
s_cmp_eq_u32 s6, 0
s_cbranch_scc1 {tag}_rc
s_cmp_ge_u32 s6, 4
s_cbranch_scc1 {tag}_ra""")
    if 'b' in roles:
        A(f"""s_sub_u32 s6, s6, 1
s_lshl_b32 s6, s6, 5
s_add_u32 s6, s6, s7
s_mul_i32 s3, s6, 21846
s_lshr_b32 s3, s3, 16
s_mul_i32 s7, s3, 3
s_sub_u32 s5, s6, s7""")
        roles['b'](A)
    A.label(f"{tag}_exit")
    A("s_endpgm")
    A.label(f"{tag}_ra")
    if 'a' in roles:
        A(f"""s_sub_u32 s6, s6, 4
s_lshl_b32 s6, s6, 5
s_add_u32 s3, s6, s7""")
        roles['a'](A)
    A("s_endpgm")
    A.label(f"{tag}_rc")
    if 'c' in roles:
        roles['c'](A)
    A("s_endpgm")

def build_multi():
    ks = []
    def mk(name, roles):
        A = Asm(); dispatch(A, name[:2], roles)
        ks.append((name, A.finalize()))
    mk("k1_kernel", {'b': lambda A: roleb.gen_b(A, True, False, False, 'B1'), 'a': lambda A: (rolea.a_setup(A), rolea.gen_a1(A, False))})
    mk("k2_kernel", {'c': lambda A: chain.gen_chain(A, 0), 'a': lambda A: (rolea.a_setup(A), rolea.gen_a2(A, False))})
    mk("k3_kernel", {'b': lambda A: roleb.gen_b(A, False, True, False, 'B2'), 'a': lambda A: (rolea.a_setup(A), rolea.gen_a3(A, False))})
    mk("k4_kernel", {'a': lambda A: (rolea.a_setup(A), rolea.gen_a4(A, False))})
    out = HDR
    for n, _ in ks:
        out += f"; @launch kernel={n} grid=(256,1,1) block=(256,1,1) lds={LDS_BYTES}\n"
    out += '.amdgcn_target "amdgcn-amd-amdhsa--gfx950"\n.text\n'
    for n, body in ks:
        out += khead(n) + body + kdesc(n)
    return out

def build_single():
    name = NAME + "_kernel"
    A = Asm()
    def ra(A):
        rolea.a_setup(A, 'T' not in chain.EXP); rolea.gen_a1(A, True); rolea.gen_a2(A, True); rolea.gen_a3(A, True); rolea.gen_a4(A, True)
    dispatch(A, 'K', {'b': lambda A: roleb.gen_b(A, True, True, True, 'B'), 'a': ra,
                      'c': lambda A: chain.gen_chain(A, 0, 'C', True)})
    out = HDR + f"; @launch grid=(256,1,1) block=(256,1,1) lds={LDS_BYTES}\n"
    out += '.amdgcn_target "amdgcn-amd-amdhsa--gfx950"\n.text\n' + khead(name) + A.finalize() + kdesc(name)
    return out

if __name__ == "__main__":
    mode = sys.argv[1] if len(sys.argv) > 1 else 'multi'
    dst = sys.argv[2] if len(sys.argv) > 2 else f"cdna_kernels/{NAME}.s"
    txt = build_multi() if mode == 'multi' else build_single()
    open(dst, "w").write(txt)
    print("wrote", dst, len(txt), "bytes", txt.count("\n"), "lines")
```

```python
from asmlib import Asm
from layout import *
import struct, math
from prof import ts

NSTEPS = 64
C_SCALE = (128 ** -0.5) * math.log2(math.e)
def fbits(x): return struct.unpack('<I', struct.pack('<f', x))[0]

ORDER = [0, 1, 8, 3, 2, 4, 5, 6, 7]
LDS_CHUNKS = [('o', (3, 1)), ('o', (2, 0)), ('o', (0, 0)), ('k', 8), ('q', 0), ('q', 2), ('k', 1), ('k', 3), ('o', 8)]
def slot_base(s): return L_SLOT8 if s == 8 else L_SLOT0 + s * 16384
REG_CHUNKS = [(m, j) for m in 'qkv' for j in (0, 2, 1, 3, 4, 6, 5, 7, 8) if (m, j) not in LDS_CHUNKS] + \
             [('o', (0, 1)), ('o', (1, 1)), ('o', (1, 0)), ('o', (3, 0)), ('o', (2, 1))]
assert len(REG_CHUNKS) == 27
_blk = {}
def _regblock(n):
    return ('a', 8 * n) if n < 32 else ('v', 72 + 8 * (n - 32))
n = 0
for ch in REG_CHUNKS:
    for tt in range(2):
        _blk[(ch, tt)] = _regblock(n); n += 1
_blk[(('o', 8), 1)] = _regblock(n); n += 1
assert n == 55
def rng(f, b, n): return '%s[%d:%d]' % (f, b, b + n - 1)
def blk_regs(ch, tt):
    f, b = _blk[(ch, tt)]
    return rng(f, b, 8)

vDummy, vL16, vL8, vIdx, vQKw, vOw, vPst, vMst, vW, vW2 = 0, 1, 2, 3, 4, 5, 6, 7, 8, 9
VX = 64
vIdxT = vIdx
sH, sW = 3, 4
SRD_Q, SRD_K, SRD_V, SRD_O, SRD_WS = 8, 12, 16, 20, 24
sDBG, sMEM0 = 28, 30
sStep, sPart, sMw, sMp, sR1, sRole, sFast, sC = 32, 33, 34, 35, 36, 38, 39, 40
sT0, sT1, sT2, sT3 = 41, 42, 43, 44
sSeg = 45
sSingle = 46
sCnt = 47
sEx = 48
sEx2 = 50
sTm = 52
sW15, sW11, sTouch = 76, 77, 78
sKMa, sTa, sVMa, sVXa, sKXa, sP0, sP1, sP2, sRa, sGa, sGb = 60, 61, 62, 63, 64, 65, 66, 67, 68, 69, 70
sOnes, sBig, sRep = 72, 74, 75
POLL_MAX = 20000
import os
EXP = os.environ.get('EXP', '')
WS = f"s[{SRD_WS}:{SRD_WS+3}]"
SRD_PZ = 96
PZ = f"s[{SRD_PZ}:{SRD_PZ+3}]"
sRz, sMz = 71, 79

def srd(A, d, ptr, nbytes):
    A(f"""s_mov_b32 s{d}, s{ptr}
s_and_b32 s{d+1}, s{ptr+1}, 0xffff
s_mov_b32 s{d+2}, {nbytes}
s_mov_b32 s{d+3}, 0x20000""")

sReady, sNeed = 37, 100
def kv_wait(A, lab, vt):
    A(f"""s_lshl_b32 s{sT3}, s{sH}, 12
s_add_u32 s{sT3}, s{sT3}, {FLG_OFF}
s_mov_b32 s{sCnt}, 0""")
    A.label(lab)
    A(f"""buffer_load_dwordx4 v[{vt}:{vt+3}], v{vL16}, {WS}, s{sT3} offen sc1
s_add_u32 s{sCnt}, s{sCnt}, 1
v_and_b32 v{vt}, v{vt}, v{vt+1}
v_and_b32 v{vt+2}, v{vt+2}, v{vt+3}
v_and_b32 v{vt}, v{vt}, v{vt+2}
v_cmp_eq_u32 vcc, 1, v{vt}
s_ff0_i32_b64 s{sReady}, vcc
s_min_u32 s{sReady}, s{sReady}, 64
s_cmp_gt_u32 s{sCnt}, {POLL_MAX * 8}
s_cbranch_scc1 {lab}_d
s_cmp_gt_u32 s{sReady}, s{sNeed}
s_cbranch_scc1 {lab}_d
s_sleep 8
s_branch {lab}""")
    A.label(lab + '_d')

def gen_chain(A, dbg=0, tag='C', flags=False):
    L = lambda x: f'{tag}_{x}'
    NST = 12
    if dbg:
        A(f"s_memtime s[{sTm+6}:{sTm+7}]")
    A(f"""s_lshr_b32 s{sH}, s2, 3
s_load_dwordx4 s[60:63], s[0:1], 32
s_load_dwordx4 s[64:67], s[0:1], 48
s_load_dwordx2 s[68:69], s[0:1], 64
s_load_dwordx4 s[72:75], s[0:1], 88
v_lshrrev_b32 v10, 6, v0
v_and_b32 v0, 63, v0
v_readfirstlane_b32 s{sW}, v10
s_waitcnt lgkmcnt(0)""")
    srd(A, SRD_Q, 62, 576 * 4096 * 2)
    srd(A, SRD_K, 64, 576 * 4096 * 2)
    srd(A, SRD_V, 66, 576 * 4096 * 2)
    srd(A, SRD_O, 68, 576 * 4096 * 2)
    srd(A, SRD_WS, 74, WS_BYTES)
    A(f"""s_mov_b32 s{sDBG}, s72
s_mov_b32 s{sDBG+1}, s73
s_mov_b32 s{sMEM0}, s60
s_mov_b32 s{sMEM0+1}, s61
s_mov_b32 s{sC}, {fbits(C_SCALE):#x}
s_lshl_b32 s{sW15}, s{sW}, 15
s_lshl_b32 s{sW11}, s{sW}, 11
v_lshlrev_b32 v{vL16}, 4, v0
v_lshlrev_b32 v{vL8}, 3, v0""")
    ts(A, 0, SRD_WS, 10)
    if flags:
        A(f"""v_mov_b64 v[12:13], 0
v_mov_b64 v[14:15], 0
s_lshl_b32 s{sT0}, s{sH}, 12
s_lshl_b32 s{sT1}, s{sW}, 10
s_add_u32 s{sT0}, s{sT0}, s{sT1}
s_add_u32 s{sT0}, s{sT0}, {FLG_OFF}
buffer_store_dwordx4 v[12:15], v{vL16}, {WS}, s{sT0} offen sc1
v_mov_b32 v13, 1
s_waitcnt vmcnt(0)
s_barrier
s_cmp_lg_u32 s{sW}, 0
s_cbranch_scc1 {L('fi')}
s_mov_b64 exec, 1
global_atomic_add v12, v13, s[{sDBG}:{sDBG+1}] offset:128
s_mov_b64 exec, -1""")
        A.label(L('fi'))
    A(f"""s_and_b32 s{sT0}, s{sW}, 1
s_lshl_b32 s{sT0}, s{sT0}, 3
v_lshrrev_b32 v11, 4, v0
v_lshlrev_b32 v10, 1, v11
v_or_b32 v10, s{sT0}, v10
v_and_b32 v12, 15, v0
v_xor_b32 v10, v10, v12
v_lshlrev_b32 v10, 4, v10
s_lshl_b32 s{sT1}, s{sW}, 4
v_add_u32 v11, s{sT1}, v11
v_lshlrev_b32 v12, 13, v11
s_lshl_b32 s{sT1}, s{sH}, 8
v_add3_u32 v58, v12, v10, s{sT1}
v_lshrrev_b32 v12, 6, v10""")
    for p in range(4):
        A(f"""v_xor_b32 v13, {p}, v12
v_lshl_add_u32 v{54+p}, v13, 20, v58""")
    A(f"""v_bfe_u32 v10, v0, 4, 1
v_lshlrev_b32 v10, 1, v10
v_or_b32 v10, s{sT0}, v10
v_and_b32 v12, 15, v0
v_xor_b32 v10, v10, v12
v_xor_b32 v13, 4, v10
s_lshl_b32 s{sT1}, s{sH}, 7
v_add_u32 v11, s{sT1}, v11
v_mul_u32_u24 v11, 1152, v11""")
    for src, dst, dst8 in ((10, 60, 62), (13, 61, 63)):
        A(f"""v_lshrrev_b32 v14, 2, v{src}
v_lshl_add_u32 v14, v14, 7, v11
v_and_b32 v15, 3, v{src}
v_lshl_add_u32 v{dst}, v15, 4, v14
v_and_b32 v14, 7, v{src}
v_lshl_add_u32 v14, v14, 4, v11
v_add_u32 v14, 1024, v14
v_add_u32 v15, {64*1152}, v14
v_cmp_gt_u32 vcc, 8, v{src}
v_cndmask_b32 v{dst8}, v14, v15, vcc""")
    seq = REG_CHUNKS + LDS_CHUNKS
    A(f"s_lshl_b32 s{sT2}, s{sW}, 12")
    def dma(ci):
        ch = seq[ci]; sb = slot_base(ci % 9)
        for ii in range(4):
            if ch[0] != 'o':
                s = {'q': SRD_Q, 'k': SRD_K, 'v': SRD_V}[ch[0]]
                if ch[1] == 8:
                    so = (64 * 8 + 4 * ii) * 8192; vo = 58
                else:
                    so = (64 * (ch[1] & 1) + 4 * ii) * 8192; vo = 54 + (ch[1] >> 1)
            elif ch[1] == 8:
                s = SRD_O; so = 4 * ii * 1152; vo = 62 + (ii & 1)
            else:
                r, jj = ch[1]
                s = SRD_O; so = (64 * jj + 4 * ii) * 1152 + (r & 1) * 64 + (r >> 1) * 512; vo = 60 + (ii & 1)
            A(f"""s_add_u32 m0, s{sT2}, {sb + ii * 1024}
s_mov_b32 s{sT0}, {so}
buffer_load_dwordx4 v{vo}, s[{s}:{s+3}], s{sT0} offen lds""")
    for ci in range(9):
        dma(ci)
    A(f"""v_and_b32 v10, 2, v0
v_cmp_eq_u32 vcc, 0, v10
v_mov_b32 v11, 0xeeee
v_mov_b32 v12, 0x4444
v_cndmask_b32 v{vIdx}, v11, v12, vcc""")
    A(f"""v_and_b32 v10, 15, v0
v_lshrrev_b32 v11, 4, v0
v_lshlrev_b32 v10, 5, v10
v_lshl_add_u32 v10, v11, 3, v10
s_lshl_b32 s{sT0}, s{sW}, 10
s_add_u32 s{sT0}, s{sT0}, {L_QK}
v_add_u32 v{vQKw}, s{sT0}, v10""")
    A(f"""v_and_b32 v10, 13, v0
v_bfe_u32 v11, v0, 4, 1
v_lshl_add_u32 v10, v11, 1, v10
v_lshlrev_b32 v10, 4, v10
v_lshrrev_b32 v11, 5, v0
v_lshl_add_u32 v10, v11, 8, v10
s_lshl_b32 s{sT0}, s{sW}, 9
s_add_u32 s{sT0}, s{sT0}, {L_O}
v_add_u32 v{vOw}, s{sT0}, v10""")
    A(f"""v_lshrrev_b32 v10, 3, v0
v_lshlrev_b32 v10, 12, v10
v_and_b32 v11, 7, v0
v_lshl_add_u32 v10, v11, 4, v10
s_lshl_b32 s{sT0}, s{sH}, 7
v_add_u32 v{vPst}, s{sT0}, v10
s_lshl_b32 s{sT0}, s{sW}, 2
s_add_u32 s{sSingle}, s{sT0}, {8 * 32768}""")
    A(f"""s_lshl_b32 s{sT0}, s{sH}, 1
s_add_u32 s{sT0}, s{sT0}, s{sW}
s_add_u32 s{sT1}, s{sH}, 64
s_cmp_lt_u32 s{sW}, 2
s_cselect_b32 s{sT0}, s{sT0}, s{sT1}
s_min_u32 s{sT0}, s{sT0}, 71
s_lshl_b32 s{sR1}, s{sT0}, 12
s_mov_b32 s{sRole}, 0
s_cmp_lt_u32 s{sH}, 8
s_cselect_b32 s{sT1}, 0, 1
s_cmp_eq_u32 s{sW}, 2
s_cselect_b32 s{sRole}, s{sT1}, s{sRole}
s_cmp_eq_u32 s{sW}, 3
s_cselect_b32 s{sRole}, 2, s{sRole}
s_and_b32 s{sT1}, s{sW}, 1
s_mul_i32 s{sTouch}, s{sT1}, {VX_OFF}
s_lshr_b32 s{sT1}, s{sW}, 1
s_lshl_b32 s{sT1}, s{sT1}, 12
s_add_u32 s{sTouch}, s{sTouch}, s{sT1}
s_mov_b32 s{SRD_PZ}, s{SRD_WS}
s_mov_b32 s{SRD_PZ+1}, s{SRD_WS+1}
s_cmp_eq_u32 s{sRole}, 0
s_cselect_b32 s{SRD_PZ+2}, {WS_BYTES}, 0
s_mov_b32 s{SRD_PZ+3}, 0x20000
s_mov_b32 s{sOnes}, 0x3f803f80
s_mov_b32 s{sOnes+1}, 0x3f803f80
s_mov_b32 s{sBig}, {fbits(2.0**60):#x}""")
    A(f"""s_lshr_b32 s{sT1}, s{sT0}, 3
s_lshl_b32 s{sT1}, s{sT1}, 10
s_and_b32 s{sT3}, s{sT0}, 1
s_lshl_b32 s{sT3}, s{sT3}, 9
s_add_u32 s{sT1}, s{sT1}, s{sT3}
s_bfe_u32 s{sT3}, s{sT0}, 0x20001
s_lshl_b32 s{sT3}, s{sT3}, 6
s_add_u32 s{sT1}, s{sT1}, s{sT3}
v_bfe_u32 v10, v0, 2, 1
v_lshlrev_b32 v10, 8, v10
v_bfe_u32 v11, v0, 1, 1
v_lshl_add_u32 v10, v11, 5, v10
v_bfe_u32 v11, v0, 4, 1
v_lshl_add_u32 v10, v11, 4, v10
v_and_b32 v11, 1, v0
v_lshl_add_u32 v10, v11, 3, v10
v_lshrrev_b32 v11, 5, v0
v_bfe_u32 v12, v0, 3, 1
v_lshl_add_u32 v11, v11, 1, v12
v_mul_u32_u24 v11, {MREP}, v11
v_add3_u32 v{vMst}, v10, v11, s{sT1}
s_add_u32 s{sT1}, s{sH}, s{sW}
s_and_b32 s{sT1}, s{sT1}, 3
s_mul_i32 s{sRep}, s{sT1}, {MREP}""")
    A(f"""s_add_u32 s{sT0}, s{sT2}, {L_SLOT0}
v_add_u32 v{vW}, s{sT0}, v{vL16}
v_add_u32 v{vW2}, 65536, v{vW}
s_mov_b32 s{sEx}, 0xcccccccc
s_mov_b32 s{sEx+1}, 0xcccccccc
s_mov_b32 s{sEx2}, 0x00ff00ff
s_mov_b32 s{sEx2+1}, 0""")
    A(f"""v_lshrrev_b32 v10, 5, v0
v_bfe_u32 v11, v0, 4, 1
v_bfe_u32 v12, v0, 3, 1
v_bfe_u32 v13, v0, 2, 1
v_and_b32 v14, 3, v0
v_lshlrev_b32 v14, 3, v14
v_lshl_add_u32 v15, v13, 12, v14
v_lshl_add_u32 v15, v10, 10, v15
v_lshl_add_u32 v15, v12, 9, v15
v_lshl_add_u32 v15, v11, 8, v15
v_lshl_add_u32 v16, v12, 1, v11
v_lshl_add_u32 v16, v13, 2, v16
s_lshl_b32 s{sT0}, s{sW}, 1
v_xor_b32 v17, s{sT0}, v16
v_lshl_add_u32 v64, v17, 5, v15
v_xor_b32 v65, 32, v64
v_lshl_add_u32 v15, v11, 12, v14
v_lshl_add_u32 v15, v10, 11, v15
v_lshl_add_u32 v15, v12, 10, v15
v_lshl_add_u32 v15, v13, 8, v15
v_lshl_add_u32 v16, v12, 1, v13
v_lshl_add_u32 v16, v11, 2, v16
v_xor_b32 v17, s{sT0}, v16
v_lshl_add_u32 v66, v17, 5, v15
v_xor_b32 v67, 32, v66
v_xor_b32 v17, s{sW}, v16
v_lshl_add_u32 v68, v17, 5, v15
v_xor_b32 v69, 128, v68""")
    for R in range(12):
        A(f"s_waitcnt vmcnt({24 if R <= 9 else (12 if R == 10 else 0)})")
        A("s_barrier")
        for k in range(3):
            ci = 3 * R + k; ch = seq[ci]; sb = slot_base(ci % 9)
            for tt in range(2):
                if ch[0] != 'o':
                    av = 64 + tt; st5, st2 = 2048, 8192
                elif ch[1] == 8:
                    av = 68 + (1 - tt); st5, st2 = 8192, 512
                else:
                    av = 66 + tt; st5, st2 = 8192, 512
                A(f"v_add_u32 v{70 + tt}, {sb}, v{av}")
                if (ch, tt) in _blk:
                    f, b = _blk[(ch, tt)]
                else:
                    f, b = 'v', 10 + 16 * k + 8 * tt
                for k5 in range(2):
                    for k2 in range(2):
                        A(f"ds_read_b64_tr_b16 {rng(f, b + 4*k5 + 2*k2, 2)}, v{70+tt} offset:{k5*st5 + k2*st2}")
        A("s_waitcnt lgkmcnt(0)")
        A("s_barrier")
        if R + 3 < 12:
            for k in range(3):
                dma(3 * (R + 3) + k)
        if R >= 9:
            for k in range(3):
                ci = 3 * R + k; ch = seq[ci]; sl = ci % 9
                for tt in range(2):
                    if (ch, tt) in _blk:
                        continue
                    b = 10 + 16 * k + 8 * tt
                    if sl == 8:
                        A(f"""s_add_u32 s{sT0}, s{sW11}, {L_SLOT8 + 8192}
v_add_u32 v70, s{sT0}, v{vL16}""")
                        off = 0
                    else:
                        A(f"v_add_u32 v70, {sl * 16384}, v{vW}")
                        off = tt * 2048
                    A(f"ds_write_b128 v70, v[{b}:{b+3}] offset:{off}")
                    A(f"ds_write_b128 v70, v[{b+4}:{b+7}] offset:{off + 1024}")
    ts(A, 1, SRD_WS, 10)
    A(f"""s_cmp_lg_u32 s{sRole}, 0
s_cbranch_scc1 {L('nopoison')}
v_mov_b32 v12, -1
v_mov_b32 v13, -1
v_mov_b32 v14, -1
v_mov_b32 v15, -1""")
    for slot in range(2):
        A(f"s_add_u32 s{sT0}, s{sR1}, {PART_OFF + slot * PART_SLOT}")
        for i in range(4):
            A(f"buffer_store_dwordx4 v[12:15], v{vL16}, {WS}, s{sT0} offen offset:{i*1024} sc1")
    for slot in range(3):
        A(f"s_mov_b32 s{sT0}, {MIMG_OFF + slot * MIMG_SLOT}")
        A(f"buffer_store_dwordx2 v[12:13], v{vMst}, {WS}, s{sT0} offen sc1")
    A.label(L('nopoison'))
    A(f"""v_bfe_u32 v10, v0, 2, 2
v_and_b32 v11, 1, v0
v_lshl_add_u32 v10, v10, 1, v11
v_mul_u32_u24 v10, 1152, v10
v_lshrrev_b32 v11, 4, v0
v_lshl_add_u32 v10, v11, 3, v10
v_bfe_u32 v11, v0, 1, 1
v_lshl_add_u32 v10, v11, 2, v10
s_lshl_b32 s{sT0}, s{sW}, 7
v_add_u32 v11, s{sT0}, v10
s_lshl_b32 s{sT0}, s{sW}, 10
v_add_u32 v12, s{sT0}, v{vL16}
s_mov_b32 s{sT0}, 0x05040100
s_mov_b32 s{sT1}, 0x07060302""")
    for n, (av, go, lv, lo) in enumerate(((11, 0, 12, 0), (11, 512, 12, 4096), (10, 1024, vL16, 8192))):
        for t in range(4):
            A(f"global_load_dword v{14+t}, v{av}, s[{sMEM0}:{sMEM0+1}] offset:{go + 32*t}")
        A(f"""v_perm_b32 v20, v15, v14, s{sT0}
v_perm_b32 v21, v17, v16, s{sT0}
v_perm_b32 v22, v15, v14, s{sT1}
v_perm_b32 v23, v17, v16, s{sT1}
ds_write_b128 v{lv}, v[20:23] offset:{L_M + lo}""")
    A(f"""v_and_b32 v10, 4, v0
v_cmp_eq_u32 vcc, 0, v10
v_mov_b32 v11, 0x3f800000
v_mov_b32 v12, 0x3f80
v_cndmask_b32 v11, v11, v12, vcc
v_and_b32 v10, 3, v0""")
    for d in range(4):
        A(f"""v_cmp_eq_u32 vcc, {d}, v10
v_cndmask_b32 v{20+d}, 0, v11, vcc""")
    A(f"ds_write_b128 v{vL16}, v[20:23] offset:{L_SEL}")
    A("s_waitcnt lgkmcnt(0) vmcnt(0)")
    A("s_barrier")
    A(f"""s_getreg_b32 s{sT0}, hwreg(HW_REG_XCC_ID)
s_and_b32 s{sT0}, s{sT0}, 15
s_lshl_b32 s{sT0}, 0x10000, s{sT0}
v_mov_b32 v10, 0
v_mov_b32 v11, s{sT0}
v_mov_b32 v12, 0x10000
s_cmp_lg_u32 s{sW}, 0
s_cbranch_scc1 {L('rdv_wait')}
s_mov_b64 exec, 1
global_atomic_or v10, v11, s[{sDBG}:{sDBG+1}] offset:4
s_waitcnt vmcnt(0)
global_atomic_add v10, v12, s[{sDBG}:{sDBG+1}]
s_mov_b64 exec, -1""")
    A.label(L('rdv_wait'))
    if flags:
        A(f"s_mov_b32 s{sNeed}, 0")
        kv_wait(A, L('kv0'), 16)
    A(f"""s_lshl_b32 s{sSeg}, s{sH}, 13
s_add_u32 s{sT0}, s{sSeg}, s{sW11}
s_add_u32 m0, s{sW11}, {L_KX}
s_add_u32 s{sT2}, s{sT0}, {VX_OFF}
buffer_load_dwordx4 v{vL16}, {WS}, s{sT0} offen sc1 lds
buffer_load_dwordx4 v{vL16}, {WS}, s{sT0} offen offset:1024 sc1 lds""")
    A(f"""buffer_load_dwordx4 v[{VX}:{VX+3}], v{vL16}, {WS}, s{sT2} offen sc1
buffer_load_dwordx4 v[{VX+4}:{VX+7}], v{vL16}, {WS}, s{sT2} offen offset:1024 sc1""", manual=True)
    A(f"s_mov_b32 s{sCnt}, 0")
    A.label(L('rdv_loop'))
    A(f"""global_load_dwordx2 v[12:13], v10, s[{sDBG}:{sDBG+1}] sc1
s_add_u32 s{sCnt}, s{sCnt}, 1
s_waitcnt vmcnt(0)
v_readfirstlane_b32 s{sT0}, v12
v_readfirstlane_b32 s{sT1}, v13
s_cmp_gt_u32 s{sCnt}, {POLL_MAX}
s_cbranch_scc1 {L('rdv_done')}
s_lshr_b32 s{sT0}, s{sT0}, 16
s_cmp_ge_u32 s{sT0}, 32
s_cbranch_scc1 {L('rdv_done')}
s_sleep 4
s_branch {L('rdv_loop')}""")
    A.label(L('rdv_done'))
    A(f"""s_lshr_b32 s{sT1}, s{sT1}, 16
s_bcnt1_i32_b32 s{sT1}, s{sT1}
s_cmp_eq_u32 s{sT1}, 1
s_cselect_b32 s{sFast}, 1, 0
s_mov_b32 s{sStep}, 0
s_mov_b32 s{sPart}, {PART_OFF}
s_mov_b32 s{sMp}, {MIMG_OFF}
s_mov_b32 s{sMw}, {MIMG_OFF + MIMG_SLOT}""")
    if dbg:
        A(f"s_memtime s[{sTm}:{sTm+1}]")
        A("s_waitcnt lgkmcnt(0)")
        A(f"s_mov_b32 s{sTm+5}, s{sTm}")
        A("s_memrealtime s[92:93]")
        A("s_waitcnt lgkmcnt(0)")
        for n in range(NST): A(f"s_mov_b32 s{80+n}, 0")
    ts(A, 2, SRD_WS, 12)
    A(f"s_cmp_eq_u32 s{sFast}, 0")
    A(f"s_cbranch_scc1 {L('S_pre')}")
    gen_loop(A, dbg, tag + '_F', '', L('end'), flags)
    gen_loop(A, dbg, tag + '_S', ' sc1', L('end'), flags)
    A.label(L('end'))
    ts(A, 3, SRD_WS, 10)
    if dbg:
        A("s_memrealtime s[94:95]")
        A(f"s_memtime s[{sTm+2}:{sTm+3}]")
        A("s_waitcnt lgkmcnt(0)")
        pass
        for n in range(64):
            A(f"v_smfmac_f32_16x16x64_bf16 v[{10+4*(n%4)}:{13+4*(n%4)}], v[30:33], a[{8*(n%32)}:{8*(n%32)+7}], v{vIdx}")
        A("s_nop 7")
        A(f"s_memtime s[{sTm+4}:{sTm+5}]")
        A("s_waitcnt lgkmcnt(0)")
        pass
        A(f"""s_memtime s[{sTm+2}:{sTm+3}]
s_waitcnt lgkmcnt(0)
s_sub_u32 s{sT0}, s{sTm+2}, s{sTm}
v_mov_b32 v10, s{sT0}
v_mov_b32 v11, s{sFast}
s_lshl_b32 s{sT1}, s{sH}, 8
s_lshl_b32 s{sT2}, s{sW}, 6
s_add_u32 s{sT1}, s{sT1}, s{sT2}
s_add_u32 s{sT1}, s{sT1}, {DBG_OFF + 0x200000}
v_mov_b32 v12, 0
s_sub_u32 s{sT0}, s{sTm}, s{sTm+6}
v_mov_b32 v13, s{sT0}
s_mov_b64 exec, 1
buffer_store_dwordx2 v[10:11], v12, {WS}, s{sT1} offen
buffer_store_dword v13, v12, {WS}, s{sT1} offen offset:8""")
        for n in range(NST):
            A(f"v_mov_b32 v13, s{80+n}")
            A(f"buffer_store_dword v13, v12, {WS}, s{sT1} offen offset:{16+4*n}")
    A("s_endpgm")


def gen_loop(A, dbg, tag, SC, endlab, flags):
    L = lambda x: f'{tag}_{x}'
    def stamp(n):
        if dbg not in (2, 3): return
        A(f"""s_memtime s[{sTm+2}:{sTm+3}]
s_waitcnt lgkmcnt(0)
s_sub_u32 s{sTm+4}, s{sTm+2}, s{sTm+5}
s_add_u32 s{80+n}, s{80+n}, s{sTm+4}
s_mov_b32 s{sTm+5}, s{sTm+2}""")
    aQ, aK, aV = 10, 18, 26
    R0, R1, R2 = 34, 38, 58
    SB = 42
    def lds_blk(ch, tt, dst, manual=False):
        sl = LDS_CHUNKS.index(ch)
        if sl == 8:
            base, off = 62, 0
        elif sl < 4:
            base, off = vW, sl * 16384 + tt * 2048
        else:
            base, off = vW2, (sl - 4) * 16384 + tt * 2048
        A(f"ds_read_b128 v[{dst}:{dst+3}], v{base} offset:{off}", manual)
        A(f"ds_read_b128 v[{dst+4}:{dst+7}], v{base} offset:{off+1024}", manual)
    def zero(b, n):
        for r in range(b, b + n, 2):
            A(f"v_mov_b64 v[{r}:{r+1}], 0")
    def smf(acc, a, b):
        A(f"v_smfmac_f32_16x16x64_bf16 v[{acc}:{acc+3}], v[{a}:{a+3}], {b}, v{vIdx}")
    cur_p = [None]
    def xr(p):
        A(f"v_xor_b32 v62, {p * 2048}, v63")
        cur_p[0] = p
    def rdA(slot, buf, manual=False):
        if slot == 8:
            A(f"ds_read_b128 v[{buf}:{buf+3}], v{vL16} offset:{L_M + 8192}", manual)
            return
        p = slot >> 1
        if p == 0:
            base = 63
        else:
            if cur_p[0] != p:
                xr(p)
            base = 62
        A(f"ds_read_b128 v[{buf}:{buf+3}], v{base} offset:{L_M + (slot & 1) * 1024}", manual)
    def ps(a, dst, part):
        if part == 0: A(f"v_add_f32 v{a}, v{a}, v{a+2}")
        elif part == 1: A(f"v_add_f32 v{a+1}, v{a+1}, v{a+3}")
        else: A(f"v_cvt_pk_bf16_f32 v{dst}, v{a}, v{a+1}")
    def psum(a, dst):
        for part in range(3): ps(a, dst, part)
    def rdX(u, x):
        A(f"ds_read_b64_tr_b16 v[{x}:{x+1}], v{vL8} offset:{L_QK + u*1024}")
        A(f"ds_read_b64_tr_b16 v[{x+2}:{x+3}], v{vL8} offset:{L_QK + u*1024 + 512}")
    def pre_a():
        lds_blk(('q', 0), 0, SB, True); lds_blk(('q', 0), 1, SB + 8, True)
        zero(aQ, 12)
        A(f"""s_lshr_b32 s{sKMa}, s{sSeg}, 1
s_add_u32 s{sKMa}, s{sKMa}, {KM_OFF}
s_lshr_b32 s{sVMa}, s{sSeg}, 2
s_lshr_b32 s{sT1}, s{sW11}, 2
s_add_u32 s{sVMa}, s{sVMa}, s{sT1}
s_add_u32 s{sVMa}, s{sVMa}, {VM_OFF}
s_add_u32 s{sSeg}, s{sSeg}, {0 if 'a' in EXP else 32 * 8192}
s_min_u32 s{sT0}, s{sSeg}, {VX_OFF - 8192}
s_add_u32 s{sTa}, s{sT0}, s{sTouch}
s_add_u32 s{sKXa}, s{sT0}, s{sW11}
s_add_u32 s{sVXa}, s{sKXa}, {VX_OFF}
s_add_u32 s{sP0}, s{sW15}, s{sPart}
s_add_u32 s{sP1}, s{sP0}, {4 * 32768}
s_add_u32 s{sP2}, s{sSingle}, s{sPart}
s_add_u32 s{sNeed}, s{sStep}, 1
s_min_u32 s{sNeed}, s{sNeed}, 63""")
    def pre_b():
        A(f"""s_lshr_b32 s{sT1}, s{sW11}, 1
v_add_u32 v62, s{sT1}, v{vL8}
s_add_u32 s{sKMa}, s{sKMa}, s{sT1}""")
        A(f"""ds_read_b64_tr_b16 v[30:31], v62 offset:{L_QK}
ds_read_b64_tr_b16 v[32:33], v62 offset:{L_QK + 512}""", manual=True)
        zero(22, 4)
        A(f"""v_mov_b64 v[26:27], -1
v_mov_b64 v[28:29], -1
v_add_u32 v63, s{sW11}, v{vL16}
s_mov_b32 s{sRz}, s{sRa}
s_mov_b32 s{sMz}, s{sMp}
s_add_u32 s{sRa}, s{sR1}, s{sPart}""")
    A.label(L('pre'))
    A(f"s_add_u32 m0, s{sW11}, {L_KX}")
    A(f"s_add_u32 s{sRa}, s{sR1}, {PART_OFF + PART_SLOT}")
    pre_a(); pre_b()
    rdA(0, R0, True); rdA(1, R1, True); rdA(8, R2, True)
    A("s_waitcnt vmcnt(0) lgkmcnt(0)")
    A(f"s_branch {L('top')}")
    A.label(L('gather'))
    def gpoll():
        A(f"""buffer_load_dwordx4 v[{R0}:{R0+3}], v{vL16}, {WS}, s{sGa} offen sc1
buffer_load_dwordx4 v[{R1}:{R1+3}], v{vL16}, {WS}, s{sGa} offen offset:1024 sc1
buffer_load_dwordx4 v[{R2}:{R2+3}], v{vL16}, {WS}, s{sGb} offen sc1""", manual=True)
    pre_b()
    A(f"""s_add_u32 s{sGb}, s{sMw}, s{sRep}
s_add_u32 s{sGa}, s{sGb}, s{sW11}
s_add_u32 s{sGb}, s{sGb}, 8192
s_mov_b32 s{sCnt}, 0
s_mov_b32 s{sMp}, s{sMw}
s_add_u32 s{sMw}, s{sMw}, {MIMG_SLOT}
s_cmp_eq_u32 s{sMw}, {MIMG_OFF + 3 * MIMG_SLOT}
s_cselect_b32 s{sMw}, {MIMG_OFF}, s{sMw}""")
    if 'x' in EXP: A("s_waitcnt vmcnt(0)")
    A("s_barrier")
    stamp(5)
    if 'c' in EXP:
        rdA(0, R0, True); rdA(1, R1, True); rdA(8, R2, True)
        A("s_waitcnt lgkmcnt(0) vmcnt(0)")
        A(f"s_branch {L('top')}")
    A("s_waitcnt lgkmcnt(0)")
    A.label(L('g_poll'))
    NU = 3
    for n in range(NU):
        gpoll()
        A(f"""s_waitcnt vmcnt(2)
v_max_u32 v{vDummy}, v{R0}, v{R0+2}
v_cmp_eq_u32 vcc, -1, v{vDummy}""")
        if dbg in (2, 3): A(f"s_add_u32 s91, s91, 1")
        A(f"s_cbranch_vccz {L('top')} ;exit")
    A(f"""s_add_u32 s{sCnt}, s{sCnt}, 1
s_cmp_lt_u32 s{sCnt}, {POLL_MAX}
s_cbranch_scc1 {L('g_poll')} ;nofence""")
    A.label(L('top'))
    stamp(6)
    if 'h' in EXP:
        A(f"""s_waitcnt vmcnt(0)
v_mov_b64 v[58:59], 0
v_mov_b64 v[60:61], 0
s_cmp_eq_u32 s{sStep}, {NSTEPS - 1}
s_cbranch_scc1 {L('last')} ;exit
s_barrier
buffer_store_dwordx4 v[58:61], v{vPst}, {WS}, s{sP0} offen{SC}
buffer_store_dwordx4 v[58:61], v{vPst}, {WS}, s{sP1} offen{SC}
buffer_store_dword v58, v{vPst}, {WS}, s{sP2} offen{SC}
s_branch {L('wend')}""")
    groups = [('q', 0), ('k', 0), ('q', 1), ('k', 1), ('q', 8), ('k', 8), ('q', 3), ('v', 8), ('k', 2), ('k', 3),
              ('q', 4), ('k', 4), ('q', 2), ('q', 5), ('q', 6), ('q', 7), ('k', 5), ('k', 6), ('k', 7)]
    abuf = {0: R0, 1: R1, 8: R2, 3: R0, 2: R1, 4: R2, 5: R0, 6: R2, 7: R1}
    nxt = {('q', 0): ('k', 1), ('k', 1): ('k', 8), ('k', 8): ('k', 3), ('k', 3): ('q', 2)}
    KB = [SB, SB + 8]
    def rdK(u):
        k = KB[u & 1]
        A(f"ds_read_b128 v[{k}:{k+3}], v{vL16} offset:{L_KX + u*1024}")
        A(f"ds_read_b128 v[{k+4}:{k+7}], v{vL16} offset:{L_KX + 4096 + u*1024}")
    def barrier0():
        A("s_waitcnt lgkmcnt(4)")
        A("s_barrier")
        rdA(3, R0)
    pz = lambda i: A(f"buffer_store_dwordx4 v[26:29], v{vL16}, {PZ}, s{sRz} offen offset:{i*1024}{SC}")
    def chk(buf, lab):
        A(f"""v_max_u32 v{vDummy}, v{buf}, v{buf+2}
v_cmp_eq_u32 vcc, -1, v{vDummy}
s_cbranch_vccnz {L(lab)} ;exit""")
        A.label(L(lab + 'r') + ' ;soft')
    def kvchk():
        if flags:
            A(f"""s_cmp_le_u32 s{sReady}, s{sNeed}
s_cbranch_scc1 {L('kvw')} ;exit""")
            A.label(L('kvr') + ' ;soft')
    extra = {
        2: lambda: A(f"ds_write_b128 v63, v[{R0}:{R0+3}] offset:{L_M}"),
        3: lambda: (A("s_waitcnt vmcnt(1)"), chk(R1, 'late1'), A(f"ds_write_b128 v63, v[{R1}:{R1+3}] offset:{L_M + 1024}")),
        4: lambda: (A("s_waitcnt vmcnt(0)"), chk(R2, 'late2')),
        5: lambda: xr(1),
        8: barrier0,
        9: lambda: (rdA(2, R1), pz(0), pz(1), xr(2)),
        10: lambda: (pz(2), pz(3)),
        11: lambda: (A(f"buffer_store_dwordx2 v[26:27], v{vMst}, {PZ}, s{sMz} offen{SC}"),
                     A(f"buffer_store_dwordx4 v[30:33], v{vL16}, {WS}, s{sKMa} offen{'' if 'b' in EXP else ' sc1'}")),
        12: lambda: (kvchk(), zero(26, 4)),
        16: lambda: A(f"v_lshlrev_b32 v{vDummy}, 2, v{vL16}"),
        17: lambda: A(f"buffer_load_dword v{vDummy}, v{vDummy}, {WS}, s{sTa} offen sc1", manual=True),
        13: lambda: zero(30, 4),
        15: lambda: rdA(4, R2),
        20: lambda: (rdA(5, R0), xr(3)),
        23: lambda: rdA(6, R2),
        25: lambda: rdA(7, R1),
        26: lambda: rdK(0),
        27: lambda: rdK(1),
        32: lambda: ps(aQ, aQ + 3, 0),
        33: lambda: ps(aQ, aQ + 3, 1),
        34: lambda: ps(aQ + 4, aQ + 7, 0),
        35: lambda: ps(aQ + 4, aQ + 7, 1),
        36: lambda: ps(aQ, aQ + 3, 2),
        37: lambda: ps(aQ + 4, aQ + 7, 2),
    }
    g = 0
    for ch in groups:
        acc = {'q': aQ, 'k': aK, 'v': aV}[ch[0]]
        for tt in range(2):
            res = (ch, tt) in _blk
            smf(acc + 4 * tt, abuf[ch[1]], blk_regs(ch, tt) if res else rng('v', SB + 8 * tt, 8))
            if not res and ch in nxt:
                lds_blk(nxt[ch], tt, SB + 8 * tt)
            if g in extra:
                extra[g]()
            if dbg == 1 and g == 4:
                A(f"""s_mul_i32 s{sT0}, s{sStep}, 16384
s_add_u32 s{sT0}, s{sT0}, {DBG_OFF}
s_cmp_eq_u32 s{sH}, 0
s_cselect_b32 s{sT0}, s{sT0}, {DBG_OFF + 0x100000}
s_add_u32 s{sT1}, s{sT0}, 8192
buffer_store_dwordx4 v[{R0}:{R0+3}], v63, {WS}, s{sT0} offen
buffer_store_dwordx4 v[{R1}:{R1+3}], v63, {WS}, s{sT0} offen offset:1024
buffer_store_dwordx4 v[{R2}:{R2+3}], v{vL16}, {WS}, s{sT1} offen""")
            g += 1
    def vs(slot, buf, tts=(0, 1)):
        for tt in tts:
            smf(aV + 4 * tt, buf, blk_regs(('v', slot), tt))
    vs(6, R2, (0,))
    psum(aK, aQ + 2)
    A(f"ds_write_b64 v{vQKw}, v[{aQ+2}:{aQ+3}]")
    psum(aK + 4, aQ + 6)
    A(f"ds_write_b64 v{vQKw}, v[{aQ+6}:{aQ+7}] offset:512")
    vs(6, R2, (1,))
    vs(5, R0); rdA(0, R0)
    vs(7, R1); rdA(1, R1)
    A("s_waitcnt lgkmcnt(2)")
    A("s_barrier")
    stamp(0)
    S0, S1, SM = 10, 14, 18
    XB = [22, R2]
    def sc(u, ex=()):
        x, k = XB[u & 1], KB[u & 1]
        c = lambda r: '0' if u == 0 else f'v[{r}:{r+3}]'
        ops = [f"v_mfma_f32_16x16x32_bf16 v[{SM}:{SM+3}], v[{x}:{x+3}], v[{x}:{x+3}], {c(SM)}",
               f"v_mfma_f32_16x16x32_bf16 v[{S0}:{S0+3}], v[{k}:{k+3}], v[{x}:{x+3}], {c(S0)}",
               f"v_mfma_f32_16x16x32_bf16 v[{S1}:{S1+3}], v[{k+4}:{k+7}], v[{x}:{x+3}], {c(S1)}"]
        for n, o in enumerate(ops):
            A(o)
            if n < len(ex) and ex[n]: ex[n]()
    rdX(0, XB[0]); rdX(1, XB[1])
    vs(0, R0, (0,)); xr(1)
    vs(0, R0, (1,)); rdA(3, R0)
    vs(1, R1); rdA(2, R1)
    sc(0, (lambda: xr(2), None, lambda: (rdX(2, XB[0]), rdK(2))))
    sc(1, (None, None, lambda: (rdX(3, XB[1]), rdK(3))))
    vs(3, R0); rdA(4, R0)
    sc(2, (None, None, lambda: lds_blk(('o', (0, 0)), 0, 42)))
    sc(3, (None, None, lambda: lds_blk(('o', (0, 0)), 1, 50)))
    stamp(1)
    sv = [S0, S0+1, S0+2, S0+3, S1, S1+1, S1+2, S1+3, SM, SM+1]
    PX, VMr = 58, 28
    O0, O1, LSUM, ONE = 34, 38, 30, 22
    A(f"v_mul_f32 v{SM}, s{sC}, v{SM}")
    vs(2, R1, (0,))
    A(f"v_mul_f32 v{SM+1}, s{sC}, v{SM+1}")
    vs(2, R1, (1,))
    A(f"v_exp_f32 v62, v{SM}")
    vs(4, R0, (0,))
    A(f"v_exp_f32 v63, v{SM+1}")
    vs(4, R0, (1,))
    A(f"""v_exp_f32 v22, v{sv[0]}
v_exp_f32 v23, v{sv[1]}
v_cvt_pk_bf16_f32 v20, v62, v63
v_exp_f32 v24, v{sv[2]}
v_exp_f32 v25, v{sv[3]}
v_cvt_pk_bf16_f32 v{PX}, v22, v23""")
    psum(aV, VMr)
    psum(aV + 4, VMr + 1)
    A(f"""v_mov_b32 v21, 0
v_cvt_pk_bf16_f32 v63, v62, v63
v_mov_b32 v62, 0
v_exp_f32 v22, v{sv[4]}
v_mfma_f32_16x16x16_bf16 v[{O0}:{O0+3}], v[{VMr}:{VMr+1}], v[20:21], 0
v_exp_f32 v23, v{sv[5]}
v_cvt_pk_bf16_f32 v{PX+1}, v24, v25
v_mfma_f32_16x16x16_bf16 v[{O1}:{O1+3}], v[{VMr}:{VMr+1}], v[62:63], 0
buffer_store_dwordx2 v[{VMr}:{VMr+1}], v{vL8}, {WS}, s{sVMa} offen{'' if 'b' in EXP else ' sc1'}
s_cmp_eq_u32 s{sStep}, {NSTEPS - 1}
v_exp_f32 v24, v{sv[6]}
s_cbranch_scc1 {L('last')} ;exit
v_exp_f32 v25, v{sv[7]}
v_cvt_pk_bf16_f32 v{PX+2}, v22, v23
v_mov_b64 v[{ONE}:{ONE+1}], s[{sOnes}:{sOnes+1}]
v_cvt_pk_bf16_f32 v{PX+3}, v24, v25
v_mov_b64 v[{ONE+2}:{ONE+3}], s[{sOnes}:{sOnes+1}]
v_mfma_f32_16x16x16_bf16 v[{LSUM}:{LSUM+3}], v[{ONE}:{ONE+1}], v[20:21], 0
v_mfma_f32_16x16x32_bf16 v[{O0}:{O0+3}], v[{VX}:{VX+3}], v[{PX}:{PX+3}], v[{O0}:{O0+3}]
s_add_u32 s{sT0}, s{sW11}, {L_SLOT8 + 8192}
v_mfma_f32_16x16x32_bf16 v[{LSUM}:{LSUM+3}], v[{ONE}:{ONE+3}], v[{PX}:{PX+3}], v[{LSUM}:{LSUM+3}]
v_add_u32 v62, s{sT0}, v{vL16}
v_mfma_f32_16x16x32_bf16 v[{O1}:{O1+3}], v[{VX+4}:{VX+7}], v[{PX}:{PX+3}], v[{O1}:{O1+3}]
v_rcp_f32 v31, v30""")
    def norm():
        for n, o in enumerate((O0, O0 + 2, O1, O1 + 2)):
            A(f"v_mul_f32 v{o}, v{o}, v31")
            A(f"v_mul_f32 v{o+1}, v{o+1}, v31")
            A(f"v_cvt_pk_bf16_f32 v{PX + n}, v{o}, v{o+1}")
    norm()
    A(f"""s_mov_b64 exec, s[{sEx}:{sEx+1}]
ds_write_b128 v{vOw}, v[{PX}:{PX+3}]
v_max_f32 v32, v30, v31
v_cmp_nlt_f32 vcc, v32, s{sBig}
s_mov_b64 exec, -1
s_cbranch_vccnz {L('slow')} ;exit""")
    A.label(L('slowret') + ' ;soft')
    zero(18, 8); zero(VX, 8)
    A("s_waitcnt lgkmcnt(0)")
    A("s_barrier")
    stamp(2)
    OA = [10, 14]
    A(f"ds_read_b128 v[{OA[0]}:{OA[0]+3}], v{vL16} offset:{L_O}")
    A(f"ds_read_b128 v[{OA[1]}:{OA[1]+3}], v{vL16} offset:{L_O + 1024}")
    A(f"""buffer_load_dwordx4 v{vL16}, {WS}, s{sKXa} offen sc1 lds
buffer_load_dwordx4 v{vL16}, {WS}, s{sKXa} offen offset:1024 sc1 lds""")
    zero(26, 16)
    ACS = [18, VX, 26, 34]
    RES = 58
    wnxt = {(0, 0): (2, 0), (2, 0): (3, 1)}
    side = []
    def q_psum(a, dst):
        for part in range(3): side.append(lambda part=part: ps(a, dst, part))
    g = 0
    for r in range(4):
        a = ACS[r]
        if r >= 1:
            q = r - 1
            q_psum(ACS[q], RES + 2 * (q & 1)); q_psum(ACS[q] + 4, RES + 2 * (q & 1) + 1)
        for jj in range(2):
            for tt in range(2):
                res = (('o', (r, jj)), tt) in _blk
                smf(a + 4 * tt, OA[jj], blk_regs(('o', (r, jj)), tt) if res else rng('v', SB + 8 * tt, 8))
                if not res and (r, jj) in wnxt:
                    lds_blk(('o', wnxt[(r, jj)]), tt, SB + 8 * tt)
                n = 2 * jj + tt
                for _ in range((1, 2, 1, 2)[n]):
                    if side: side.pop(0)()
                if n == 3 and r == 1:
                    lds_blk(('o', 8), 0, 18)
                if n == 3 and r == 2:
                    A(f"buffer_store_dwordx4 v[{RES}:{RES+3}], v{vPst}, {WS}, s{sP0} offen{SC}")
                    A(f"""buffer_load_dwordx4 v[{VX}:{VX+3}], v{vL16}, {WS}, s{sVXa} offen sc1
buffer_load_dwordx4 v[{VX+4}:{VX+7}], v{vL16}, {WS}, s{sVXa} offen offset:1024 sc1""", manual=True)
    zero(26, 4)
    smf(26, OA[0], 'v[18:25]')
    ps(34, RES + 2, 0); ps(34, RES + 2, 1)
    smf(26, OA[1], blk_regs(('o', 8), 1))
    ps(34, RES + 2, 2)
    psum(38, RES + 3)
    A(f"buffer_store_dwordx4 v[{RES}:{RES+3}], v{vPst}, {WS}, s{sP1} offen{SC}")
    psum(26, 30)
    A(f"buffer_store_dword v30, v{vPst}, {WS}, s{sP2} offen{SC}")
    A.label(L('wend') + ' ;soft')
    A(f"ds_read_b128 v[58:61], v{vL16} offset:{L_SEL}", manual=True)
    stamp(3)
    A(f"""s_add_u32 s{sStep}, s{sStep}, 1
s_xor_b32 s{sPart}, s{sPart}, {PART_OFF ^ (PART_OFF + PART_SLOT)}""")
    ts(A, 8, SRD_WS, 22, sStep)
    pre_a()
    if 'c' in EXP:
        A(f"s_branch {L('gather')}")
    A(f"s_cmp_lg_u32 s{sRole}, 0")
    A(f"s_cbranch_scc1 {L('gather')}")
    def rpoll():
        for i in range(4):
            A(f"buffer_load_dwordx4 v[{26+4*i}:{29+4*i}], v{vL16}, {WS}, s{sRa} offen offset:{i*1024} sc1", manual=True)
    A(f"s_mov_b32 s{sCnt}, 0")
    A("s_waitcnt lgkmcnt(0) vmcnt(0)" if 'w' in EXP else "s_waitcnt lgkmcnt(0)")
    A.label(L('r_poll'))
    for n in range(NU):
        rpoll()
        for i in range(4):
            A(f"s_waitcnt vmcnt({3 - i})")
            A(f"v_mfma_f32_16x16x32_bf16 v[22:25], v[58:61], v[{26+4*i}:{29+4*i}], {'0' if i == 0 else 'v[22:25]'}")
        for r in range(22, 26):
            A(f"v_add_f32_dpp v{r}, v{r}, v{r} row_ror:8 row_mask:0xf bank_mask:0xf")
        A(f"""v_cmp_u_f32 vcc, v22, v22
v_cvt_pk_bf16_f32 v22, v22, v23
v_cvt_pk_bf16_f32 v23, v24, v25""")
        if dbg == 2: A(f"s_add_u32 s90, s90, 1")
        A(f"s_cbranch_vccz {L('r_go')} ;exit")
    A(f"""s_add_u32 s{sCnt}, s{sCnt}, 1
s_cmp_lt_u32 s{sCnt}, {POLL_MAX}
s_cbranch_scc1 {L('r_poll')} ;nofence
v_min_u32 v22, -2, v22
v_min_u32 v23, -2, v23""")
    A.label(L('r_go'))
    A(f"buffer_store_dwordx2 v[22:23], v{vMst}, {WS}, s{sMw} offen{SC}")
    stamp(4)
    A(f"s_branch {L('gather')}")
    for lab, buf, so, off in (('late1', R1, sGa, 1024), ('late2', R2, sGb, 0)):
        A.label(L(lab))
        A(f"s_mov_b32 s{sCnt}, 0")
        A.label(L(lab + 'l'))
        A(f"""buffer_load_dwordx4 v[{buf}:{buf+3}], v{vL16}, {WS}, s{so} offen offset:{off} sc1
s_add_u32 s{sCnt}, s{sCnt}, 1
v_max_u32 v{vDummy}, v{buf}, v{buf+2}
v_cmp_eq_u32 vcc, -1, v{vDummy}
s_cmp_gt_u32 s{sCnt}, {POLL_MAX}
s_cbranch_scc1 {L(lab + 'r')}
s_cbranch_vccnz {L(lab + 'l')} ;nofence
s_branch {L(lab + 'r')}""")
    if flags:
        A.label(L('kvw'))
        A("s_nop 3")
        kv_wait(A, L('kvl'), 26)
        A(f"s_branch {L('kvr')}")
    A.label(L('slow'))
    A("s_nop 15")
    A(f"""v_max3_f32 v30, v{sv[0]}, v{sv[1]}, v{sv[2]}
v_max3_f32 v31, v{sv[3]}, v{sv[4]}, v{sv[5]}
v_max3_f32 v30, v30, v{sv[6]}, v{sv[7]}
v_max3_f32 v31, v31, v{sv[8]}, v{sv[9]}
v_max_f32 v30, v30, v31
v_mov_b32 v31, v30
v_permlane32_swap_b32 v30, v31
v_max_f32 v30, v30, v31
v_mov_b32 v31, v30
v_permlane16_swap_b32 v30, v31
v_max_f32 v30, v30, v31""")
    for r in sv:
        A(f"v_sub_f32 v{r}, v{r}, v30")
    for r in sv:
        A(f"v_exp_f32 v{r}, v{r}")
    for n in range(4):
        A(f"v_cvt_pk_bf16_f32 v{PX+n}, v{sv[2*n]}, v{sv[2*n+1]}")
    A(f"""v_cvt_pk_bf16_f32 v20, v{SM}, v{SM+1}
v_mov_b32 v21, 0
v_mov_b32 v18, 0
v_mov_b32 v19, v20
v_mfma_f32_16x16x32_bf16 v[{O1}:{O1+3}], v[{VX+4}:{VX+7}], v[{PX}:{PX+3}], 0
v_mfma_f32_16x16x32_bf16 v[{O0}:{O0+3}], v[{VX}:{VX+3}], v[{PX}:{PX+3}], 0
v_mfma_f32_16x16x32_bf16 v[{LSUM}:{LSUM+3}], v[{ONE}:{ONE+3}], v[{PX}:{PX+3}], 0
v_mfma_f32_16x16x16_bf16 v[{O1}:{O1+3}], v[{VMr}:{VMr+1}], v[18:19], v[{O1}:{O1+3}]
v_mfma_f32_16x16x16_bf16 v[{O0}:{O0+3}], v[{VMr}:{VMr+1}], v[20:21], v[{O0}:{O0+3}]
v_mfma_f32_16x16x16_bf16 v[{LSUM}:{LSUM+3}], v[{ONE}:{ONE+1}], v[20:21], v[{LSUM}:{LSUM+3}]
v_rcp_f32 v31, v30""")
    norm()
    A(f"""s_mov_b64 exec, s[{sEx}:{sEx+1}]
ds_write_b128 v{vOw}, v[{PX}:{PX+3}]
s_mov_b64 exec, -1
s_waitcnt lgkmcnt(0)
s_branch {L('slowret')}""")
    A.label(L('last'))
    A("s_nop 15")
    A("s_waitcnt lgkmcnt(0)")
    A(f"""s_lshr_b32 s{sT1}, s{sW11}, 1
v_add_u32 v62, s{sT1}, v{vL8}
ds_read_b64_tr_b16 v[10:11], v62 offset:{L_QK}
ds_read_b64_tr_b16 v[12:13], v62 offset:{L_QK + 512}
s_add_u32 s{sT0}, s{sKMa}, {32 * 4096}
buffer_store_dwordx4 v[10:13], v{vL16}, {WS}, s{sT0} offen sc1
s_branch {endlab}""")
```

```python
from asmlib import Asm
from layout import *

def rng(f, b, n): return '%s[%d:%d]' % (f, b, b + n - 1)

def wreg(n):
    return ('a', 4 * n) if n < 64 else ('v', 80 + 4 * (n - 64))

def emit_lane_consts(A, vL16, vTr, t0, t1):
    A(f"""v_lshlrev_b32 v{vL16}, 4, v0
v_lshrrev_b32 v{t0}, 5, v0
v_lshlrev_b32 v{vTr}, 10, v{t0}
v_bfe_u32 v{t0}, v0, 4, 1
v_lshl_add_u32 v{vTr}, v{t0}, 8, v{vTr}
v_lshl_add_u32 v{vTr}, v{t0}, 5, v{vTr}
v_bfe_u32 v{t0}, v0, 2, 2
v_lshl_add_u32 v{vTr}, v{t0}, 6, v{vTr}
v_and_b32 v{t0}, 3, v0
v_lshl_add_u32 v{vTr}, v{t0}, 3, v{vTr}""")

def emit_wdma_off(A, dst, ldw_bytes, t0, t1, rowmap='nat'):
    if rowmap == 'nat':
        A(f"""v_bfe_u32 v{t0}, v0, 2, 2
v_bfe_u32 v{t1}, v0, 4, 1
v_lshl_add_u32 v{t0}, v{t1}, 3, v{t0}
v_lshrrev_b32 v{t1}, 5, v0
v_lshl_add_u32 v{t0}, v{t1}, 2, v{t0}""")
        d1 = 16
    else:
        A(f"""v_bfe_u32 v{t0}, v0, 2, 2
v_bfe_u32 v{t1}, v0, 4, 1
v_lshl_add_u32 v{t0}, v{t1}, 2, v{t0}
v_lshrrev_b32 v{t1}, 5, v0
v_lshl_add_u32 v{t0}, v{t1}, 4, v{t0}""")
        d1 = 8
    A(f"""v_mul_u32_u24 v{t0}, {ldw_bytes}, v{t0}
v_bfe_u32 v{t1}, v0, 4, 1
v_lshlrev_b32 v{t1}, 1, v{t1}
v_xor_b32 v{t1}, v{t1}, v0
v_and_b32 v{t1}, 3, v{t1}
v_lshl_add_u32 v{dst}, v{t1}, 4, v{t0}""")
    return d1

def emit_wload(A, items, vTr, vTr1, sLds, sT, depth=16, vt=None):
    n = len(items)
    def issue(k):
        srd, voff, sb, imm, d1, f0, f1 = items[k]
        slot = (k % depth) * 2048
        for i in range(2):
            A(f"s_add_u32 m0, s{sLds}, {slot + i * 1024}")
            A(f"s_add_u32 s{sT}, s{sb}, {imm + i * d1}")
            A(f"buffer_load_dwordx4 v{voff}, s[{srd}:{srd+3}], s{sT} offen lds")
    for k in range(min(depth, n)):
        issue(k)
    G = 4
    assert depth % G == 0 and n % 2 == 0
    k = 0
    while k < n:
        e = min(k + G, n)
        issued = min(k + depth, n)
        A(f"s_waitcnt vmcnt({2 * (issued - e)})")
        for q in range(k, e):
            slot = (q % depth) * 2048
            for v, fr in ((vTr, items[q][5]), (vTr1, items[q][6])):
                f, b = wreg(fr)
                A(f"ds_read_b64_tr_b16 {rng(f, b, 2)}, v{v} offset:{slot}")
                A(f"ds_read_b64_tr_b16 {rng(f, b + 2, 2)}, v{v} offset:{slot + 512}")
        A("s_waitcnt lgkmcnt(0)")
        for q in range(issued, min(e + depth, n)):
            issue(q)
        k = e

def emit_xdma_off(A, dst, ld_bytes, t0):
    A(f"""v_and_b32 v{t0}, 15, v0
v_mul_u32_u24 v{t0}, {ld_bytes}, v{t0}
v_lshrrev_b32 v{dst}, 4, v0
v_lshl_add_u32 v{dst}, v{dst}, 4, v{t0}""")

def emit_xdma(A, srd, voff, sRow, sW9, sLdsBuf, sT, sT2, ld_bytes, mods=''):
    for k in range(9):
        A(f"s_add_u32 m0, s{sLdsBuf}, {k * 1024}")
        A(f"s_add_u32 s{sT}, s{sRow}, {k * 64}")
        A(f"buffer_load_dwordx4 v{voff}, s[{srd}:{srd+3}], s{sT} offen{mods} lds")

def emit_group_mma(A, tiles, vX, XB, acc0, side=None):
    def rd(u):
        for tt in range(2):
            b = XB[2 * (u & 1) + tt]
            A(f"ds_read_b128 v[{b}:{b+3}], v{vX} offset:{(tt * 18 + u) * 1024}")
    rd(0); rd(1)
    for u in range(18):
        for t, (fb, o) in enumerate(tiles):
            f, b = wreg(fb + u)
            w = rng(f, b, 4)
            for tt in range(2):
                x = rng('v', XB[2 * (u & 1) + tt], 4)
                a = acc0 + (2 * t + tt) * 4
                c = '0' if u == 0 else rng('v', a, 4)
                if o == 'F':
                    A(f"v_mfma_f32_16x16x32_bf16 v[{a}:{a+3}], {w}, {x}, {c}")
                else:
                    A(f"v_mfma_f32_16x16x32_bf16 v[{a}:{a+3}], {x}, {w}, {c}")
        if u + 2 < 18:
            rd(u + 2)
        if side and u in side:
            side[u]()

def emit_init_wait(A, lab, sDBG, sW, sT, sCnt, v0_, pollmax):
    A(f"""s_cmp_lg_u32 s{sW}, 0
s_cbranch_scc1 {lab}_d
v_mov_b32 v{v0_}, 128
s_mov_b32 s{sCnt}, 0""")
    A.label(lab)
    A(f"""global_load_dword v{v0_+1}, v{v0_}, s[{sDBG}:{sDBG+1}] sc1
s_add_u32 s{sCnt}, s{sCnt}, 1
v_readfirstlane_b32 s{sT}, v{v0_+1}
s_cmp_gt_u32 s{sCnt}, {pollmax}
s_cbranch_scc1 {lab}_d
s_and_b32 s{sT}, s{sT}, 0xff
s_cmp_ge_u32 s{sT}, 32
s_cbranch_scc1 {lab}_d
s_sleep 8
s_branch {lab}""")
    A.label(lab + '_d')
```

```python
import os
from layout import *
PROF = bool(os.environ.get('PROF'))
TS_OFF = DBG_OFF + 0x300000
def ts(A, slot, srd, vt, sslot=None):
    if not PROF: return
    A(f"""s_memrealtime s[92:93]
s_lshl_b32 s94, s2, 9
s_add_u32 s94, s94, {TS_OFF + 4 * slot}""")
    if sslot is not None:
        A(f"s_lshl_b32 s95, s{sslot}, 2\ns_add_u32 s94, s94, s95")
    A(f"""s_waitcnt lgkmcnt(0)
v_mov_b32 v{vt}, s92
v_mov_b32 v{vt+1}, 0
s_mov_b64 exec, 1
buffer_store_dword v{vt}, v{vt+1}, s[{srd}:{srd+3}], s94 offen
s_mov_b64 exec, -1""")
```

```python
from asmlib import Asm
from layout import *
from gemm import *
from chain import fbits, srd
import math
from prof import ts
POLL_MAX = 400000
CA = (18 ** -0.5) * math.log2(math.e)

sA, sW = 3, 4
SXA, SWQ, SWO, SWOB, SWS, SOUT = 8, 12, 16, 20, 24, 76
sDBG = 28
sT0, sT1, sT2, sLds, sCol, sSeg, sPair, sBuf, sXw, sLw, sSc, sOut, sCnt, sNext, sBufN, sFirst = range(32, 48)
WS = f"s[{SWS}:{SWS+3}]"
OUT = f"s[{SOUT}:{SOUT+3}]"
vL16, vTr, vTr1, vWo, vXo, vX, vTr0 = 1, 2, 3, 4, 5, 6, 7
XB = [8, 12, 16, 20]
ACC = 24
DEPTH = 12

def a_setup(A):
    A(f"""s_load_dwordx4 s[60:63], s[0:1], 0
s_load_dwordx2 s[64:65], s[0:1], 16
s_load_dwordx2 s[66:67], s[0:1], 64
s_load_dwordx2 s[68:69], s[0:1], 80
s_load_dwordx4 s[72:75], s[0:1], 88
v_lshrrev_b32 v10, 6, v0
v_and_b32 v0, 63, v0
v_readfirstlane_b32 s{sW}, v10
s_waitcnt lgkmcnt(0)""")
    srd(A, SXA, 60, 2048 * 1152)
    srd(A, SWQ, 62, 576 * 3456)
    srd(A, SWO, 64, 576 * 1152)
    srd(A, SWOB, 66, 4096 * 1152)
    srd(A, SWS, 74, WS_BYTES)
    srd(A, SOUT, 68, 2048 * 2304)
    A(f"""s_mov_b32 s{sDBG}, s72
s_mov_b32 s{sDBG+1}, s73""")
    ts(A, 0, SWS, 10)
    emit_lane_consts(A, vL16, vTr0, 10, 11)
    emit_xdma_off(A, vXo, 1152, 10)
    A(f"""s_lshr_b32 s{sT0}, s{sW}, 1
s_mul_i32 s{sXw}, s{sT0}, {16 * 1152}
s_and_b32 s{sT0}, s{sW}, 1
s_mul_i32 s{sT0}, s{sT0}, 576
s_add_u32 s{sXw}, s{sXw}, s{sT0}
s_mul_i32 s{sLw}, s{sW}, 9216""")

def divmod_const(A, sq, sr, sx, d, st):
    m = (1 << 16) // d + 1
    A(f"""s_mul_i32 s{sq}, s{sx}, {m}
s_lshr_b32 s{sq}, s{sq}, 16
s_mul_i32 s{st}, s{sq}, {d}
s_sub_u32 s{sr}, s{sx}, s{st}""")

def wait_flags(A, lab, soff, nlanes=64):
    A(f"""s_cmp_lg_u32 s{sW}, 0
s_cbranch_scc1 {lab}_d
v_lshrrev_b32 v10, 1, v{vL16}
v_min_u32 v10, {8 * (nlanes - 1)}, v10
s_mov_b32 s{sCnt}, 0""")
    A.label(lab)
    A(f"""buffer_load_dwordx2 v[20:21], v10, {WS}, s{soff} offen sc1
s_add_u32 s{sCnt}, s{sCnt}, 1
v_and_b32 v20, v20, v21
v_cmp_ne_u32 vcc, 1, v20
s_cmp_gt_u32 s{sCnt}, {POLL_MAX}
s_cbranch_scc1 {lab}_d
s_cbranch_vccz {lab}_d
s_sleep 8
s_branch {lab}""")
    A.label(lab + '_d')
    A("s_barrier")

def signal_wg(A, lab, base):
    A(f"""s_waitcnt vmcnt(0)
s_barrier
s_cmp_lg_u32 s{sW}, 0
s_cbranch_scc1 {lab}
s_lshl_b32 s{sT0}, s{sA}, 2
s_add_u32 s{sT0}, s{sT0}, {base}
v_mov_b32 v11, 1
s_mov_b64 exec, 1
buffer_store_dword v11, v{vL16}, {WS}, s{sT0} offen sc1
s_mov_b64 exec, -1""")
    A.label(lab)

def gemm_phase(A, tag, SX, xbase, xmods, SWt, ldw, stride, orient, epi, pre_x=None):
    L = lambda x: f'{tag}_{x}'
    d1 = emit_wdma_off(A, vWo, ldw, 10, 11)
    A(f"""s_mul_i32 s{sLds}, s{sW}, {DEPTH * 2048}
v_add_u32 v{vTr}, s{sLds}, v{vTr0}
v_xor_b32 v{vTr1}, 32, v{vTr}
s_lshl_b32 s{sCol}, s{sPair}, 6""")
    items = [(SWt, vWo, sCol, u * 32 * ldw, d1 * ldw, u, 18 + u) for u in range(18)]
    def xdma(sseg, sbuf):
        A(f"""s_min_u32 s{sT1}, s{sseg}, 63
s_mul_i32 s{sT1}, s{sT1}, {32 * 1152}
s_add_u32 s{sT1}, s{sT1}, s{sXw}
s_add_u32 s{sT1}, s{sT1}, {xbase}
s_add_u32 s{sT2}, s{sbuf}, s{sLw}""")
        emit_xdma(A, SX, vXo, sT1, None, sT2, sT0, None, 1152, xmods)
    A(f"""s_mov_b32 s{sSeg}, s{sFirst}
s_mov_b32 s{sBuf}, {3 * 36864}
s_add_u32 s{sNext}, s{sFirst}, {stride}
s_mov_b32 s{sBufN}, 0""")
    if pre_x is None:
        xdma(sSeg, sBuf)
    emit_wload(A, items, vTr, vTr1, sLds, sT0, DEPTH)
    if pre_x is not None:
        pre_x()
        xdma(sSeg, sBuf)
    A("s_barrier")
    xdma(sNext, sBufN)
    A("s_waitcnt vmcnt(9)")
    A.label(L('loop'))
    A("s_barrier")
    A(f"""s_add_u32 s{sNext}, s{sNext}, {stride}
s_add_u32 s{sBufN}, s{sBufN}, 36864
s_cmp_eq_u32 s{sBufN}, {4 * 36864}
s_cselect_b32 s{sBufN}, 0, s{sBufN}""")
    xdma(sNext, sBufN)
    A(f"v_add_u32 v{vX}, s{sBuf}, v{vL16}")
    emit_group_mma(A, [(0, orient), (18, orient)], vX, XB, ACC)
    A("s_waitcnt vmcnt(9)")
    epi()
    A(f"""s_add_u32 s{sSeg}, s{sSeg}, {stride}
s_add_u32 s{sBuf}, s{sBuf}, 36864
s_cmp_eq_u32 s{sBuf}, {4 * 36864}
s_cselect_b32 s{sBuf}, 0, s{sBuf}
s_cmp_lt_u32 s{sSeg}, 64
s_cbranch_scc1 {L('loop')}""")
    A("s_waitcnt vmcnt(0)")

def gen_a1(A, flags, tag='A1'):
    L = lambda x: f'{tag}_{x}'
    A(f"s_cmp_ge_u32 s{sA}, 126")
    A(f"s_cbranch_scc1 {L('skip')}")
    divmod_const(A, sT1, sFirst, sA, 9, sT0)
    A(f"""s_lshl_b32 s{sPair}, s{sT1}, 2
s_add_u32 s{sPair}, s{sPair}, s{sW}
s_min_u32 s{sPair}, s{sPair}, 53
s_cmp_lt_u32 s{sPair}, 18
s_cselect_b32 s{sSc}, {fbits(CA):#x}, 1.0
s_cmp_ge_u32 s{sT1}, 9
s_cbranch_scc1 {L('v')}""")
    A(f"""v_and_b32 v10, 15, v0
v_mul_u32_u24 v10, 2304, v10
v_lshrrev_b32 v11, 4, v0
v_lshl_add_u32 v56, v11, 3, v10""")
    def epi_qk():
        A(f"""s_mul_i32 s{sOut}, s{sSeg}, {32 * 2304}
s_add_u32 s{sOut}, s{sOut}, s{sCol}
s_add_u32 s{sOut}, s{sOut}, {QKA_OFF}
s_add_u32 s{sT0}, s{sOut}, {16 * 2304}""")
        for t in range(2):
            for tt in range(2):
                a = ACC + (2 * t + tt) * 4; d = 58 + 2 * (2 * t + tt)
                for r in range(4):
                    A(f"v_mul_f32 v{a+r}, s{sSc}, v{a+r}")
                A(f"v_cvt_pk_bf16_f32 v{d}, v{a}, v{a+1}")
                A(f"v_cvt_pk_bf16_f32 v{d+1}, v{a+2}, v{a+3}")
                A(f"buffer_store_dwordx2 v[{d}:{d+1}], v56, {WS}, s{sT0 if tt else sOut} offen offset:{32*t} sc1")
    gemm_phase(A, tag + 'q', SXA, 0, '', SWQ, 3456, 9, 'F', epi_qk)
    A(f"s_branch {L('done')}")
    A.label(L('v'))
    A(f"""v_and_b32 v10, 15, v0
v_lshlrev_b32 v10, 12, v10
v_bfe_u32 v11, v0, 4, 1
v_lshl_add_u32 v10, v11, 4, v10
v_lshrrev_b32 v11, 5, v0
v_lshl_add_u32 v56, v11, 3, v10""")
    def epi_v():
        A(f"""s_sub_u32 s{sOut}, s{sPair}, 36
s_lshl_b32 s{sOut}, s{sOut}, 17
s_lshl_b32 s{sT0}, s{sSeg}, 6
s_add_u32 s{sOut}, s{sOut}, s{sT0}
s_add_u32 s{sOut}, s{sOut}, {VTA_OFF}
s_add_u32 s{sT0}, s{sOut}, 65536""")
        for t in range(2):
            for tt in range(2):
                a = ACC + (2 * t + tt) * 4; d = 58 + 2 * (2 * t + tt)
                A(f"v_cvt_pk_bf16_f32 v{d}, v{a}, v{a+1}")
                A(f"v_cvt_pk_bf16_f32 v{d+1}, v{a+2}, v{a+3}")
                A(f"buffer_store_dwordx2 v[{d}:{d+1}], v56, {WS}, s{sT0 if t else sOut} offen offset:{32*tt} sc1")
    gemm_phase(A, tag + 'v', SXA, 0, '', SWQ, 3456, 9, 'T', epi_v)
    A.label(L('done'))
    if flags:
        emit_init_wait(A, L('iw'), sDBG, sW, sT0, sCnt, 10, POLL_MAX)
        signal_wg(A, L('sg'), FLG_OFF + 2048)
    A.label(L('skip'))
    A("s_barrier")

def gen_a3(A, flags, tag='A3'):
    L = lambda x: f'{tag}_{x}'
    A(f"s_cmp_ge_u32 s{sA}, 125")
    A(f"s_cbranch_scc1 {L('skip')}")
    divmod_const(A, sT1, sFirst, sA, 25, sT0)
    A(f"""s_lshl_b32 s{sPair}, s{sT1}, 2
s_add_u32 s{sPair}, s{sPair}, s{sW}
s_min_u32 s{sPair}, s{sPair}, 17
v_and_b32 v10, 15, v0
v_mul_u32_u24 v10, 2304, v10
v_lshrrev_b32 v11, 4, v0
v_lshl_add_u32 v56, v11, 3, v10""")
    def epi():
        A(f"""s_mul_i32 s{sOut}, s{sSeg}, {32 * 2304}
s_add_u32 s{sOut}, s{sOut}, s{sCol}
s_add_u32 s{sT0}, s{sOut}, {16 * 2304}""")
        for t in range(2):
            for tt in range(2):
                a = ACC + (2 * t + tt) * 4; d = 58 + 2 * (2 * t + tt)
                A(f"v_cvt_pk_bf16_f32 v{d}, v{a}, v{a+1}")
                A(f"v_cvt_pk_bf16_f32 v{d+1}, v{a+2}, v{a+3}")
                A(f"buffer_store_dwordx2 v[{d}:{d+1}], v56, {OUT}, s{sT0 if tt else sOut} offen offset:{32*t}")
    def pre():
        if flags:
            A(f"s_mov_b32 s{sT1}, {FLG_OFF + 4096 + 2048}")
            wait_flags(A, L('w'), sT1)
    gemm_phase(A, tag, SWS, OA_OFF, ' sc1', SWO, 1152, 25, 'F', epi, pre_x=pre)
    A.label(L('skip'))
    A("s_barrier")

def gen_a4(A, flags, tag='A4'):
    L = lambda x: f'{tag}_{x}'
    ts(A, 5, SWS, 10)
    A(f"s_cmp_ge_u32 s{sA}, 120")
    A(f"s_cbranch_scc1 {L('skip')}")
    divmod_const(A, sSeg, sPair, sA, 12, sT0)
    d1 = emit_wdma_off(A, vWo, 1152, 10, 11, 'perm')
    D4 = 16
    A(f"""s_mul_i32 s{sLds}, s{sW}, {D4 * 2048}
v_add_u32 v{vTr}, s{sLds}, v{vTr0}
v_xor_b32 v{vTr1}, 32, v{vTr}
s_mul_i32 s{sCol}, s{sPair}, 96
s_mul_i32 s{sT0}, s{sW}, {1024 * 1152}
s_add_u32 s{sT2}, s{sCol}, s{sT0}""")
    items = []
    for ks in range(32):
        items.append((SWOB, vWo, sT2, ks * 32 * 1152, d1 * 1152, ks, 32 + ks))
        items.append((SWOB, vWo, sT2, ks * 32 * 1152 + 64, d1 * 1152, 64 + ks, 96))
    emit_wload(A, items, vTr, vTr1, sLds, sT0, D4)
    A("s_barrier")
    ts(A, 6, SWS, 10)
    NBUF = 20
    bufs = [8 + 4 * i for i in range(10)] + [208 + 4 * i for i in range(10)]
    AC = 48
    A(f"""s_mul_i32 s{sT0}, s{sW}, 6144
v_add_u32 v72, s{sT0}, v{vL16}
s_lshl_b32 s{sT0}, s{sW}, 11
v_add_u32 v73, s{sT0}, v{vL16}
v_and_b32 v10, 15, v0
v_mul_u32_u24 v10, 2304, v10
v_lshrrev_b32 v11, 4, v0
v_lshl_add_u32 v74, v11, 3, v10""")
    A.label(L('loop'))
    if flags:
        A(f"""s_lshr_b32 s{sT1}, s{sSeg}, 1
s_lshl_b32 s{sT1}, s{sT1}, 12
s_and_b32 s{sT2}, s{sSeg}, 1
s_lshl_b32 s{sT2}, s{sT2}, 9
s_add_u32 s{sT1}, s{sT1}, s{sT2}
s_add_u32 s{sT1}, s{sT1}, {FLG_OFF + 1024}""")
        wait_flags(A, L('w'), sT1)
    A(f"""s_lshl_b32 s{sT0}, s{sSeg}, 18
s_lshl_b32 s{sT1}, s{sW}, 15
s_add_u32 s{sT0}, s{sT0}, s{sT1}
s_add_u32 s{sT0}, s{sT0}, {OB_OFF}
s_add_u32 s{sT1}, s{sT0}, {1 << 17}""")
    def ld(n):
        ks, tt = n >> 1, n & 1
        s_ = sT1 if tt else sT0
        if ks and ks % 4 == 0:
            A(f"s_add_u32 s{s_}, s{s_}, 4096")
        b = bufs[n % NBUF]
        A(f"buffer_load_dwordx4 v[{b}:{b+3}], v{vL16}, {WS}, s{s_} offen offset:{(ks % 4) * 1024} sc1")
    for n in range(NBUF):
        ld(n)
    for n in range(64):
        ks, tt = n >> 1, n & 1
        b = bufs[n % NBUF]
        for t in range(3):
            f, wb = wreg(t * 32 + ks)
            a = AC + (2 * t + tt) * 4
            A(f"v_mfma_f32_16x16x32_bf16 v[{a}:{a+3}], {rng(f, wb, 4)}, v[{b}:{b+3}], {'0' if ks == 0 else rng('v', a, 4)}")
        if n + NBUF < 64:
            ld(n + NBUF)
    for i in range(6):
        A(f"ds_write_b128 v72, v[{AC+4*i}:{AC+4*i+3}] offset:{i*1024}")
    A("s_waitcnt lgkmcnt(0)")
    A("s_barrier")
    A(f"s_cmp_eq_u32 s{sW}, 3")
    A(f"s_cbranch_scc1 {L('nored')}")
    for tt in range(2):
        for p in range(4):
            b = 8 + 16 * tt + 4 * p
            A(f"ds_read_b128 v[{b}:{b+3}], v73 offset:{p * 6144 + tt * 1024}")
    A(f"""s_mul_i32 s{sOut}, s{sSeg}, {32 * 2304}
s_add_u32 s{sOut}, s{sOut}, s{sCol}
s_lshl_b32 s{sT0}, s{sW}, 5
s_add_u32 s{sOut}, s{sOut}, s{sT0}
s_add_u32 s{sOut}, s{sOut}, 1152
s_add_u32 s{sT0}, s{sOut}, {16 * 2304}""")
    for tt in range(2):
        b = 8 + 16 * tt
        for h in range(2):
            A(f"v_pk_add_f32 v[{b+2*h}:{b+2*h+1}], v[{b+2*h}:{b+2*h+1}], v[{b+4+2*h}:{b+5+2*h}]")
            A(f"v_pk_add_f32 v[{b+8+2*h}:{b+9+2*h}], v[{b+8+2*h}:{b+9+2*h}], v[{b+12+2*h}:{b+13+2*h}]")
            A(f"v_pk_add_f32 v[{b+2*h}:{b+2*h+1}], v[{b+2*h}:{b+2*h+1}], v[{b+8+2*h}:{b+9+2*h}]")
            A(f"v_cvt_pk_bf16_f32 v{b+4+h}, v{b+2*h}, v{b+2*h+1}")
        A(f"buffer_store_dwordx2 v[{b+4}:{b+5}], v74, {OUT}, s{sT0 if tt else sOut} offen")
    A.label(L('nored'))
    ts(A, 8, SWS, 76, sSeg)
    A(f"""s_barrier
s_add_u32 s{sSeg}, s{sSeg}, 10
s_cmp_lt_u32 s{sSeg}, 64
s_cbranch_scc1 {L('loop')}""")
    A.label(L('skip'))

def gen_a2(A, flags, tag='A2'):
    L = lambda x: f'{tag}_{x}'
    LK, LT, LV = 0, 65536, 73728
    sHd, sQ0, sIt, sPass, sBig = sSeg, sFirst, sNext, sBufN, sSc
    A(f"""s_lshr_b32 s{sHd}, s{sA}, 2
s_and_b32 s{sQ0}, s{sA}, 3
s_lshl_b32 s{sQ0}, s{sQ0}, 2
s_add_u32 s{sQ0}, s{sQ0}, s{sW}
s_lshl_b32 s{sQ0}, s{sQ0}, 7
s_mul_i32 s{sCol}, s{sHd}, 36
s_mov_b32 s{sBig}, {fbits(2.0**60):#x}""")
    A(f"""v_and_b32 v10, 31, v0
v_mul_u32_u24 v10, 2304, v10
v_lshrrev_b32 v11, 5, v0
v_lshl_add_u32 v12, v11, 4, v10
v_mul_u32_u24 v13, 2304, v0""")
    for p in range(5):
        A(f"""v_add_u32 v10, {64 * p}, v0
v_mul_u32_u24 v11, 3277, v10
v_lshrrev_b32 v11, 16, v11
v_mul_u32_u24 v19, 20, v11
v_sub_u32 v10, v10, v19
v_min_u32 v10, 17, v10
v_lshlrev_b32 v10, 12, v10
v_lshl_add_u32 v{14+p}, v11, 4, v10""")
    ts(A, 1, SWS, 10)
    if flags:
        emit_init_wait(A, L('iw'), sDBG, sW, sT0, sCnt, 10, POLL_MAX)
        A(f"s_mov_b32 s{sT1}, {FLG_OFF + 2048}")
        wait_flags(A, L('w'), sT1, 63)
    ts(A, 2, SWS, 10)
    A(f"""s_mul_i32 s{sT1}, s{sW}, {512 * 2304}
s_add_u32 s{sT1}, s{sT1}, s{sCol}
s_add_u32 s{sT1}, s{sT1}, {QKA_OFF + 1152}
s_lshl_b32 s{sT2}, s{sW}, 14""")
    for i in range(16):
        A(f"""s_add_u32 m0, s{sT2}, {LK + i * 1024}
s_add_u32 s{sT0}, s{sT1}, {i * 32 * 2304}
buffer_load_dwordx4 v12, {WS}, s{sT0} offen sc1 lds""")
    A(f"s_lshl_b32 s{sT2}, s{sW}, 11")
    for i in range(8):
        A(f"""s_add_u32 m0, s{sT2}, {LT + i * 256}
s_add_u32 s{sT0}, s{sT1}, {i * 64 * 2304 + 32}
buffer_load_dword v13, {WS}, s{sT0} offen sc1 lds""")
    A(f"""s_mul_i32 s{sT1}, s{sHd}, {18 * 4096}
s_lshl_b32 s{sT0}, s{sW}, 10
s_add_u32 s{sT1}, s{sT1}, s{sT0}
s_add_u32 s{sT1}, s{sT1}, {VTA_OFF}
s_mul_i32 s{sT2}, s{sW}, 20480""")
    for b in range(4):
        for p in range(5):
            A(f"""s_add_u32 m0, s{sT2}, {LV + b * 5120 + p * 1024}
s_add_u32 s{sT0}, s{sT1}, {b * 256}
buffer_load_dwordx4 v{14+p}, {WS}, s{sT0} offen sc1 lds""")
    QM = lambda i: 32 + 8 * i
    QT = lambda i: 36 + 8 * i
    A(f"""s_mul_i32 s{sT1}, s{sQ0}, 2304
s_add_u32 s{sT1}, s{sT1}, s{sCol}
s_add_u32 s{sT1}, s{sT1}, {QKA_OFF}""")
    for i in range(4):
        A(f"""s_add_u32 s{sT0}, s{sT1}, {i * 32 * 2304}
buffer_load_dwordx4 v[{QM(i)}:{QM(i)+3}], v12, {WS}, s{sT0} offen sc1
buffer_load_dword v{QT(i)}, v12, {WS}, s{sT0} offen offset:32 sc1
v_mov_b32 v{QT(i)+1}, 0
v_mov_b64 v[{QT(i)+2}:{QT(i)+3}], 0""")
    A("v_cmp_gt_u32 vcc, 32, v0")
    for i in range(4):
        A(f"v_cndmask_b32 v{QT(i)}, 0, v{QT(i)}, vcc")
    A(f"""v_mul_u32_u24 v10, 320, v0
s_add_u32 s{sT2}, s{sT2}, {LV + 18 * 16}
v_add_u32 v10, s{sT2}, v10
v_mov_b32 v20, 0x3f803f80
v_mov_b32 v21, 0x3f803f80
v_mov_b32 v22, 0x3f803f80
v_mov_b32 v23, 0x3f803f80
s_waitcnt vmcnt(0)
ds_write_b128 v10, v[20:23]""")
    KM = [64, 80]; KT = [68, 84]; VF = [72, 88]
    S = [96, 112]; P0, P1 = 128, 132
    O = lambda i: 16 * i
    NM = lambda i: 136 + 16 * i
    aK, aT, aV_ = 24, 25, 26
    for par in range(2):
        A(f"v_mov_b32 v{KT[par]+1}, 0")
        A(f"v_mov_b64 v[{KT[par]+2}:{KT[par]+3}], 0")
    for r in range(NM(0), NM(4), 2):
        A(f"v_mov_b64 v[{r}:{r+1}], 0")
    A(f"s_mov_b32 s{sPass}, 0")
    A("s_waitcnt lgkmcnt(0)")
    A("s_barrier")
    ts(A, 3, SWS, 10)
    def addr_init():
        A(f"""v_mov_b32 v{aK}, v{vL16}
v_and_b32 v10, 31, v0
v_lshlrev_b32 v{aT}, 2, v10
v_add_u32 v{aT}, {LT}, v{aT}
v_min_u32 v10, 19, v10
v_lshlrev_b32 v10, 4, v10
v_lshrrev_b32 v11, 5, v0
v_mul_u32_u24 v11, 320, v11
v_add3_u32 v{aV_}, v10, v11, s{sT0}""")
    def rdK(par, off, manual=False):
        A(f"ds_read_b128 v[{KM[par]}:{KM[par]+3}], v{aK} offset:{off * 1024}", manual)
        A(f"ds_read_b32 v{KT[par]}, v{aT} offset:{off * 128}", manual)
    def rdV(par, off, manual=False):
        A(f"ds_read_b128 v[{VF[par]}:{VF[par]+3}], v{aV_} offset:{off * 1280}", manual)
        A(f"ds_read_b128 v[{VF[par]+4}:{VF[par]+7}], v{aV_} offset:{off * 1280 + 640}", manual)
    def qk(par, i, sb, part):
        if part == 0:
            A(f"v_mfma_f32_32x32x16_bf16 v[{sb}:{sb+15}], v[{KM[par]}:{KM[par]+3}], v[{QM(i)}:{QM(i)+3}], v[{NM(i)}:{NM(i)+15}]")
        else:
            A(f"v_mfma_f32_32x32x16_bf16 v[{sb}:{sb+15}], v[{KT[par]}:{KT[par]+3}], v[{QT(i)}:{QT(i)+3}], v[{sb}:{sb+15}]")
    def pv(par, i, half):
        v = VF[par] + 4 * half; p = P1 if half else P0
        A(f"v_mfma_f32_32x32x16_bf16 a[{O(i)}:{O(i)+15}], v[{v}:{v+3}], v[{p}:{p+3}], a[{O(i)}:{O(i)+15}]")
    A.label(L('pass'))
    A(f"s_mov_b32 s{sT0}, {LV}")
    addr_init()
    rdK(0, 0); rdV(0, 0); rdV(1, 0)
    for r in range(64):
        A(f"v_accvgpr_write_b32 a{r}, 0")
    A(f"v_mov_b64 v[{P1}:{P1+1}], 0")
    A(f"v_mov_b64 v[{P1+2}:{P1+3}], 0")
    qk(0, 0, S[0], 0); qk(0, 0, S[0], 1)
    A(f"s_mov_b32 s{sIt}, 0")
    A("s_waitcnt lgkmcnt(0)")
    A("s_nop 7")
    A.label(L('loop'))
    for n in range(8):
        par, i = n >> 2, n & 3
        npar, ni = ((n + 1) >> 2) & 1, (n + 1) & 3
        ppar, pi = ((n - 1) >> 2) & 1, (n - 1) & 3
        sb, nsb = S[n & 1], S[(n + 1) & 1]
        def ex(q):
            for r in range(4 * q, 4 * q + 4):
                A(f"v_exp_f32 v{sb+r}, v{sb+r}")
        def cv(q):
            d = (P0, P0 + 2, P1, P1 + 2)[q]
            A(f"v_cvt_pk_bf16_f32 v{d}, v{sb+4*q}, v{sb+4*q+1}")
            A(f"v_cvt_pk_bf16_f32 v{d+1}, v{sb+4*q+2}, v{sb+4*q+3}")
        if i == 3:
            A("s_waitcnt lgkmcnt(0)")
        qk(npar, ni, nsb, 0)
        if i == 0:
            rdK(1 - par, par + 1, True)
        ex(0)
        qk(npar, ni, nsb, 1)
        cv(0); ex(1)
        pv(ppar, pi, 1)
        if i == 0:
            rdV(1 - par, par + 1, True)
        cv(1); ex(2)
        pv(par, i, 0)
        cv(2); ex(3)
        if n == 7:
            A(f"""v_add_u32 v{aK}, 2048, v{aK}
v_add_u32 v{aT}, 256, v{aT}
v_add_u32 v{aV_}, 2560, v{aV_}
s_add_u32 s{sIt}, s{sIt}, 1
s_cmp_lt_u32 s{sIt}, 32""")
        cv(3)
    A(f"s_cbranch_scc1 {L('loop')} ;nofence")
    pv(1, 3, 1)
    A("s_waitcnt lgkmcnt(0)")
    for i in range(4):
        A(f"""v_accvgpr_read_b32 v{100+2*i}, a{O(i)+10}
v_accvgpr_read_b32 v{101+2*i}, a{O(i)+10}
v_permlane32_swap_b32 v{100+2*i}, v{101+2*i}
v_rcp_f32 v{101+2*i}, v{100+2*i}""")
    A(f"""v_max3_f32 v108, v100, v101, v102
v_max3_f32 v109, v103, v104, v105
v_max3_f32 v108, v108, v106, v107
v_add_f32 v110, v100, v102
v_add_f32 v111, v104, v106
v_add_f32 v110, v110, v111
v_max_f32 v108, v108, v109
v_cmp_nlt_f32 vcc, v108, s{sBig}
v_cmp_u_f32 s[50:51], v110, v110
s_or_b64 vcc, vcc, s[50:51]
s_cmp_lg_u32 s{sPass}, 0
s_cbranch_scc1 {L('store')}
s_cbranch_vccz {L('store')}""")
    A(f"s_mov_b32 s{sT0}, {LV}")
    addr_init()
    for i in range(4):
        A(f"v_mov_b32 v{200+i}, 0xff800000")
    A(f"s_mov_b32 s{sIt}, 0")
    A.label(L('mx'))
    rdK(0, 0)
    for i in range(4):
        sb = S[i & 1]
        qk(0, i, sb, 0); qk(0, i, sb, 1)
        for r in range(0, 16, 2):
            A(f"v_max3_f32 v{200+i}, v{200+i}, v{sb+r}, v{sb+r+1}")
    A(f"""v_add_u32 v{aK}, 1024, v{aK}
v_add_u32 v{aT}, 128, v{aT}
s_add_u32 s{sIt}, s{sIt}, 1
s_cmp_lt_u32 s{sIt}, 64
s_cbranch_scc1 {L('mx')}""")
    for i in range(4):
        A(f"""v_mov_b32 v204, v{200+i}
v_permlane32_swap_b32 v{200+i}, v204
v_max_f32 v204, v204, v{200+i}
v_sub_f32 v204, 0, v204""")
        for r in range(16):
            A(f"v_mov_b32 v{NM(i)+r}, v204")
    A(f"s_mov_b32 s{sPass}, 1")
    A(f"s_branch {L('pass')}")
    A.label(L('store'))
    ts(A, 4, SWS, 10)
    A(f"""v_and_b32 v10, 31, v0
v_mul_u32_u24 v10, 1152, v10
v_lshrrev_b32 v11, 5, v0
v_lshl_add_u32 v12, v11, 3, v10
s_mul_i32 s{sT1}, s{sQ0}, 1152
s_add_u32 s{sT1}, s{sT1}, s{sCol}
s_add_u32 s{sT1}, s{sT1}, {OA_OFF}""")
    for i in range(4):
        o = NM(i)
        for r in range(10):
            A(f"v_accvgpr_read_b32 v{o+r}, a{O(i)+r}")
        for r in range(10):
            A(f"v_mul_f32 v{o+r}, v{o+r}, v{101+2*i}")
        for r in range(5):
            A(f"v_cvt_pk_bf16_f32 v{o+10+r}, v{o+2*r}, v{o+2*r+1}")
        A(f"""s_add_u32 s{sT0}, s{sT1}, {i * 32 * 1152}
buffer_store_dwordx2 v[{o+10}:{o+11}], v12, {WS}, s{sT0} offen sc1
buffer_store_dwordx2 v[{o+12}:{o+13}], v12, {WS}, s{sT0} offen offset:16 sc1
s_mov_b32 exec_hi, 0
buffer_store_dword v{o+14}, v12, {WS}, s{sT0} offen offset:32 sc1
s_mov_b64 exec, -1""")
    if flags:
        signal_wg(A, L('sg'), FLG_OFF + 4096 + 2048)
    A("s_waitcnt vmcnt(0)")
    A("s_barrier")
```

```python
from asmlib import Asm
from layout import *
from gemm import *
from chain import C_SCALE, fbits, srd
from prof import ts
POLL_MAX = 200000
NB = 3

def gen_b(A, do1=True, do2=True, flags=True, tag='B'):
    L = lambda x: f'{tag}_{x}'
    sH, sW, sJ = 3, 4, 5
    SQ, SK, SV, SX, SWS = 8, 12, 16, 20, 24
    sDBG = 28
    sT0, sT1, sT2, sLds, sCol, sSeg, sN, sBuf, sXw, sLw, sC, sOut, sCnt, sNext, sBufN, sPrev = range(32, 48)
    sKF, sOF = 48, 49
    WS = f"s[{SWS}:{SWS+3}]"
    vL16, vTr, vTr1, vWo, vXo, vX, vOne = 1, 2, 3, 4, 5, 6, 7
    XB = [8, 12, 16, 20]
    ACC = 24
    A(f"""s_load_dwordx2 s[60:61], s[0:1], 24
s_load_dwordx4 s[64:67], s[0:1], 40
s_load_dwordx2 s[68:69], s[0:1], 56
s_load_dwordx4 s[72:75], s[0:1], 88
v_lshrrev_b32 v10, 6, v0
v_and_b32 v0, 63, v0
v_readfirstlane_b32 s{sW}, v10
s_waitcnt lgkmcnt(0)""")
    srd(A, SX, 60, 2048 * 1152)
    srd(A, SQ, 64, 576 * 8192); srd(A, SK, 66, 576 * 8192); srd(A, SV, 68, 576 * 8192)
    srd(A, SWS, 74, WS_BYTES)
    A(f"""s_mov_b32 s{sDBG}, s72
s_mov_b32 s{sDBG+1}, s73
s_mov_b32 s{sC}, {fbits(C_SCALE):#x}
v_mov_b32 v{vOne}, 1""")
    emit_lane_consts(A, vL16, vTr, 10, 11)
    d1 = emit_wdma_off(A, vWo, 8192, 10, 11)
    emit_xdma_off(A, vXo, 1152, 10)
    DEPTH = 12
    A(f"""s_mul_i32 s{sLds}, s{sW}, {DEPTH * 2048}
s_add_u32 s{sLds}, s{sLds}, 36864
v_add_u32 v{vTr}, s{sLds}, v{vTr}
v_xor_b32 v{vTr1}, 32, v{vTr}
s_lshl_b32 s{sCol}, s{sH}, 8
s_lshl_b32 s{sT0}, s{sW}, 6
s_add_u32 s{sCol}, s{sCol}, s{sT0}
s_lshr_b32 s{sT0}, s{sW}, 1
s_mul_i32 s{sXw}, s{sT0}, {16 * 1152}
s_and_b32 s{sT0}, s{sW}, 1
s_mul_i32 s{sT0}, s{sT0}, 576
s_add_u32 s{sXw}, s{sXw}, s{sT0}
s_mul_i32 s{sLw}, s{sW}, 9216
s_lshl_b32 s{sKF}, s{sH}, 12
s_lshl_b32 s{sT0}, s{sW}, 2
s_add_u32 s{sKF}, s{sKF}, s{sT0}
s_add_u32 s{sKF}, s{sKF}, {FLG_OFF}
s_lshl_b32 s{sOF}, s{sH}, 4
s_add_u32 s{sOF}, s{sOF}, s{sT0}
s_add_u32 s{sOF}, s{sOF}, {FLG_OFF + 1024}""")
    def xdma(sseg, sbuf):
        A(f"""s_min_u32 s{sT1}, s{sseg}, 63
s_mul_i32 s{sT1}, s{sT1}, {32 * 1152}
s_add_u32 s{sT1}, s{sT1}, s{sXw}
s_add_u32 s{sT2}, s{sbuf}, s{sLw}""")
        emit_xdma(A, SX, vXo, sT1, None, sT2, sT0, None, 1152)
    def witems(mats):
        it = []
        for m, s_ in mats:
            for u in range(18):
                it.append((s_, vWo, sCol, u * 32 * 8192, d1 * 8192, (2 * m) * 18 + u, (2 * m + 1) * 18 + u))
        return it
    def flag(soff):
        A(f"""s_mov_b64 exec, 1
buffer_store_dword v{vOne}, v{vL16}, {WS}, s{soff} offen sc1
s_mov_b64 exec, -1""")
    def kv_flag(sseg):
        A(f"""s_lshl_b32 s{sT1}, s{sseg}, 4
s_add_u32 s{sT1}, s{sT1}, s{sKF}""")
        flag(sT1)
    def ring_start():
        A(f"""s_mov_b32 s{sSeg}, s{sJ}
s_mov_b32 s{sBuf}, 0
s_add_u32 s{sNext}, s{sJ}, {NB}
s_mov_b32 s{sBufN}, 36864""")
    def ring_adv():
        A(f"""s_mov_b32 s{sPrev}, s{sSeg}
s_add_u32 s{sSeg}, s{sSeg}, {NB}
s_add_u32 s{sBuf}, s{sBuf}, 36864
s_cmp_eq_u32 s{sBuf}, {3 * 36864}
s_cselect_b32 s{sBuf}, 0, s{sBuf}""")
    def next_dma():
        A(f"""s_add_u32 s{sNext}, s{sNext}, {NB}
s_add_u32 s{sBufN}, s{sBufN}, 36864
s_cmp_eq_u32 s{sBufN}, {3 * 36864}
s_cselect_b32 s{sBufN}, 0, s{sBufN}""")
        xdma(sNext, sBufN)

    ts(A, 0, SWS, 10)
    if do1:
        ring_start()
        xdma(sSeg, sBuf)
        if flags:
            A(f"""v_mov_b64 v[12:13], -1
v_mov_b64 v[14:15], -1
v_lshrrev_b32 v16, 1, v{vL16}
s_mov_b32 s{sN}, s{sJ}""")
            A.label(L('pz'))
            A(f"""s_lshl_b32 s{sT0}, s{sN}, 5
s_add_u32 s{sT0}, s{sT0}, s{sH}
s_lshl_b32 s{sT0}, s{sT0}, 2
s_add_u32 s{sT0}, s{sT0}, s{sW}
s_lshl_b32 s{sT1}, s{sT0}, 10
s_add_u32 s{sT1}, s{sT1}, {KM_OFF + 32 * 4096}
s_lshl_b32 s{sT2}, s{sT0}, 9
s_add_u32 s{sT2}, s{sT2}, {VM_OFF}
buffer_store_dwordx4 v[12:15], v{vL16}, {WS}, s{sT1} offen sc1
buffer_store_dwordx2 v[12:13], v16, {WS}, s{sT2} offen sc1
s_add_u32 s{sN}, s{sN}, {NB}
s_cmp_lt_u32 s{sN}, 64
s_cbranch_scc1 {L('pz')}""")
        emit_wload(A, witems([(0, SK), (1, SV)]), vTr, vTr1, sLds, sT0, DEPTH)
        ts(A, 1, SWS, 10)
        if flags:
            emit_init_wait(A, L('iw'), sDBG, sW, sT0, sCnt, 10, POLL_MAX)
        A("s_barrier")
        xdma(sNext, sBufN)
        A(f"s_mov_b32 s{sPrev}, 192")
        A("s_waitcnt vmcnt(9)")
        A.label(L('kv'))
        A("s_barrier")
        next_dma()
        A(f"v_add_u32 v{vX}, s{sBuf}, v{vL16}")
        def sig_prev():
            A("s_waitcnt vmcnt(9)")
            if flags:
                kv_flag(sPrev)
        tiles = [(0, 'F'), (18, 'F'), (36, 'T'), (54, 'T')]
        emit_group_mma(A, tiles, vX, XB, ACC, side={6: sig_prev})
        A(f"""s_lshl_b32 s{sT0}, s{sSeg}, 5
s_add_u32 s{sT0}, s{sT0}, s{sH}
s_lshl_b32 s{sT0}, s{sT0}, 13
s_lshl_b32 s{sT1}, s{sW}, 10
s_add_u32 s{sOut}, s{sT0}, s{sT1}
s_add_u32 s{sT2}, s{sOut}, 4096
s_add_u32 s{sT1}, s{sOut}, s{sT1}
s_add_u32 s{sT1}, s{sT1}, {VX_OFF}""")
        for tt in range(2):
            d = 56 + 4 * tt
            for t in range(2):
                a = ACC + (2 * t + tt) * 4
                for r in range(4):
                    A(f"v_mul_f32 v{a+r}, s{sC}, v{a+r}")
                A(f"v_cvt_pk_bf16_f32 v{d+2*t}, v{a}, v{a+1}")
                A(f"v_cvt_pk_bf16_f32 v{d+2*t+1}, v{a+2}, v{a+3}")
            A(f"buffer_store_dwordx4 v[{d}:{d+3}], v{vL16}, {WS}, s{sOut if tt == 0 else sT2} offen sc1")
        for t in range(2):
            d = 64 + 4 * t
            for tt in range(2):
                a = ACC + (2 * (2 + t) + tt) * 4
                A(f"v_cvt_pk_bf16_f32 v{d+2*tt}, v{a}, v{a+1}")
                A(f"v_cvt_pk_bf16_f32 v{d+2*tt+1}, v{a+2}, v{a+3}")
            A(f"buffer_store_dwordx4 v[{d}:{d+3}], v{vL16}, {WS}, s{sT1} offen offset:{t*1024} sc1")
        ring_adv()
        A(f"s_waitcnt vmcnt({14 if flags else 13})")
        A(f"s_cmp_lt_u32 s{sSeg}, 64")
        A(f"s_cbranch_scc1 {L('kv')}")
        A("s_waitcnt vmcnt(0)")
        if flags:
            kv_flag(sPrev)
        A("s_barrier")

    ts(A, 2, SWS, 10)
    if do2:
        LQ = 3 * 36864
        ring_start()
        xdma(sSeg, sBuf)
        emit_wload(A, witems([(2, SQ)]), vTr, vTr1, sLds, sT0, DEPTH)
        ts(A, 3, SWS, 10)
        A("s_barrier")
        xdma(sNext, sBufN)
        sTT, sEH, sKx, sVx, sKm, sVm = 50, 51, 52, 53, 54, 55
        A(f"""s_and_b32 s{sTT}, s{sW}, 1
s_lshr_b32 s{sEH}, s{sW}, 1
v_and_b32 v10, 15, v0
v_lshrrev_b32 v11, 4, v0
v_lshlrev_b32 v11, 2, v11
s_lshl_b32 s{sT0}, s{sTT}, 4
v_add_u32 v10, s{sT0}, v10
v_mov_b32 v12, 0xf149f2ca""")
        for kt in range(2):
            for r in range(4):
                A(f"""v_add_u32 v13, {16 * kt + r}, v11
v_cmp_le_u32 vcc, v13, v10
v_cndmask_b32 v{80 + 4*kt + r}, v12, 0, vcc""")
        A(f"""v_mov_b32 v88, 0x3f803f80
v_mov_b32 v89, 0x3f803f80
v_mov_b32 v90, 0x3f803f80
v_mov_b32 v91, 0x3f803f80
v_lshrrev_b32 v92, 1, v{vL16}
s_lshl_b32 s{sT0}, s{sW}, 10
s_add_u32 s{sT0}, s{sT0}, {LQ}
v_add_u32 v93, s{sT0}, v{vL16}
s_lshl_b32 s{sT0}, s{sTT}, 12
s_add_u32 s{sT0}, s{sT0}, {LQ}
v_add_u32 v94, s{sT0}, v{vL16}
s_waitcnt vmcnt(9)""")
        A.label(L('at'))
        A("s_barrier")
        A(f"""s_lshl_b32 s{sT0}, s{sSeg}, 5
s_add_u32 s{sT0}, s{sT0}, s{sH}
s_lshl_b32 s{sKx}, s{sT0}, 13
s_add_u32 s{sT1}, s{sKx}, 4096
s_lshl_b32 s{sT2}, s{sEH}, 12
s_add_u32 s{sVx}, s{sKx}, s{sT2}
s_add_u32 s{sVx}, s{sVx}, {VX_OFF}
s_lshl_b32 s{sKm}, s{sT0}, 12
s_add_u32 s{sKm}, s{sKm}, {KM_OFF + 32 * 4096}
s_lshl_b32 s{sVm}, s{sT0}, 11
s_lshl_b32 s{sT2}, s{sEH}, 10
s_add_u32 s{sVm}, s{sVm}, s{sT2}
s_add_u32 s{sVm}, s{sVm}, {VM_OFF}""")
        for kt in range(2):
            for u in range(4):
                b = 16 * kt + 4 * u
                A(f"buffer_load_dwordx4 a[{b}:{b+3}], v{vL16}, {WS}, s{sKx if kt == 0 else sT1} offen offset:{u*1024} sc1")
        for e in range(4):
            A(f"buffer_load_dwordx4 a[{32+4*e}:{35+4*e}], v{vL16}, {WS}, s{sVx} offen offset:{e*1024} sc1")
        next_dma()
        A(f"v_add_u32 v{vX}, s{sBuf}, v{vL16}")
        emit_group_mma(A, [(72, 'F'), (90, 'F')], vX, XB, ACC)
        for tt in range(2):
            d = 56 + 4 * tt
            for t in range(2):
                a = ACC + (2 * t + tt) * 4
                A(f"v_cvt_pk_bf16_f32 v{d+2*t}, v{a}, v{a+1}")
                A(f"v_cvt_pk_bf16_f32 v{d+2*t+1}, v{a+2}, v{a+3}")
            A(f"ds_write_b128 v93, v[{d}:{d+3}] offset:{tt * 4096}")
        A("s_waitcnt lgkmcnt(0)")
        A("s_barrier")
        Q = 8
        for u in range(4):
            A(f"ds_read_b128 v[{Q+4*u}:{Q+4*u+3}], v94 offset:{u*1024}")
        S0, S1, SM = 24, 28, 32
        for u in range(4):
            for kt, s_ in ((0, S0), (1, S1)):
                c = rng('v', 80 + 4 * kt, 4) if u == 0 else rng('v', s_, 4)
                A(f"v_mfma_f32_16x16x32_bf16 v[{s_}:{s_+3}], a[{16*kt+4*u}:{16*kt+4*u+3}], v[{Q+4*u}:{Q+4*u+3}], {c}")
        A(f"s_mov_b32 s{sCnt}, 0")
        A("s_waitcnt vmcnt(9)")
        if flags:
            A.label(L('mq'))
            A(f"""buffer_load_dword v40, v{vL16}, {WS}, s{sKm} offen offset:3072 sc1
s_add_u32 s{sCnt}, s{sCnt}, 1
v_cmp_eq_u32 vcc, -1, v40
s_cmp_gt_u32 s{sCnt}, {POLL_MAX}
s_cbranch_scc1 {L('mp')}
s_cbranch_vccz {L('mp')}
s_sleep 6
s_branch {L('mq')}""")
        A.label(L('mp'))
        for u in range(4):
            A(f"buffer_load_dwordx4 v[{40+4*u}:{43+4*u}], v{vL16}, {WS}, s{sKm} offen offset:{u*1024} sc1")
        A(f"buffer_load_dwordx2 v[56:57], v92, {WS}, s{sVm} offen sc1")
        A(f"buffer_load_dwordx2 v[58:59], v92, {WS}, s{sVm} offen offset:512 sc1")
        if flags:
            A(f"""s_add_u32 s{sCnt}, s{sCnt}, 1
v_max3_u32 v60, v40, v44, v48
v_max3_u32 v61, v52, v56, v58
v_max3_u32 v62, v43, v47, v51
v_max3_u32 v60, v60, v61, v55
v_max_u32 v60, v60, v62
v_cmp_eq_u32 vcc, -1, v60
s_cmp_gt_u32 s{sCnt}, {POLL_MAX}
s_cbranch_scc1 {L('mg')} ;nofence
s_cbranch_vccz {L('mg')} ;nofence
s_sleep 4
s_branch {L('mp')} ;nofence""")
            A.label(L('mg') + ' ;soft')
        for u in range(4):
            c = '0' if u == 0 else rng('v', SM, 4)
            A(f"v_mfma_f32_16x16x32_bf16 v[{SM}:{SM+3}], v[{40+4*u}:{43+4*u}], v[{Q+4*u}:{Q+4*u+3}], {c}")
        sv = list(range(S0, S0 + 10))
        A(f"""v_max3_f32 v60, v{sv[0]}, v{sv[1]}, v{sv[2]}
v_max3_f32 v61, v{sv[3]}, v{sv[4]}, v{sv[5]}
v_max3_f32 v60, v60, v{sv[6]}, v{sv[7]}
v_mul_f32 v{SM}, s{sC}, v{SM}
v_mul_f32 v{SM+1}, s{sC}, v{SM+1}
v_max3_f32 v61, v61, v{sv[8]}, v{sv[9]}
v_max_f32 v60, v60, v61
v_mov_b32 v61, v60
v_permlane32_swap_b32 v60, v61
v_max_f32 v60, v60, v61
v_mov_b32 v61, v60
v_permlane16_swap_b32 v60, v61
v_max_f32 v60, v60, v61""")
        for r in sv:
            A(f"v_sub_f32 v{r}, v{r}, v60")
        for r in sv:
            A(f"v_exp_f32 v{r}, v{r}")
        PX, PM = 64, 68
        for n in range(4):
            A(f"v_cvt_pk_bf16_f32 v{PX+n}, v{sv[2*n]}, v{sv[2*n+1]}")
        A(f"""v_cvt_pk_bf16_f32 v{PM}, v{SM}, v{SM+1}
v_mov_b32 v{PM+1}, 0
v_mov_b32 v{PM+2}, 0
v_cvt_pk_bf16_f32 v{PM+3}, v{SM}, v{SM+1}""")
        O, LS = 40, 36
        A(f"v_mfma_f32_16x16x32_bf16 v[{LS}:{LS+3}], v[88:91], v[{PX}:{PX+3}], 0")
        for e in range(4):
            A(f"v_mfma_f32_16x16x32_bf16 v[{O+4*e}:{O+4*e+3}], a[{32+4*e}:{35+4*e}], v[{PX}:{PX+3}], 0")
        A(f"v_mfma_f32_16x16x16_bf16 v[{LS}:{LS+3}], v[88:89], v[{PM}:{PM+1}], v[{LS}:{LS+3}]")
        for e in range(4):
            vm = 56 + 2 * (e >> 1); p = PM + 2 * (e & 1)
            A(f"v_mfma_f32_16x16x16_bf16 v[{O+4*e}:{O+4*e+3}], v[{vm}:{vm+1}], v[{p}:{p+1}], v[{O+4*e}:{O+4*e+3}]")
        A(f"""v_rcp_f32 v60, v{LS}
s_lshl_b32 s{sT0}, s{sSeg}, 1
s_add_u32 s{sT0}, s{sT0}, s{sTT}
s_lshl_b32 s{sT0}, s{sT0}, 17
s_lshl_b32 s{sT1}, s{sH}, 12
s_add_u32 s{sT0}, s{sT0}, s{sT1}
s_lshl_b32 s{sT1}, s{sEH}, 11
s_add_u32 s{sT0}, s{sT0}, s{sT1}
s_add_u32 s{sT0}, s{sT0}, {OB_OFF}""")
        for x in range(2):
            d = 24 + 4 * x
            for n in range(4):
                o = O + 8 * x + 2 * n
                A(f"v_mul_f32 v{o}, v{o}, v60")
                A(f"v_mul_f32 v{o+1}, v{o+1}, v60")
                A(f"v_cvt_pk_bf16_f32 v{d+n}, v{o}, v{o+1}")
            A(f"buffer_store_dwordx4 v[{d}:{d+3}], v{vL16}, {WS}, s{sT0} offen offset:{x*1024} sc1")
        A("s_waitcnt vmcnt(0)")
        if flags:
            A(f"""s_lshr_b32 s{sT1}, s{sSeg}, 1
s_lshl_b32 s{sT1}, s{sT1}, 12
s_and_b32 s{sT2}, s{sSeg}, 1
s_lshl_b32 s{sT2}, s{sT2}, 9
s_add_u32 s{sT1}, s{sT1}, s{sT2}
s_add_u32 s{sT1}, s{sT1}, s{sOF}""")
            flag(sT1)
        ts(A, 8, SWS, 72, sSeg)
        ring_adv()
        A(f"s_cmp_lt_u32 s{sSeg}, 64")
        A(f"s_cbranch_scc1 {L('at')}")
    A("s_endpgm")
```

```python
import re, os
CONSERVATIVE = bool(os.environ.get('CONS'))
HOIST = not os.environ.get('NOHOIST')

REG_RE = re.compile(r'^(-|abs\()?([vas])(\d+)\)?$')
RNG_RE = re.compile(r'^(-|abs\()?([vas])\[(\d+):(\d+)\]\)?$')

def regs_of(tok):
    tok = tok.strip()
    m = REG_RE.match(tok)
    if m:
        return {(m.group(2), int(m.group(3)))}
    m = RNG_RE.match(tok)
    if m:
        return {(m.group(2), r) for r in range(int(m.group(3)), int(m.group(4)) + 1)}
    if tok == 'vcc':
        return {('s', 106), ('s', 107)}
    if tok == 'vcc_lo':
        return {('s', 106)}
    if tok == 'vcc_hi':
        return {('s', 107)}
    if tok == 'exec':
        return {('s', 126), ('s', 127)}
    if tok == 'm0':
        return {('s', 124)}
    return set()

def split_ops(s):
    out, depth, cur = [], 0, ''
    for ch in s:
        if ch in '[(':
            depth += 1
        elif ch in '])':
            depth -= 1
        if ch == ',' and depth == 0:
            out.append(cur.strip()); cur = ''
        else:
            cur += ch
    if cur.strip():
        out.append(cur.strip())
    return out

TRANS = ('v_exp_f32', 'v_log_f32', 'v_rcp_f32', 'v_rsq_f32', 'v_sqrt_f32', 'v_sin_f32', 'v_cos_f32', 'v_rcp_iflag_f32')

class Ins:
    __slots__ = ('text', 'mn', 'kind', 'rd', 'wr', 'mf_a', 'mf_b', 'mf_c', 'passes', 'is_dpp', 'st_data', 'wide',
                 'manual', 'lanesel', 'sgpr_rd', 'cond', 'soft')
    def __init__(self, text, manual=False):
        self.text = text
        self.manual = manual
        self.cond = False
        self.soft = False
        self.rd, self.wr = set(), set()
        self.mf_a = self.mf_b = self.mf_c = set()
        self.passes = 0
        self.is_dpp = False
        self.st_data = set()
        self.wide = False
        self.lanesel = set()
        t = text.split(';')[0].strip()
        if not t or t.endswith(':') or t.startswith('.'):
            self.mn = ''
            self.kind = 'label' if t.endswith(':') else 'none'
            return
        parts = t.split(None, 1)
        mn = parts[0]
        self.mn = mn
        rest = parts[1] if len(parts) > 1 else ''
        ops = split_ops(rest)
        mods = ''
        if ops:
            lp = ops[-1].split(None, 1)
            ops[-1] = lp[0]
            mods = lp[1] if len(lp) > 1 else ''
        R = [regs_of(o) for o in ops]
        U = lambda xs: set().union(*xs) if xs else set()
        if mn.startswith('v_mfma') or mn.startswith('v_smfmac'):
            self.kind = 'mfma'
            self.passes = 8 if '32x32' in mn else 4
            self.wr = R[0]
            self.mf_a, self.mf_b = R[1], R[2]
            if mn.startswith('v_smfmac'):
                self.mf_c = R[0]
                self.mf_b = R[2] | R[3]
            else:
                self.mf_c = R[3]
            self.rd = self.mf_a | self.mf_b | self.mf_c
        elif mn.startswith('v_'):
            self.kind = 'valu'
            self.is_dpp = mn.endswith('_dpp') or 'row_' in mods or 'quad_perm' in mods
            if mn.startswith('v_cmp'):
                self.wr = R[0]; self.rd = U(R[1:])
            elif 'permlane' in mn and 'swap' in mn:
                self.wr = R[0] | R[1]; self.rd = R[0] | R[1]
            elif mn.startswith(('v_add_co', 'v_sub_co', 'v_addc_co', 'v_subb_co', 'v_mad_u64')):
                self.wr = R[0] | R[1]; self.rd = U(R[2:])
            elif mn.startswith(('v_fmac', 'v_dot2c', 'v_pk_fmac')):
                self.wr = R[0]; self.rd = U(R)
            elif mn.startswith(('v_readlane', 'v_writelane')):
                self.wr = R[0]; self.rd = U(R[1:]); self.lanesel = R[2]
                if mn.startswith('v_writelane'):
                    self.rd |= R[0]
            elif mn == 'v_nop':
                pass
            else:
                self.wr = R[0]; self.rd = U(R[1:])
                if self.is_dpp:
                    self.rd |= R[0]
                if mn.startswith('v_cndmask') and len(ops) == 3:
                    self.rd |= regs_of('vcc')
        elif mn.startswith('ds_'):
            self.kind = 'ds'
            if mn.startswith(('ds_read', 'ds_bpermute', 'ds_permute', 'ds_swizzle')):
                self.wr = R[0]; self.rd = U(R[1:])
            else:
                self.rd = U(R)
        elif mn.startswith(('global_', 'buffer_')):
            self.kind = 'vm'
            if mn in ('buffer_wbl2', 'buffer_inv'):
                self.kind = 'vmx'
            elif 'load_lds' in mn or re.search(r'\blds\b', mods):
                self.rd = U(R) | regs_of('m0')
                self.kind = 'dma'
            elif '_load_' in mn:
                self.wr = R[0]; self.rd = U(R[1:])
                if 'd16' in mn:
                    self.rd |= R[0]
            elif '_store_' in mn:
                self.rd = U(R)
                self.st_data = R[1] if mn.startswith('global_') else R[0]
                self.wide = mn.endswith(('x3', 'x4'))
            elif 'atomic' in mn:
                if 'sc0' in mods.split():
                    if mn.startswith('global_'):
                        self.wr = R[0]; self.rd = U(R[1:])
                    else:
                        self.wr = R[0]; self.rd = U(R)
                else:
                    self.rd = U(R)
            else:
                raise ValueError('unknown vmem ' + text)
        elif mn.startswith('s_'):
            self.kind = 'salu'
            if mn.startswith(('s_load', 's_memtime', 's_memrealtime', 's_buffer_load')):
                self.kind = 'smem'
                self.wr = R[0]; self.rd = U(R[1:])
            elif mn.startswith(('s_cmp', 's_bitcmp')):
                self.rd = U(R)
            elif mn.startswith(('s_cbranch', 's_branch')):
                self.kind = 'branch'
            elif mn in ('s_waitcnt', 's_nop', 's_barrier', 's_sleep', 's_endpgm', 's_setprio'):
                self.kind = mn
            elif 'saveexec' in mn:
                self.wr = R[0] | regs_of('exec'); self.rd = U(R[1:]) | regs_of('exec')
            else:
                self.wr = R[0] if R else set(); self.rd = U(R[1:])
        else:
            raise ValueError('unknown instr ' + text)

    def states(self):
        if self.kind in ('label', 'none') or self.cond:
            return 0
        if self.mn == 's_nop':
            return int(self.text.split(';')[0].split()[1], 0) + 1
        return 1


def need_states(p, c):
    n = 0
    pv = {r for r in p.wr if r[0] in 'va'}
    ps = {r for r in p.wr if r[0] == 's'}
    if p.kind == 'valu':
        if c.kind == 'mfma' and pv & c.rd:
            n = max(n, 2)
        if c.kind == 'valu':
            if p.mn.startswith(TRANS) and not c.mn.startswith(TRANS) and pv & c.rd:
                n = max(n, 1)
            if p.mn.startswith(TRANS) and c.mn.startswith(TRANS) and pv & c.rd:
                n = max(n, 1)
            if ('permlane' in c.mn or c.is_dpp) and pv & c.rd:
                n = max(n, 2)
            if c.mn.startswith(('v_readlane', 'v_readfirstlane')) and pv & c.rd:
                n = max(n, 1)
            if ps & c.lanesel:
                n = max(n, 4)
            if ps & c.rd:
                n = max(n, 2)
        if p.mn.startswith(TRANS) and c.kind in ('vm', 'ds') and pv & c.rd:
            n = max(n, 1)
        if c.kind in ('vm', 'dma') and ps & c.rd:
            n = max(n, 5)
        if c.kind in ('salu', 'branch', 'smem') and ps & c.rd:
            n = max(n, 1)
    if p.kind == 'mfma':
        big = p.passes == 8
        if c.kind == 'mfma':
            if pv & (c.mf_a | c.mf_b):
                n = max(n, 12 if big else 8)
            if pv & c.mf_c:
                if c.mf_c == p.wr and c.mn == p.mn:
                    pass
                else:
                    n = max(n, 10 if big else 6)
            elif pv & c.wr:
                n = max(n, 10 if big else 6)
        elif c.kind in ('valu', 'vm', 'ds', 'dma'):
            if pv & (c.rd | c.wr):
                n = max(n, 12 if big else 8)
            if c.kind == 'valu' and p.mf_c & c.wr:
                n = max(n, 7 if big else 3)
            if c.kind == 'valu' and p.mn.startswith('v_smfmac') and (p.mf_a | p.mf_b) & c.wr:
                n = max(n, 4)
    if p.kind == 'vm' and p.wide and p.st_data & c.wr and c.kind in ('valu', 'mfma'):
        n = max(n, 2)
    if p.kind == 'vm' and p.wide and p.st_data & c.wr and c.kind in ('vm', 'ds'):
        n = max(n, 1)
    if p.kind == 'salu' and c.kind == 'dma' and ('s', 124) in p.wr:
        n = max(n, 1)
    return n


class Asm:
    def __init__(self):
        self.items = []
    def __call__(self, text, manual=False):
        for line in text.split('\n'):
            if line.strip():
                self.items.append(Ins(line.strip(), manual))
    def label(self, name):
        soft = name.endswith(' ;soft')
        if soft:
            name = name[:-6]
        i = Ins(name + ':')
        i.soft = soft
        self.items.append(i)
    def extend(self, other):
        self.items.extend(other.items)

    def finalize(self):
        out = []
        hist = []
        lg = []
        vm = []
        opened = set()
        softs = {x.text[:-1] for x in self.items if x.kind == 'label' and x.soft}
        seen = set()
        def emit(i):
            if opened:
                i.cond = True
            out.append(i)
            if i.kind not in ('none',):
                hist.append(i)
                if len(hist) > 24:
                    hist.pop(0)
        def gap(k, nxt):
            t = 0
            pipe = hist[k].passes if hist[k].kind == 'mfma' and not hist[k].cond else 0
            t = 1
            for q in hist[k + 1:]:
                if q.cond:
                    continue
                if q.kind == 'mfma' and not CONSERVATIVE:
                    t = max(t, pipe)
                    pipe = t + q.passes
                t += q.states()
            if nxt.kind == 'mfma' and not CONSERVATIVE:
                t = max(t, pipe)
            return t - 1
        def fence_states(n):
            dist = 0
            need = 0
            for p in reversed(hist):
                if p.kind == 'mfma':
                    need = max(need, (12 if p.passes == 8 else 8) - dist)
                elif p.kind == 'valu':
                    ps = any(r[0] == 's' for r in p.wr)
                    need = max(need, (5 if ps else 2) - dist)
                elif p.kind == 'vm' and p.wide:
                    need = max(need, 2 - dist)
                elif p.kind == 'salu' and ('s', 124) in p.wr:
                    need = max(need, 1 - dist)
                dist += p.states()
            while need > 0:
                k = min(need, 16)
                emit(Ins('s_nop %d' % (k - 1)))
                need -= k
        for i in self.items:
            if i.kind == 'none':
                out.append(i); continue
            if i.kind == 'label':
                seen.add(i.text[:-1])
                if i.soft:
                    opened.discard(i.text[:-1])
                    out.append(i)
                    continue
                pend = [x for x in lg if x[0]] + [x for x in vm if x[0]]
                if pend:
                    raise ValueError('tracked loads pending at label %s: %s' % (i.text, pend[:3]))
                out.append(i)
                lg, vm = [], []
                continue
            if i.kind == 'branch' and ';exit' in i.text:
                emit(i)
                continue
            if i.kind == 'branch' and ';nofence' in i.text:
                tgt = i.text.split(';')[0].split()[1]
                if tgt in seen:
                    pend = [x for x in lg if x[0]] + [x for x in vm if x[0]]
                    if pend:
                        raise ValueError('tracked loads pending at back branch %s' % i.text)
                    emit(i)
                else:
                    assert tgt in softs, tgt
                    emit(i)
                    opened.add(tgt)
                continue
            if i.kind == 'branch':
                pend = [x for x in lg if x[0]] + [x for x in vm if x[0]]
                if pend:
                    raise ValueError('tracked loads pending at branch %s: %s' % (i.text, pend[:3]))
                fence_states(0)
                emit(i)
                continue
            if i.kind == 's_waitcnt':
                m = re.search(r'lgkmcnt\((\d+)\)', i.text)
                if m:
                    n = int(m.group(1))
                    if n == 0 or not any(x[1] for x in lg):
                        lg = lg[len(lg) - n:] if n else []
                m = re.search(r'vmcnt\((\d+)\)', i.text)
                if m:
                    n = int(m.group(1))
                    vm = vm[len(vm) - n:] if n and n < len(vm) else ([] if n == 0 else vm)
                emit(i)
                continue
            touched = i.rd | i.wr
            w = []
            idx = max((k for k, x in enumerate(lg) if x[0] & touched), default=None)
            if idx is not None:
                n = len(lg) - 1 - idx
                if any(x[1] for x in lg):
                    n = 0
                n = min(n, 15)
                w.append('lgkmcnt(%d)' % n)
                lg = lg[len(lg) - n:] if n else []
            idx = max((k for k, x in enumerate(vm) if x[0] & touched), default=None)
            if idx is not None:
                n = min(len(vm) - 1 - idx, 63)
                w.append('vmcnt(%d)' % n)
                vm = vm[len(vm) - n:] if n else []
            if w:
                wi = Ins('s_waitcnt ' + ' '.join(w))
                moved = False
                if HOIST and i.kind == 'mfma' and not opened and len(w) == 1 and w[0].startswith('lgkm'):
                    n = int(w[0][8:-1]); k = len(out); skipped = 0; ok = False
                    while k > 0 and len(out) - k <= 4:
                        q = out[k - 1]
                        if q.kind == 'mfma':
                            ok = True; break
                        if q.kind == 'ds':
                            skipped += 1
                        elif q.kind not in ('valu', 'salu', 'vm', 'dma'):
                            break
                        k -= 1
                    if ok and k < len(out) and skipped <= n:
                        wi = Ins('s_waitcnt lgkmcnt(%d)' % (n - skipped))
                        out.insert(k, wi)
                        hist.insert(len(hist) - (len(out) - 1 - k), wi)
                        moved = True
                if not moved:
                    emit(wi)
            added = 0
            while True:
                if added:
                    hist.append(Ins('s_nop %d' % (added - 1)))
                ok = all(need_states(hist[k], i) <= gap(k, i) for k in range(len(hist)))
                if added:
                    hist.pop()
                if ok:
                    break
                added += 1
                assert added <= 16
            if added:
                was = set(opened)
                nop = Ins('s_nop %d' % (added - 1))
                emit(nop)
            emit(i)
            if opened:
                if i.kind in ('ds', 'smem', 'vm') and i.wr and not i.manual:
                    raise ValueError('tracked load inside conditional region: ' + i.text)
                continue
            if i.kind == 'ds':
                lg.append((set() if i.manual else set(i.wr), False))
            elif i.kind == 'smem':
                lg.append((set() if i.manual else set(i.wr), True))
            elif i.kind in ('vm', 'dma'):
                vm.append((set() if i.manual else set(i.wr), False))
        return '\n'.join(('' if x.kind == 'label' else '    ') + x.text for x in out) + '\n'
```

```python
from asmlib import Asm
from layout import *
import struct, math, os
from prof import ts

NSTEPS = 64
C_SCALE = (128 ** -0.5) * math.log2(math.e)
def fbits(x): return struct.unpack('<I', struct.pack('<f', x))[0]
EXP = os.environ.get('EXP', 'E')

LDS_CHUNKS = [('q', 0), ('k', 0), ('q', 3), ('k', 3), ('o', (0, 0)), ('o', (1, 0)), ('v', 8), ('v', 6)]
REG_CHUNKS = [(m, j) for j in range(9) for m in 'qk' if (m, j) not in LDS_CHUNKS] + \
             [('v', j) for j in (0, 2, 1, 3, 5, 7, 4)] + \
             [('o', (0, 1)), ('o', (1, 1)), ('o', (2, 0)), ('o', (3, 0)), ('o', (2, 1)), ('o', (3, 1))]
assert len(REG_CHUNKS) == 27
def lds_off(ch, tt, k5):
    if ch == ('o', 8):
        return 32768 + k5 * 1024
    i = LDS_CHUNKS.index(ch)
    if i < 6:
        return ((i >> 1) * 2 + k5) * 4096 + ((i & 1) * 2 + tt) * 1024
    return i * 4096 + k5 * 2048 + tt * 1024
_blk = {}
def _regblock(n):
    return ('a', 8 * n) if n < 32 else ('v', 72 + 8 * (n - 32))
n = 0
for ch in REG_CHUNKS:
    for tt in range(2):
        _blk[(ch, tt)] = _regblock(n); n += 1
_blk[(('o', 8), 1)] = _regblock(n); n += 1
assert n == 55
def rng(f, b, n): return '%s[%d:%d]' % (f, b, b + n - 1)
def blk_regs(ch, tt):
    f, b = _blk[(ch, tt)]
    return rng(f, b, 8)

vDummy, vL16, vL8, vIdx, vQKw, vOw, vPst, vMst, vW, vPc = 0, 1, 2, 3, 4, 5, 6, 7, 8, 9
VX = 64
sH, sW = 3, 4
SRD_Q, SRD_K, SRD_V, SRD_O, SRD_WS = 8, 12, 16, 20, 24
sDBG, sMEM0 = 28, 30
sStep, sTag, sMw, sMp, sRa, sReady, sRole, sFast, sC = 32, 33, 34, 35, 36, 37, 38, 39, 40
sT0, sT1, sT2, sT3 = 41, 42, 43, 44
sSeg, sNeed, sCnt = 45, 46, 47
sEx = 48
sPz = 50
sTm = 52
sKMa, sTa, sVMa, sVXa, sKXa, sP0, sP1, sP2, sGa, sGb, sLate = 60, 61, 62, 63, 64, 65, 66, 67, 69, 70, 71
sKMp, sW10 = 68, 100
sOnes, sBig, sRep = 72, 74, 75
sXcc, sW11, sTouch, sTagM = 76, 77, 78, 79
SRD_R = 96
sQP = 96
POLL_MAX = 20000
WS = f"s[{SRD_WS}:{SRD_WS+3}]"

def srd(A, d, ptr, nbytes):
    A(f"""s_mov_b32 s{d}, s{ptr}
s_and_b32 s{d+1}, s{ptr+1}, 0xffff
s_mov_b32 s{d+2}, {nbytes}
s_mov_b32 s{d+3}, 0x20000""")

def kv_wait(A, lab, vt):
    A(f"""s_lshl_b32 s{sT3}, s{sH}, 12
s_add_u32 s{sT3}, s{sT3}, {FLG_OFF}
s_mov_b32 s{sCnt}, 0""")
    A.label(lab)
    A(f"""buffer_load_dwordx4 v[{vt}:{vt+3}], v{vL16}, {WS}, s{sT3} offen sc1
s_add_u32 s{sCnt}, s{sCnt}, 1
v_and_b32 v{vt}, v{vt}, v{vt+1}
v_and_b32 v{vt+2}, v{vt+2}, v{vt+3}
v_and_b32 v{vt}, v{vt}, v{vt+2}
v_cmp_eq_u32 vcc, 1, v{vt}
s_ff0_i32_b64 s{sReady}, vcc
s_min_u32 s{sReady}, s{sReady}, 64
s_cmp_gt_u32 s{sCnt}, {POLL_MAX * 8}
s_cbranch_scc1 {lab}_d
s_cmp_gt_u32 s{sReady}, s{sNeed}
s_cbranch_scc1 {lab}_d
s_sleep 8
s_branch {lab}""")
    A.label(lab + '_d')

def bits(A, dst, terms, tmp, first=True):
    for (b, wd, sh) in terms:
        A(f"v_bfe_u32 v{tmp}, v0, {b}, {wd}")
        if first:
            A(f"v_lshlrev_b32 v{dst}, {sh}, v{tmp}"); first = False
        else:
            A(f"v_lshl_add_u32 v{dst}, v{tmp}, {sh}, v{dst}")

def gen_chain(A, dbg=0, tag='C', flags=False):
    L = lambda x: f'{tag}_{x}'
    NST = 12
    R0, R1, R2 = 34, 38, 58
    if dbg:
        A(f"s_memtime s[{sTm+6}:{sTm+7}]")
    A(f"""s_lshr_b32 s{sH}, s2, 3
s_load_dwordx4 s[60:63], s[0:1], 32
s_load_dwordx4 s[64:67], s[0:1], 48
s_load_dwordx2 s[68:69], s[0:1], 64
s_load_dwordx4 s[72:75], s[0:1], 88
v_lshrrev_b32 v10, 6, v0
v_and_b32 v0, 63, v0
v_readfirstlane_b32 s{sW}, v10
s_getreg_b32 s{sXcc}, hwreg(HW_REG_XCC_ID)
v_lshlrev_b32 v{vL16}, 4, v0
v_lshlrev_b32 v{vL8}, 3, v0
s_waitcnt lgkmcnt(0)""")
    srd(A, SRD_Q, 62, 576 * 4096 * 2)
    srd(A, SRD_K, 64, 576 * 4096 * 2)
    srd(A, SRD_V, 66, 576 * 4096 * 2)
    srd(A, SRD_O, 68, 576 * 4096 * 2)
    srd(A, SRD_WS, 74, WS_BYTES)
    A(f"""s_mov_b32 s{sDBG}, s72
s_mov_b32 s{sDBG+1}, s73
s_mov_b32 s{sMEM0}, s60
s_mov_b32 s{sMEM0+1}, s61
s_mov_b32 s{sC}, {fbits(C_SCALE):#x}
s_lshl_b32 s{sW11}, s{sW}, 11
s_and_b32 s{sXcc}, s{sXcc}, 15
s_mov_b32 s{sPz}, {POISON:#x}
s_mov_b32 s{sPz+1}, {POISON:#x}""")
    ts(A, 0, SRD_WS, 10)
    A(f"""s_lshl_b32 s{sT0}, s{sH}, 1
s_add_u32 s{sT0}, s{sT0}, s{sW}
s_add_u32 s{sT1}, s{sH}, 64
s_cmp_lt_u32 s{sW}, 2
s_cselect_b32 s{sT0}, s{sT0}, s{sT1}
s_min_u32 s{sT0}, s{sT0}, 71
s_lshl_b32 s{sRa}, s{sT0}, 12
s_add_u32 s{sRa}, s{sRa}, {PART_OFF}
s_mov_b32 s{sRole}, 0
s_cmp_lt_u32 s{sH}, 8
s_cselect_b32 s{sT1}, 0, 1
s_cmp_eq_u32 s{sW}, 2
s_cselect_b32 s{sRole}, s{sT1}, s{sRole}
s_cmp_eq_u32 s{sW}, 3
s_cselect_b32 s{sRole}, 1, s{sRole}
s_cmp_ge_u32 s{sT0}, 32
s_cselect_b32 s{sLate}, 1, 0""")
    A(f"""s_lshr_b32 s{sT1}, s{sT0}, 3
s_lshl_b32 s{sT1}, s{sT1}, 10
s_and_b32 s{sT3}, s{sT0}, 1
s_lshl_b32 s{sT3}, s{sT3}, 9
s_add_u32 s{sT1}, s{sT1}, s{sT3}
s_bfe_u32 s{sT3}, s{sT0}, 0x20001
s_lshl_b32 s{sT3}, s{sT3}, 6
s_add_u32 s{sT1}, s{sT1}, s{sT3}
s_lshl_b32 s{sT2}, s{sT0}, 7
s_cmp_ge_u32 s{sT0}, 64
s_cselect_b32 s{sT1}, s{sT2}, s{sT1}
s_cselect_b32 s{sT2}, 6, 8
v_bfe_u32 v10, v0, 2, 1
v_lshlrev_b32 v10, s{sT2}, v10""")
    bits(A, 10, [(1, 1, 5), (4, 1, 4), (0, 1, 3)], 11, False)
    A(f"""v_lshrrev_b32 v11, 5, v0
v_bfe_u32 v12, v0, 3, 1
v_lshl_add_u32 v11, v11, 1, v12
v_mul_u32_u24 v11, {MREP}, v11
v_add3_u32 v{vMst}, v10, v11, s{sT1}""")
    A(f"""v_mov_b64 v[12:13], 0
v_mov_b64 v[14:15], 0
v_mov_b64 v[16:17], 1
v_mov_b64 v[18:19], 1
v_mov_b64 v[20:21], s[{sPz}:{sPz+1}]""")
    if flags:
        A(f"""s_lshl_b32 s{sT0}, s{sH}, 12
s_lshl_b32 s{sT1}, s{sW}, 10
s_add_u32 s{sT0}, s{sT0}, s{sT1}
s_add_u32 s{sT0}, s{sT0}, {FLG_OFF}
buffer_store_dwordx4 v[12:15], v{vL16}, {WS}, s{sT0} offen sc1""")
    A(f"""s_cmp_lg_u32 s{sRole}, 0
s_cbranch_scc1 {L('noinit')}""")
    for i in range(4):
        A(f"buffer_store_dwordx4 v[16:19], v{vL16}, {WS}, s{sRa} offen offset:{i*1024} sc1")
    for slot in range(3):
        A(f"s_mov_b32 s{sT0}, {MIMG_OFF + slot * MIMG_SLOT}")
        A(f"buffer_store_dwordx2 v[20:21], v{vMst}, {WS}, s{sT0} offen sc1")
    A.label(L('noinit'))
    bits(A, 10, [(2, 2, 1), (0, 1, 0)], 11)
    A("v_mul_u32_u24 v10, 1152, v10")
    A("v_mov_b32 v22, v10")
    bits(A, 10, [(4, 2, 3), (1, 1, 2)], 11, False)
    bits(A, 22, [(4, 2, 5), (1, 1, 4)], 11, False)
    A(f"""s_lshl_b32 s{sT0}, s{sW}, 8
v_add_u32 v10, s{sT0}, v10""")
    for b in range(2):
        for t in range(4):
            A(f"global_load_dword v{24+4*b+t}, v10, s[{sMEM0}:{sMEM0+1}] offset:{128*b + 32*t}", manual=True)
    A(f"global_load_dwordx4 v[{R2}:{R2+3}], v22, s[{sMEM0}:{sMEM0+1}] offset:1024", manual=True)
    A(f"""v_bfe_u32 v11, v0, 4, 1
v_lshlrev_b32 v11, 1, v11
v_xor_b32 v11, v11, v0
v_and_b32 v12, 3, v11
v_lshlrev_b32 v13, 4, v12""")
    bits(A, 66, [(5, 1, 18), (2, 1, 17), (3, 1, 14), (4, 1, 13)], 11)
    A("v_add_u32 v66, v66, v13")
    bits(A, 67, [(3, 1, 16), (4, 1, 15), (5, 1, 14), (2, 1, 13)], 11)
    A("v_add_u32 v67, v67, v13")
    bits(A, 14, [(4, 1, 4), (3, 1, 2), (5, 1, 1), (2, 1, 0)], 11)
    A(f"""v_mul_u32_u24 v15, 1152, v14
v_lshrrev_b32 v11, 1, v12
v_mul_u32_u24 v11, {64 * 1152}, v11
v_and_b32 v12, 1, v12
v_lshl_add_u32 v12, v12, 4, v15
v_add_u32 v69, v12, v11
v_lshrrev_b32 v11, 4, v0
v_lshlrev_b32 v11, 1, v11
v_xor_b32 v11, v11, v0
v_and_b32 v11, 7, v11
v_lshlrev_b32 v13, 4, v11""")
    bits(A, 68, [(3, 1, 17), (4, 1, 14), (5, 1, 13)], 11)
    A("v_add_u32 v68, v68, v13")
    bits(A, 70, [(3, 1, 13), (4, 1, 16), (5, 1, 15)], 11)
    A("v_add_u32 v70, v70, v13")
    bits(A, 14, [(3, 1, 0), (4, 1, 2), (5, 1, 4)], 11)
    A("""v_mul_u32_u24 v14, 1152, v14
v_add_u32 v71, v14, v13""")
    sCV, sCO, sCO8, sLds, sCX = sT1, sT2, sT3, sSeg, sNeed
    A(f"""s_lshl_b32 s{sCV}, s{sH}, 8
s_and_b32 s{sT0}, s{sW}, 1
s_lshl_b32 s{sT0}, s{sT0}, 7
s_add_u32 s{sCX}, s{sCV}, s{sT0}
s_lshl_b32 s{sT0}, s{sW}, 6
s_add_u32 s{sCV}, s{sCV}, s{sT0}
s_mul_i32 s{sCO}, s{sH}, {128 * 1152}
s_lshl_b32 s{sT0}, s{sW}, 5
s_add_u32 s{sCO8}, s{sCO}, s{sT0}
s_add_u32 s{sCO8}, s{sCO8}, 1024
s_lshl_b32 s{sT0}, s{sW}, 7
s_add_u32 s{sCO}, s{sCO}, s{sT0}
s_mul_i32 s{sLds}, s{sW}, {L_WSZ}
s_add_u32 s{sLds}, s{sLds}, {L_W}
s_lshl_b32 s{sKXa}, s{sW}, 12
s_cmp_lt_u32 s{sW}, 2
s_cselect_b32 s{SRD_Q}, s{SRD_Q}, s{SRD_K}
s_cselect_b32 s{SRD_Q+1}, s{SRD_Q+1}, s{SRD_K+1}""")
    for p in range(4):
        A(f"""s_xor_b32 s{sT0}, s{sW}, {p}
s_lshl_b32 s{sQP+p}, s{sT0}, 20""")
    items = [('x', j, k5) for j in (1, 2, 4, 5, 6, 7, 8) for k5 in range(2)] + [('v', j) for j in (0, 2, 1, 3, 5, 7, 4)] + \
            [('o', rp, jj, k5) for rp, jj in ((0, 1), (1, 0), (1, 1)) for k5 in range(2)] + \
            [('x', 0, 0), ('x', 0, 1), ('x', 3, 0), ('x', 3, 1), ('o', 0, 0, 0), ('o', 0, 0, 1), ('v', 8), ('v', 6), ('o8',)]
    assert len(items) == 36
    NU_ = 9
    def issue(k):
        it = items[k]; un = k % NU_
        for i in range(4):
            rot = None
            if it[0] == 'x':
                s_, sb = SRD_Q, sCX
                if it[1] == 8:
                    so, vo = (512 + 32 * it[2] + 16 * (i >> 1) + 2 * (i & 1)) * 8192, 70
                else:
                    so, vo, rot = (64 * (it[1] & 1) + 8 * it[2] + 4 * (i >> 1) + 32 * (i & 1)) * 8192, 68, it[1] >> 1
            elif it[0] == 'o':
                s_, sb, vo = SRD_O, sCO, 71
                so = (64 * it[2] + 32 * it[3] + 8 * (i >> 1) + 2 * (i & 1)) * 1152 + it[1] * 512
            elif it[0] == 'v':
                s_, sb = SRD_V, sCV
                if it[1] == 8:
                    so, vo = (512 + 32 * (i >> 1) + 16 * (i & 1)) * 8192, 67
                else:
                    so, vo, rot = (64 * (it[1] & 1) + 8 * (i >> 1) + 4 * (i & 1)) * 8192, 66, it[1] >> 1
            else:
                s_, sb, vo = SRD_O, sCO8, 69
                so = (32 * (i >> 1) + 8 * (i & 1)) * 1152
            A(f"s_add_u32 m0, s{sLds if un < 8 else sKXa}, {(un * 4096 if un < 8 else 0) + i * 1024}")
            A(f"s_add_u32 s{sT0}, s{sb}, {so}")
            if rot is not None:
                A(f"s_add_u32 s{sT0}, s{sT0}, s{sQP + rot}")
            A(f"buffer_load_dwordx4 v{vo}, s[{s_}:{s_+3}], s{sT0} offen lds")
    for k in range(NU_):
        issue(k)
    A(f"""s_mul_i32 s{sT0}, s{sXcc}, s{sXcc}
s_lshl_b32 s{sT0}, s{sT0}, 10
s_add_u32 s{sT0}, s{sT0}, s{sXcc}
s_lshl_b32 s{sT0}, s{sT0}, 8
s_add_u32 s{sXcc}, s{sT0}, 1
v_mov_b32 v12, 128
v_mov_b32 v13, s{sXcc}
s_waitcnt vmcnt(36)
s_barrier
s_cmp_lg_u32 s{sW}, 0
s_cbranch_scc1 {L('arr')}
s_mov_b64 exec, 1
global_atomic_add v12, v13, s[{sDBG}:{sDBG+1}]
s_mov_b64 exec, -1""")
    A.label(L('arr'))
    A(f"""s_mov_b32 s{sKMa}, 0x05040100
s_mov_b32 s{sTa}, 0x07060302""")
    for b, R in ((0, R0), (1, R1)):
        x = 24 + 4 * b
        A(f"""v_perm_b32 v{R}, v{x+1}, v{x}, s{sKMa}
v_perm_b32 v{R+1}, v{x+3}, v{x+2}, s{sKMa}
v_perm_b32 v{R+2}, v{x+1}, v{x}, s{sTa}
v_perm_b32 v{R+3}, v{x+3}, v{x+2}, s{sTa}""")
    A(f"""v_and_b32 v10, 2, v0
v_cmp_eq_u32 vcc, 0, v10
v_mov_b32 v11, 0xeeee
v_mov_b32 v12, 0x4444
v_cndmask_b32 v{vIdx}, v11, v12, vcc""")
    bits(A, 10, [(0, 4, 5), (4, 2, 3)], 11)
    A(f"""s_and_b32 s{sT0}, s{sW}, 1
s_lshl_b32 s{sT0}, s{sT0}, 11
s_add_u32 s{sT0}, s{sT0}, {L_QK}
v_add_u32 v10, s{sT0}, v10
s_cmp_lt_u32 s{sW}, 2
s_cselect_b32 s{sT0}, 4, 0
v_add_u32 v{vQKw}, s{sT0}, v10""")
    bits(A, 10, [(0, 1, 4), (2, 2, 6), (4, 1, 5), (5, 1, 8)], 11)
    A(f"""s_lshl_b32 s{sT0}, s{sW}, 9
s_add_u32 s{sT0}, s{sT0}, {L_O}
v_add_u32 v{vOw}, s{sT0}, v10""")
    bits(A, 10, [(3, 3, 12), (0, 3, 4)], 11)
    bits(A, 12, [(5, 1, 12), (0, 5, 2)], 11)
    A(f"""s_lshl_b32 s{sT0}, s{sH}, 7
v_add_u32 v{vPst}, s{sT0}, v10
v_add_u32 v{vPc}, s{sT0}, v12
s_lshl_b32 s{sT0}, s{sW}, 15
s_add_u32 s{sP0}, s{sT0}, {PART_OFF}
s_add_u32 s{sP1}, s{sP0}, {4 * 32768}
s_lshl_b32 s{sT0}, s{sW}, 13
s_add_u32 s{sP2}, s{sT0}, {PART_OFF + 8 * 32768}
v_add_u32 v{vW}, s{sLds}, v{vL16}
s_mov_b32 s{sEx}, 0xcccccccc
s_mov_b32 s{sEx+1}, 0xcccccccc
s_add_u32 s{sT0}, s{sH}, s{sW}
s_and_b32 s{sT0}, s{sT0}, 3
s_mul_i32 s{sRep}, s{sT0}, {MREP}
s_lshl_b32 s{sTouch}, s{sW}, 12
s_mov_b32 s{sOnes}, 0x3f803f80
s_mov_b32 s{sOnes+1}, 0x3f803f80
s_mov_b32 s{sBig}, {fbits(2.0**60):#x}""")
    A(f"""v_and_b32 v10, 4, v0
v_cmp_eq_u32 vcc, 0, v10
v_mov_b32 v11, 0x3f800000
v_mov_b32 v12, 0x3f80
v_cndmask_b32 v11, v11, v12, vcc
v_and_b32 v10, 3, v0""")
    for d in range(4):
        A(f"""v_cmp_eq_u32 vcc, {d}, v10
v_cndmask_b32 v{20+d}, 0, v11, vcc""")
    A("v_mov_b64 v[42:43], v[20:21]")
    A("v_mov_b64 v[44:45], v[22:23]")
    bits(A, 64, [(5, 1, 10), (4, 1, 8), (4, 1, 5), (2, 2, 6), (0, 2, 3)], 11)
    bits(A, 65, [(5, 1, 11), (4, 1, 9), (2, 2, 7), (3, 2, 5), (0, 2, 3)], 11)
    for k in range(36):
        issued = min(k + NU_, 36)
        it = items[k]; un = k % NU_
        A(f"s_waitcnt vmcnt({4 * (issued - (k + 1))})")
        sbase = sLds if un < 8 else sKXa
        ub = un * 4096 if un < 8 else 0
        wide = it[0] in 'xo' and it[0] != 'o8'
        wb = []
        for n in range(4):
            if wide:
                k5 = it[-1]; tt = n & 1
                ch = (('q', 'k')[n >> 1], it[1]) if it[0] == 'x' else ('o', (2 * it[1] + (n >> 1), it[2]))
                A(f"v_xor_b32 v46, {32 * n}, v65")
                o0, o1 = ub, ub + 1024
            else:
                k5 = n >> 1; tt = n & 1
                ch = ('v', it[1]) if it[0] == 'v' else ('o', 8)
                A(f"v_xor_b32 v46, {32 * tt}, v64")
                o0, o1 = ub + k5 * 2048, ub + k5 * 2048 + 512
            A(f"v_add_u32 v46, s{sbase}, v46")
            if (ch, tt) in _blk:
                f, b = _blk[(ch, tt)]; b += 4 * k5
            else:
                f, b = 'v', 10 + 4 * n
                wb.append((b, lds_off(ch, tt, k5)))
            A(f"ds_read_b64_tr_b16 {rng(f, b, 2)}, v46 offset:{o0}")
            A(f"ds_read_b64_tr_b16 {rng(f, b + 2, 2)}, v46 offset:{o1}")
        A("s_waitcnt lgkmcnt(0)")
        if k + NU_ < 36:
            issue(k + NU_)
        for b, off in wb:
            A(f"ds_write_b128 v{vW}, v[{b}:{b+3}] offset:{off}")
    A("s_barrier")
    A(f"ds_write_b128 v{vL16}, v[42:45] offset:{L_SEL}")
    ts(A, 1, SRD_WS, 10)
    A(f"""v_mov_b32 v10, 128
s_mov_b32 s{sCnt}, 0""")
    A.label(L('rdv_loop'))
    A(f"""global_load_dword v12, v10, s[{sDBG}:{sDBG+1}] sc1
s_add_u32 s{sCnt}, s{sCnt}, 1
v_readfirstlane_b32 s{sT0}, v12
s_cmp_gt_u32 s{sCnt}, {POLL_MAX}
s_cbranch_scc1 {L('rdv_done')}
s_and_b32 s{sT1}, s{sT0}, 0xff
s_cmp_ge_u32 s{sT1}, 32
s_cbranch_scc1 {L('rdv_done')}
s_sleep 4
s_branch {L('rdv_loop')}""")
    A.label(L('rdv_done'))
    A(f"""s_lshl_b32 s{sT1}, s{sXcc}, 5
s_cmp_eq_u32 s{sT0}, s{sT1}
s_cselect_b32 s{sFast}, 1, 0
s_mov_b32 s{sStep}, 0
s_lshl_b32 s{sSeg}, s{sH}, 20
s_mov_b32 s{sMp}, {MIMG_OFF}
s_mov_b32 s{sMw}, {MIMG_OFF + MIMG_SLOT}
s_mov_b32 s{sReady}, 64
s_lshl_b32 s{sW10}, s{sW}, 10
s_sub_u32 s{sW10}, s{sW10}, 2048
s_mov_b32 s{SRD_K}, s{SRD_WS}
s_mov_b32 s{SRD_K+1}, s{SRD_WS+1}
s_cmp_ge_u32 s{sW}, 2
s_cselect_b32 s{SRD_K+2}, {WS_BYTES}, 0
s_mov_b32 s{SRD_R}, s{SRD_WS}
s_mov_b32 s{SRD_R+1}, s{SRD_WS+1}
s_cmp_eq_u32 s{sRole}, 0
s_cselect_b32 s{SRD_R+2}, {WS_BYTES}, 0
s_mov_b32 s{SRD_R+3}, 0x20000
s_add_u32 m0, s{sW11}, {L_KX}""")
    if flags:
        A(f"s_mov_b32 s{sNeed}, 0")
        kv_wait(A, L('kv0'), 16)
    if dbg:
        A(f"s_memtime s[{sTm}:{sTm+1}]")
        A("s_waitcnt lgkmcnt(0)")
        A(f"s_mov_b32 s{sTm+5}, s{sTm}")
        for n in range(NST): A(f"s_mov_b32 s{80+n}, 0")
    ts(A, 2, SRD_WS, 12)
    A(f"s_cmp_eq_u32 s{sFast}, 0")
    A(f"s_cbranch_scc1 {L('S_pre')}")
    gen_loop(A, dbg, tag + '_F', '', L('end'), flags)
    gen_loop(A, dbg, tag + '_S', ' sc1', L('end'), flags)
    A.label(L('end'))
    ts(A, 3, SRD_WS, 10)
    if dbg:
        A(f"""s_memtime s[{sTm+2}:{sTm+3}]
s_waitcnt lgkmcnt(0)
s_sub_u32 s{sT0}, s{sTm+2}, s{sTm}
v_mov_b32 v10, s{sT0}
v_mov_b32 v11, s{sFast}
s_lshl_b32 s{sT1}, s{sH}, 8
s_lshl_b32 s{sT2}, s{sW}, 6
s_add_u32 s{sT1}, s{sT1}, s{sT2}
s_add_u32 s{sT1}, s{sT1}, {DBG_OFF + 0x200000}
v_mov_b32 v12, 0
s_sub_u32 s{sT0}, s{sTm}, s{sTm+6}
v_mov_b32 v13, s{sT0}
s_mov_b64 exec, 1
buffer_store_dwordx2 v[10:11], v12, {WS}, s{sT1} offen
buffer_store_dword v13, v12, {WS}, s{sT1} offen offset:8""")
        for n in range(NST):
            A(f"v_mov_b32 v13, s{80+n}")
            A(f"buffer_store_dword v13, v12, {WS}, s{sT1} offen offset:{16+4*n}")
    A("s_endpgm")


def gen_loop(A, dbg, tag, SC, endlab, flags):
    L = lambda x: f'{tag}_{x}'
    def stamp(n):
        if dbg == 5:
            A(f"""s_memrealtime s[{sTm+2}:{sTm+3}]
s_cmp_eq_u32 s{sStep}, {41 if n in (4, 5, 6, 7) else 40}
s_waitcnt lgkmcnt(0)
s_cselect_b32 s{80+n}, s{sTm+2}, s{80+n}""")
            return
        if dbg not in (2, 3): return
        A(f"""s_memtime s[{sTm+2}:{sTm+3}]
s_waitcnt lgkmcnt(0)
s_sub_u32 s{sTm+4}, s{sTm+2}, s{sTm+5}
s_add_u32 s{80+n}, s{80+n}, s{sTm+4}
s_mov_b32 s{sTm+5}, s{sTm+2}""")
    aQ, aK, aV = 10, 18, 26
    R0, R1, R2 = 34, 38, 58
    SB = 42
    def lds_half(ch, tt, k5, dst, manual=False):
        A(f"ds_read_b128 v[{dst+4*k5}:{dst+4*k5+3}], v{vW} offset:{lds_off(ch, tt, k5)}", manual)
    def lds_blk(ch, tt, dst, manual=False):
        lds_half(ch, tt, 0, dst, manual); lds_half(ch, tt, 1, dst, manual)
    def sched(mf, side):
        side = sorted(enumerate(side), key=lambda x: (x[1][1], x[0]))
        for g, m in enumerate(mf):
            m()
            n = 0
            for e in list(side):
                rel, dl, fn = e[1]
                if rel <= g and (n == 0 or dl <= g):
                    fn(); side.remove(e); n += 1
        assert not side, side
    def zero(b, n):
        for r in range(b, b + n, 2):
            A(f"v_mov_b64 v[{r}:{r+1}], 0")
    def smf(acc, a, b):
        A(f"v_smfmac_f32_16x16x64_bf16 v[{acc}:{acc+3}], v[{a}:{a+3}], {b}, v{vIdx}")
    cur_p = [None]
    def xr(p):
        A(f"v_xor_b32 v62, {p * 2048}, v63")
        cur_p[0] = p
    def rdA(slot, buf, manual=False):
        p = slot >> 1
        if p == 0:
            base = 63
        else:
            if cur_p[0] != p:
                xr(p)
            base = 62
        A(f"ds_read_b128 v[{buf}:{buf+3}], v{base} offset:{L_M + (slot & 1) * 1024}", manual)
    def ps(a, dst, part):
        if part == 0: A(f"v_add_f32 v{a}, v{a}, v{a+2}")
        elif part == 1: A(f"v_add_f32 v{a+1}, v{a+1}, v{a+3}")
        else: A(f"v_cvt_pk_bf16_f32 v{dst}, v{a}, v{a+1}")
    def psum(a, dst):
        for part in range(3): ps(a, dst, part)
    def tagit(r):
        A(f"v_bfi_b32 v{r}, 1, s{sTag}, v{r}")
    def rdX(u, x):
        A(f"ds_read_b64_tr_b16 v[{x}:{x+1}], v{vL8} offset:{L_QK + u*1024}")
        A(f"ds_read_b64_tr_b16 v[{x+2}:{x+3}], v{vL8} offset:{L_QK + u*1024 + 512}")
    def pre_a():
        lds_blk(('q', 0), 0, SB, True); lds_blk(('q', 0), 1, SB + 8, True)
        A(f"""s_lshr_b32 s{sKMa}, s{sSeg}, 1
s_add_u32 s{sKMa}, s{sKMa}, {MEM_OFF}
s_lshr_b32 s{sT1}, s{sW11}, 2
s_add_u32 s{sVMa}, s{sKMa}, s{sT1}
s_add_u32 s{sVMa}, s{sVMa}, 4096
s_add_u32 s{sKMa}, s{sKMa}, s{sW10}
s_add_u32 s{sKXa}, s{sSeg}, s{sW11}
s_add_u32 s{sVXa}, s{sKXa}, 8192
s_cmp_lt_u32 s{sStep}, 63
s_cselect_b32 s{sT0}, {0 if 'a' in EXP else 16384}, 0
s_add_u32 s{sSeg}, s{sSeg}, s{sT0}
s_add_u32 s{sTa}, s{sSeg}, s{sTouch}
s_add_u32 s{sNeed}, s{sStep}, 1
s_min_u32 s{sNeed}, s{sNeed}, 63
s_add_u32 s{sGb}, s{sMw}, s{sRep}
s_add_u32 s{sGa}, s{sGb}, s{sW11}
s_add_u32 s{sGb}, s{sGb}, 8192""")
    def pre_b():
        zero(10, 24)
        A(f"""v_add_u32 v63, s{sW11}, v{vL16}
v_xor_b32 v62, 2048, v63
s_and_b32 s{sTag}, s{sStep}, 1
s_sub_u32 s{sTagM}, 0, s{sTag}""")
    A.label(L('pre'))
    pre_a(); pre_b()
    A("s_waitcnt vmcnt(0) lgkmcnt(0)")
    A(f"s_branch {L('top')}")
    A.label(L('gather'))
    def gpoll():
        A(f"""buffer_load_dwordx4 v[{R0}:{R0+3}], v{vL16}, {WS}, s{sGa} offen sc1
buffer_load_dwordx4 v[{R1}:{R1+3}], v{vL16}, {WS}, s{sGa} offen offset:1024 sc1
buffer_load_dwordx4 v[{R2}:{R2+3}], v{vL16}, {WS}, s{sGb} offen sc1""", manual=True)
    A("s_barrier")
    stamp(5)
    NU = 3
    GW1 = 1
    def gchk():
        A(f"""s_waitcnt vmcnt(2)
v_max_u32 v{vDummy}, v{R0}, v{R0+2}
v_cmp_eq_u32 vcc, s{sPz}, v{vDummy}""")
        if dbg in (2, 3): A(f"s_add_u32 s91, s91, 1")
    gpoll()
    A("s_waitcnt vmcnt(5)")
    pre_b()
    A(f"""s_mov_b32 s{sCnt}, 0
s_mov_b32 s{sMp}, s{sMw}
s_add_u32 s{sMw}, s{sMw}, {MIMG_SLOT}
s_cmp_eq_u32 s{sMw}, {MIMG_OFF + 3 * MIMG_SLOT}
s_cselect_b32 s{sMw}, {MIMG_OFF}, s{sMw}
s_waitcnt lgkmcnt(0)""")
    gchk()
    A(f"s_cbranch_vccnz {L('g_poll')} ;exit")
    A.label(L('top'))
    stamp(6)
    if 'h' in EXP:
        for buf, lab in ((R1, 'late1'), (R2, 'late2')):
            A(f"""s_waitcnt vmcnt(0)
v_max_u32 v{vDummy}, v{buf}, v{buf+2}
v_cmp_eq_u32 vcc, s{sPz}, v{vDummy}
s_cbranch_vccnz {L(lab)} ;exit""")
            A.label(L(lab + 'r') + ' ;soft')
        A(f"""v_mov_b32 v64, s{sTag}
v_mov_b32 v65, 0
v_mov_b64 v[66:67], 0
s_cmp_eq_u32 s{sStep}, {NSTEPS - 1}
s_cbranch_scc1 {endlab} ;exit
s_barrier""")
        stamp(7)
        A(f"""buffer_store_dwordx4 v[64:67], v{vPst}, {WS}, s{sP1} offen{SC}
buffer_store_dword v64, v{vPc}, {WS}, s{sP2} offen{SC}""")
        if 'd' in EXP:
            for _ in range(8): A("s_nop 15")
        A(f"""buffer_store_dwordx4 v[64:67], v{vPst}, {WS}, s{sP0} offen{SC}
s_branch {L('wend')}""")
    groups = [('q', 0), ('v', 0), ('q', 1), ('k', 0), ('k', 1), ('q', 8), ('v', 8), ('k', 8), ('q', 2), ('q', 3), ('k', 2),
              ('q', 4), ('k', 3), ('k', 4), ('q', 5), ('q', 6), ('q', 7), ('k', 5), ('k', 6), ('k', 7)]
    abuf = {0: R0, 1: R1, 8: R2, 2: R0, 3: R1, 4: R2, 5: R0, 6: R1, 7: R2}
    KB = [SB, SB + 8]
    def rdK(u, t=None):
        k = KB[u & 1]
        if t in (None, 0): A(f"ds_read_b128 v[{k}:{k+3}], v{vL16} offset:{L_KX + u*1024}")
        if t in (None, 1): A(f"ds_read_b128 v[{k+4}:{k+7}], v{vL16} offset:{L_KX + 4096 + u*1024}")
    def barrier0():
        A("s_waitcnt lgkmcnt(%d)" % NB0)
        A("s_barrier")
        if dbg == 5: stamp(7)
        rdA(2, R0)
    def chk(buf, lab, part):
        if part == 0:
            A(f"v_max_u32 v{vDummy}, v{buf}, v{buf+2}")
        elif part == 1:
            A(f"v_cmp_eq_u32 vcc, s{sPz}, v{vDummy}")
        else:
            if 'h' in EXP: return
            A(f"s_cbranch_vccnz {L(lab)} ;exit")
            A.label(L(lab + 'r') + ' ;soft')
    def kvchk():
        if flags:
            A(f"""s_cmp_le_u32 s{sReady}, s{sNeed}
s_cbranch_scc1 {L('kvw')} ;exit""")
            A.label(L('kvr') + ' ;soft')
    def dump():
        A(f"""s_mul_i32 s{sT0}, s{sStep}, 16384
s_add_u32 s{sT0}, s{sT0}, {DBG_OFF}
s_cmp_eq_u32 s{sH}, 0
s_cselect_b32 s{sT0}, s{sT0}, {DBG_OFF + 0x100000}
s_add_u32 s{sT1}, s{sT0}, 8192
buffer_store_dwordx4 v[{R0}:{R0+3}], v63, {WS}, s{sT0} offen
buffer_store_dwordx4 v[{R1}:{R1+3}], v63, {WS}, s{sT0} offen offset:1024
buffer_store_dwordx4 v[{R2}:{R2+3}], v{vL16}, {WS}, s{sT1} offen""")
    def wq(t, r):
        A(f"ds_write_b32 v{vQKw}, v{r} offset:{t * 512}")
    mf = []
    for ch in groups:
        acc = {'q': aQ, 'k': aK, 'v': aV}[ch[0]]
        for tt in range(2):
            b = blk_regs(ch, tt) if (ch, tt) in _blk else rng('v', SB + 8 * tt, 8)
            mf.append(lambda acc=acc, tt=tt, ch=ch, b=b: smf(acc + 4 * tt, abuf[ch[1]], b))
    def stream(ch, rel):
        return [(rel, rel + 1, lambda: lds_half(ch, 0, 0, SB)), (rel, rel + 2, lambda: lds_half(ch, 0, 1, SB)),
                (rel + 1, rel + 2, lambda: lds_half(ch, 1, 0, SB + 8)), (rel + 1, rel + 3, lambda: lds_half(ch, 1, 1, SB + 8))]
    cur_p[0] = 1
    NB0 = 4
    TG = int(os.environ.get('TG', '18'))
    side = stream(('k', 0), 0) + [
        (1, 1, lambda: (A("s_waitcnt vmcnt(%d)" % GW1), chk(R1, 'late1', 0))),
        (2, 2, lambda: chk(R1, 'late1', 1)),
        (3, 3, lambda: chk(R1, 'late1', 2)),
        (4, 4, lambda: A(f"ds_write_b128 v63, v[{R0}:{R0+3}] offset:{L_M}")),
        (5, 5, lambda: A(f"ds_write_b128 v63, v[{R1}:{R1+3}] offset:{L_M + 1024}")),
        (7, 7, lambda: (A("s_waitcnt vmcnt(0)"), chk(R2, 'late2', 0))),
        (8, 8, lambda: chk(R2, 'late2', 1)),
        (9, 9, lambda: (chk(R2, 'late2', 2), dump() if dbg == 1 else None)),
        (10, 10, barrier0),
        (11, 11, lambda: rdA(3, R1)),
        (14, 15, lambda: xr(2)),
        (16, 16, lambda: rdA(4, R2)),
        (11, 11, lambda: A(f"buffer_load_dwordx4 v{vL16}, {WS}, s{sKXa} offen sc1 lds")),
        (12, 12, lambda: A(f"buffer_load_dwordx4 v{vL16}, {WS}, s{sKXa} offen offset:1024 sc1 lds")),
        (13, 13, lambda: A(f"buffer_load_dwordx4 v[{VX}:{VX+3}], v{vL16}, {WS}, s{sVXa} offen sc1", manual=True)),
        (14, 14, lambda: A(f"buffer_load_dwordx4 v[{VX+4}:{VX+7}], v{vL16}, {WS}, s{sVXa} offen offset:1024 sc1", manual=True)),
        (17, 17, lambda: A(f"v_lshlrev_b32 v{vDummy}, 2, v{vL16}")),
        (TG, TG, lambda: A(f"buffer_load_dword v{vDummy}, v{vDummy}, {WS}, s{sTa} offen sc1", manual=True)),
        (22, 22, lambda: rdA(5, R0)),
        (23, 23, lambda: xr(3)),
        (26, 26, lambda: rdA(6, R1)),
        (28, 28, lambda: rdA(7, R2)),
        (34, 34, lambda: ps(aQ, aQ + 2, 0)), (35, 35, lambda: ps(aQ, aQ + 2, 1)),
        (36, 36, lambda: ps(aQ + 4, aQ + 3, 0)), (37, 37, lambda: ps(aQ + 4, aQ + 3, 1)),
        (38, 38, lambda: ps(aQ, aQ + 2, 2)), (39, 39, lambda: ps(aQ + 4, aQ + 3, 2)),
    ] + stream(('v', 8), 6) + stream(('q', 3), 12) + stream(('k', 3), 18) + stream(('v', 6), 24)
    if flags:
        side.append((11, 11, kvchk))
    sched(mf, side)
    def vs(slot, buf, tts=(0, 1)):
        for tt in tts:
            b = blk_regs(('v', slot), tt) if (('v', slot), tt) in _blk else rng('v', SB + 8 * tt, 8)
            smf(aV + 4 * tt, buf, b)
    vs(7, R2, (0,))
    psum(aK, aQ + 4)
    wq(2, aQ + 4)
    psum(aK + 4, aQ + 5)
    wq(3, aQ + 5)
    vs(7, R2, (1,))
    wq(0, aQ + 2)
    vs(6, R1, (0,))
    wq(1, aQ + 3)
    vs(6, R1, (1,)); rdA(1, R1)
    vs(5, R0, (0,)); xr(1)
    vs(5, R0, (1,))
    A("s_waitcnt lgkmcnt(1) vmcnt(1)")
    A(f"buffer_store_dwordx4 v[{aQ+2}:{aQ+5}], v{vL16}, s[{SRD_K}:{SRD_K+3}], s{sKMa} offen sc1")
    A("s_barrier")
    stamp(0)
    S0, S1, SM = 10, 14, 18
    XB = [22, R2]
    def pubk(u):
        if 'k' in EXP: return
        x = XB[u & 1]
        A(f"""s_cmp_eq_u32 s{sW}, {u}
s_cselect_b64 exec, -1, 0
buffer_store_dwordx4 v[{x}:{x+3}], v{vL16}, {WS}, s{sKMa} offen offset:{u*1024} sc1
s_mov_b64 exec, -1""")
    def sc(u, ex=()):
        x, k = XB[u & 1], KB[u & 1]
        c = lambda r: '0' if u == 0 else f'v[{r}:{r+3}]'
        ops = [f"v_mfma_f32_16x16x32_bf16 v[{SM}:{SM+3}], v[{x}:{x+3}], v[{x}:{x+3}], {c(SM)}",
               f"v_mfma_f32_16x16x32_bf16 v[{S0}:{S0+3}], v[{k}:{k+3}], v[{x}:{x+3}], {c(S0)}",
               f"v_mfma_f32_16x16x32_bf16 v[{S1}:{S1+3}], v[{k+4}:{k+7}], v[{x}:{x+3}], {c(S1)}"]
        for n, o in enumerate(ops):
            A(o)
            if n < len(ex) and ex[n]: ex[n]()
    rdX(0, XB[0]); rdK(0); rdA(2, R0); rdX(1, XB[1]); rdK(1)
    vs(1, R1); rdA(3, R1)
    sc(0, (None, lambda: xr(2), lambda: (rdX(2, XB[0]), rdK(2))))
    sc(1, (None, None, lambda: (rdX(3, XB[1]), rdK(3))))
    vs(2, R0); rdA(4, R0)
    sc(2, (None, None, lambda: lds_blk(('o', (0, 0)), 0, 42)))
    sc(3, (None, None, lambda: lds_blk(('o', (0, 0)), 1, 50)))
    stamp(1)
    sv = [S0, S0+1, S0+2, S0+3, S1, S1+1, S1+2, S1+3, SM, SM+1]
    PX, VMr = 58, 28
    O0, O1, LSUM, ONE = 34, 38, 30, 22
    A(f"v_mul_f32 v{SM}, s{sC}, v{SM}")
    vs(3, R1, (0,))
    A(f"v_mul_f32 v{SM+1}, s{sC}, v{SM+1}")
    vs(3, R1, (1,))
    A(f"v_exp_f32 v62, v{SM}")
    vs(4, R0, (0,))
    A(f"v_exp_f32 v63, v{SM+1}")
    vs(4, R0, (1,))
    A(f"""v_exp_f32 v22, v{sv[0]}
v_exp_f32 v23, v{sv[1]}
v_cvt_pk_bf16_f32 v20, v62, v63
v_exp_f32 v24, v{sv[2]}
v_exp_f32 v25, v{sv[3]}
v_cvt_pk_bf16_f32 v{PX}, v22, v23""")
    psum(aV, VMr)
    psum(aV + 4, VMr + 1)
    A(f"""v_mov_b32 v21, 0
v_cvt_pk_bf16_f32 v63, v62, v63
v_mov_b32 v62, 0
v_exp_f32 v22, v{sv[4]}
v_mfma_f32_16x16x16_bf16 v[{O0}:{O0+3}], v[{VMr}:{VMr+1}], v[20:21], 0
{'s_nop 0' if 'v' in EXP else f'buffer_store_dwordx2 v[{VMr}:{VMr+1}], v{vL8}, {WS}, s{sVMa} offen sc1'}
s_cmp_eq_u32 s{sStep}, {NSTEPS - 1}
v_exp_f32 v23, v{sv[5]}
v_cvt_pk_bf16_f32 v{PX+1}, v24, v25
v_mfma_f32_16x16x16_bf16 v[{O1}:{O1+3}], v[{VMr}:{VMr+1}], v[62:63], 0
s_cbranch_scc1 {endlab} ;exit
v_exp_f32 v24, v{sv[6]}
v_exp_f32 v25, v{sv[7]}
v_cvt_pk_bf16_f32 v{PX+2}, v22, v23
v_mov_b64 v[{ONE}:{ONE+1}], s[{sOnes}:{sOnes+1}]
v_cvt_pk_bf16_f32 v{PX+3}, v24, v25
v_mov_b64 v[{ONE+2}:{ONE+3}], s[{sOnes}:{sOnes+1}]
v_mfma_f32_16x16x16_bf16 v[{LSUM}:{LSUM+3}], v[{ONE}:{ONE+1}], v[20:21], 0
v_mfma_f32_16x16x32_bf16 v[{O0}:{O0+3}], v[{VX}:{VX+3}], v[{PX}:{PX+3}], v[{O0}:{O0+3}]
v_mfma_f32_16x16x32_bf16 v[{LSUM}:{LSUM+3}], v[{ONE}:{ONE+3}], v[{PX}:{PX+3}], v[{LSUM}:{LSUM+3}]
v_mfma_f32_16x16x32_bf16 v[{O1}:{O1+3}], v[{VX+4}:{VX+7}], v[{PX}:{PX+3}], v[{O1}:{O1+3}]
v_rcp_f32 v31, v30""")
    def norm():
        for n, o in enumerate((O0, O0 + 2, O1, O1 + 2)):
            A(f"v_pk_mul_f32 v[{o}:{o+1}], v[{o}:{o+1}], v[30:31] op_sel:[0,1] op_sel_hi:[1,1]")
        for n, o in enumerate((O0, O0 + 2, O1, O1 + 2)):
            A(f"v_cvt_pk_bf16_f32 v{PX + n}, v{o}, v{o+1}")
    norm()
    A(f"""s_mov_b64 exec, s[{sEx}:{sEx+1}]
ds_write_b128 v{vOw}, v[{PX}:{PX+3}]
v_max_f32 v32, v30, v31
v_cmp_nlt_f32 vcc, v32, s{sBig}
s_mov_b64 exec, -1
s_cbranch_vccnz {L('slow')} ;exit""")
    A.label(L('slowret') + ' ;soft')
    zero(18, 8); zero(VX, 8)
    A("s_waitcnt lgkmcnt(0)")
    A("s_barrier")
    stamp(2)
    OA = [10, 14]
    A(f"ds_read_b128 v[{OA[0]}:{OA[0]+3}], v{vL16} offset:{L_O}")
    A(f"ds_read_b128 v[{OA[1]}:{OA[1]+3}], v{vL16} offset:{L_O + 1024}")
    zero(26, 16)
    seqr = [0, 2, 3, 1]
    ACS = {0: 18, 2: VX, 3: 26, 1: 34}
    RB, RA = 58, VX
    mf = []
    for r in seqr:
        for jj in ((0, 1) if r != 1 else (1, 0)):
            for tt in range(2):
                ch = ('o', (r, jj))
                b = blk_regs(ch, tt) if (ch, tt) in _blk else rng('v', SB + 8 * tt, 8)
                mf.append(lambda r=r, jj=jj, tt=tt, b=b: smf(ACS[r] + 4 * tt, OA[jj], b))
    mf.insert(12, lambda: smf(VX + 4, OA[0], 'v[18:25]'))
    mf.insert(13, lambda: smf(VX + 4, OA[1], blk_regs(('o', 8), 1)))
    def P(a, dst, g0):
        return [(g0, g0, lambda: ps(a, dst, 0)), (g0, g0 + 1, lambda: ps(a, dst, 1)), (g0 + 1, g0 + 1, lambda: ps(a, dst, 2))]
    side = [(0, 1, lambda: lds_half(('o', (1, 0)), 0, 0, SB)), (0, 2, lambda: lds_half(('o', (1, 0)), 0, 1, SB)),
            (1, 3, lambda: lds_half(('o', (1, 0)), 1, 0, SB + 8)), (1, 3, lambda: lds_half(('o', (1, 0)), 1, 1, SB + 8))]
    side += P(18, 62, 4) + P(22, 63, 6)
    side += [(7, 7, lambda: lds_half(('o', 8), 0, 0, 18)), (7, 8, lambda: lds_half(('o', 8), 0, 1, 18))]
    side += P(VX + 4, RB + 1, 9) + P(VX, RB, 8) + [(10, 10, lambda: zero(VX + 4, 2)), (10, 11, lambda: zero(VX + 6, 2)), (11, 11, lambda: tagit(RB))]
    side += P(26, RB + 2, 12) + P(30, RB + 3, 13)
    side += [(14, 14, lambda: A(f"buffer_store_dwordx4 v[{RB}:{RB+3}], v{vPst}, {WS}, s{sP1} offen{SC}"))]
    side += P(VX + 4, 26, 15) + [(16, 16, lambda: tagit(26)), (17, 17, lambda: A(f"buffer_store_dword v26, v{vPc}, {WS}, s{sP2} offen{SC}")),
                                 (17, 17, lambda: A(f"v_bfi_b32 v{RA}, 1, s{sTag}, v62")), (17, 17, lambda: A(f"v_mov_b32 v{RA+1}, v63"))]
    sched(mf, side)
    psum(34, RA + 2)
    psum(38, RA + 3)
    A(f"buffer_store_dwordx4 v[{RA}:{RA+3}], v{vPst}, {WS}, s{sP0} offen{SC}")
    SETS = [26, 10]
    D = VX + 4
    def rpoll(k):
        b = SETS[k & 1]
        for i in range(4):
            A(f"buffer_load_dwordx4 v[{b+4*i}:{b+4*i+3}], v{vL16}, s[{SRD_R}:{SRD_R+3}], s{sRa} offen offset:{i*1024} sc1", manual=True)
    A.label(L('wend') + ' ;soft')
    if 'e' in EXP:
        for _ in range(int(os.environ.get('DLY', '4'))): A("s_nop 15")
    if 'E' not in EXP: rpoll(0)
    A(f"ds_read_b128 v[58:61], v{vL16} offset:{L_SEL}", manual=True)
    stamp(3)
    A(f"s_add_u32 s{sStep}, s{sStep}, 1")
    ts(A, 8, SRD_WS, 62, sStep)
    pre_a()
    A(f"s_cmp_lg_u32 s{sRole}, 0")
    A(f"s_cbranch_scc1 {L('nored')} ;exit")
    A(f"s_mov_b32 s{sCnt}, 0")
    if 'E' in EXP:
        A("s_waitcnt vmcnt(%s)" % os.environ.get('W0', '2'))
        rpoll(0)
        A("s_waitcnt vmcnt(%s)" % os.environ.get('W1', '4'))
    A("s_waitcnt lgkmcnt(0)")
    A.label(L('r_poll'))
    for n in range(4):
        rpoll(n + 1)
        b = SETS[n & 1]
        for i in range(4):
            A(f"s_waitcnt vmcnt({7 - i})")
            A(f"v_mfma_f32_16x16x32_bf16 v[{D}:{D+3}], v[58:61], v[{b+4*i}:{b+4*i+3}], {'0' if i == 0 else rng('v', D, 4)}")
            if i == 1:
                A(f"v_bitop3_b32 v62, v{b}, v{b+4}, s{sTagM} bitop3:0x7e")
        A(f"""v_bitop3_b32 v63, v{b+8}, v{b+12}, s{sTagM} bitop3:0x7e
v_bitop3_b32 v62, v62, v63, 1 bitop3:0xa8
v_cmp_ne_u32 vcc, 0, v62""")
        for r in range(D, D + 4):
            A(f"v_add_f32_dpp v{r}, v{r}, v{r} row_ror:8 row_mask:0xf bank_mask:0xf")
        A(f"""v_cvt_pk_bf16_f32 v{D}, v{D}, v{D+1}
v_cvt_pk_bf16_f32 v{D+1}, v{D+2}, v{D+3}""")
        if dbg == 2: A(f"s_add_u32 s90, s90, 1")
        A(f"s_cbranch_vccz {L('r_go')} ;exit")
    A(f"""s_add_u32 s{sCnt}, s{sCnt}, 1
s_cmp_lt_u32 s{sCnt}, {POLL_MAX}
s_cbranch_scc1 {L('r_poll')} ;nofence""")
    A.label(L('r_go'))
    A(f"buffer_store_dwordx2 v[{D}:{D+1}], v{vMst}, {WS}, s{sMw} offen{SC}")
    stamp(4)
    A(f"""v_mov_b64 v[62:63], s[{sPz}:{sPz+1}]
buffer_store_dwordx2 v[62:63], v{vMst}, {WS}, s{sMp} offen{SC}
s_branch {L('gather')} ;exit""")
    A.label(L('nored'))
    A(f"""s_waitcnt vmcnt(0) lgkmcnt(0)
s_branch {L('gather')}""")
    A.label(L('g_poll'))
    gpoll()
    gchk()
    A(f"""s_add_u32 s{sCnt}, s{sCnt}, 1
s_cbranch_vccz {L('top')} ;exit
s_cmp_lt_u32 s{sCnt}, {POLL_MAX}
s_cbranch_scc1 {L('g_poll')} ;nofence
s_branch {L('top')}""")
    for lab, buf, so, off in (('late1', R1, sGa, 1024), ('late2', R2, sGb, 0)):
        A.label(L(lab))
        A(f"s_mov_b32 s{sCnt}, 0")
        A.label(L(lab + 'l'))
        if dbg == 2: A(f"s_add_u32 s89, s89, 1")
        A(f"""buffer_load_dwordx4 v[{buf}:{buf+3}], v{vL16}, {WS}, s{so} offen offset:{off} sc1
s_add_u32 s{sCnt}, s{sCnt}, 1
v_max_u32 v{vDummy}, v{buf}, v{buf+2}
v_cmp_eq_u32 vcc, s{sPz}, v{vDummy}
s_cmp_gt_u32 s{sCnt}, {POLL_MAX}
s_cbranch_scc1 {L(lab + 'r')} ;exit
s_cbranch_vccnz {L(lab + 'l')} ;nofence
s_branch {L(lab + 'r')} ;exit""")
    if flags:
        A.label(L('kvw'))
        A("s_nop 3")
        kv_wait(A, L('kvl'), VX)
        A(f"s_branch {L('kvr')}")
    A.label(L('slow'))
    A("s_nop 15")
    A(f"""v_max3_f32 v30, v{sv[0]}, v{sv[1]}, v{sv[2]}
v_max3_f32 v31, v{sv[3]}, v{sv[4]}, v{sv[5]}
v_max3_f32 v30, v30, v{sv[6]}, v{sv[7]}
v_max3_f32 v31, v31, v{sv[8]}, v{sv[9]}
v_max_f32 v30, v30, v31
v_mov_b32 v31, v30
v_permlane32_swap_b32 v30, v31
v_max_f32 v30, v30, v31
v_mov_b32 v31, v30
v_permlane16_swap_b32 v30, v31
v_max_f32 v30, v30, v31""")
    for r in sv:
        A(f"v_sub_f32 v{r}, v{r}, v30")
    for r in sv:
        A(f"v_exp_f32 v{r}, v{r}")
    for n in range(4):
        A(f"v_cvt_pk_bf16_f32 v{PX+n}, v{sv[2*n]}, v{sv[2*n+1]}")
    A(f"""v_cvt_pk_bf16_f32 v20, v{SM}, v{SM+1}
v_mov_b32 v21, 0
v_mov_b32 v18, 0
v_mov_b32 v19, v20
v_mfma_f32_16x16x32_bf16 v[{O1}:{O1+3}], v[{VX+4}:{VX+7}], v[{PX}:{PX+3}], 0
v_mfma_f32_16x16x32_bf16 v[{O0}:{O0+3}], v[{VX}:{VX+3}], v[{PX}:{PX+3}], 0
v_mfma_f32_16x16x32_bf16 v[{LSUM}:{LSUM+3}], v[{ONE}:{ONE+3}], v[{PX}:{PX+3}], 0
v_mfma_f32_16x16x16_bf16 v[{O1}:{O1+3}], v[{VMr}:{VMr+1}], v[18:19], v[{O1}:{O1+3}]
v_mfma_f32_16x16x16_bf16 v[{O0}:{O0+3}], v[{VMr}:{VMr+1}], v[20:21], v[{O0}:{O0+3}]
v_mfma_f32_16x16x16_bf16 v[{LSUM}:{LSUM+3}], v[{ONE}:{ONE+1}], v[20:21], v[{LSUM}:{LSUM+3}]
v_rcp_f32 v31, v30""")
    norm()
    A(f"""s_mov_b64 exec, s[{sEx}:{sEx+1}]
ds_write_b128 v{vOw}, v[{PX}:{PX+3}]
s_mov_b64 exec, -1
s_waitcnt lgkmcnt(0)
s_branch {L('slowret')}""")
```

```python
KVX_OFF  = 0x0000000
MEM_OFF  = 0x2000000
PART_OFF = 0x3000000
MIMG_OFF = 0x3100000
MIMG_SLOT = 65536
MREP = 9472
FLG_OFF  = 0x3180000
DBG_OFF  = 0x3200000
OB_OFF   = 0x3800000
QKA_OFF  = 0x4800000
VTA_OFF  = 0x4D00000
OA_OFF   = 0x5000000
WS_BYTES = 0x10000000

L_M   = 0
L_QK  = 8192
L_O   = 12288
L_SEL = 14336
L_KX  = 16384
L_W   = 24576
L_WSZ = 34816
LDS_BYTES = 163840
POISON = 0xFFBFFFBF
```

```python
from asmlib import Asm
from layout import *
from gemm import *
from chain import fbits, srd
import math
from prof import ts
POLL_MAX = 400000
CA = (18 ** -0.5) * math.log2(math.e)

sA, sW = 3, 4
SXA, SWQ, SWO, SWOB, SWS, SOUT = 8, 12, 16, 20, 24, 76
sDBG = 28
sT0, sT1, sT2, sLds, sCol, sSeg, sPair, sBuf, sXw, sLw, sSc, sOut, sCnt, sNext, sBufN, sFirst = range(32, 48)
WS = f"s[{SWS}:{SWS+3}]"
OUT = f"s[{SOUT}:{SOUT+3}]"
vL16, vTr, vTr1, vWo, vXo, vX, vTr0 = 1, 2, 3, 4, 5, 6, 7
XB = [8, 12, 16, 20]
ACC = 24
DEPTH = 12

def a_setup(A, pretouch=False):
    A(f"""s_load_dwordx4 s[60:63], s[0:1], 0
s_load_dwordx2 s[64:65], s[0:1], 16
s_load_dwordx2 s[66:67], s[0:1], 64
s_load_dwordx2 s[68:69], s[0:1], 80
s_load_dwordx4 s[72:75], s[0:1], 88
v_lshrrev_b32 v10, 6, v0
v_and_b32 v0, 63, v0
v_readfirstlane_b32 s{sW}, v10
s_waitcnt lgkmcnt(0)""")
    srd(A, SXA, 60, 2048 * 1152)
    srd(A, SWQ, 62, 576 * 3456)
    srd(A, SWO, 64, 576 * 1152)
    srd(A, SWOB, 66, 4096 * 1152)
    srd(A, SWS, 74, WS_BYTES)
    srd(A, SOUT, 68, 2048 * 2304)
    A(f"""s_mov_b32 s{sDBG}, s72
s_mov_b32 s{sDBG+1}, s73""")
    ts(A, 0, SWS, 10)
    emit_lane_consts(A, vL16, vTr0, 10, 11)
    if pretouch:
        A(f"""s_load_dwordx4 s[80:83], s[0:1], 40
s_load_dwordx2 s[84:85], s[0:1], 56
s_lshl_b32 s{sT0}, s{sA}, 2
s_add_u32 s{sT0}, s{sT0}, s{sW}
s_mul_i32 s{sT0}, s{sT0}, 9216
v_add_u32 v10, s{sT0}, v{vL16}
v_add_u32 v11, 4096, v10
v_add_u32 v12, 8192, v10
s_waitcnt lgkmcnt(0)""")
        n = 0
        for base in (80, 82, 84, 66):
            for k in range(9):
                A(f"global_load_dwordx4 v[{100+4*n}:{103+4*n}], v{10 + k // 4}, s[{base}:{base+1}] offset:{(k % 4) * 1024}", manual=True)
                n += 1
    emit_xdma_off(A, vXo, 1152, 10)
    A(f"""s_lshr_b32 s{sT0}, s{sW}, 1
s_mul_i32 s{sXw}, s{sT0}, {16 * 1152}
s_and_b32 s{sT0}, s{sW}, 1
s_mul_i32 s{sT0}, s{sT0}, 576
s_add_u32 s{sXw}, s{sXw}, s{sT0}
s_mul_i32 s{sLw}, s{sW}, 9216""")

def divmod_const(A, sq, sr, sx, d, st):
    m = (1 << 16) // d + 1
    A(f"""s_mul_i32 s{sq}, s{sx}, {m}
s_lshr_b32 s{sq}, s{sq}, 16
s_mul_i32 s{st}, s{sq}, {d}
s_sub_u32 s{sr}, s{sx}, s{st}""")

def wait_flags(A, lab, soff, nlanes=64):
    A(f"""s_cmp_lg_u32 s{sW}, 0
s_cbranch_scc1 {lab}_d
v_lshrrev_b32 v10, 1, v{vL16}
v_min_u32 v10, {8 * (nlanes - 1)}, v10
s_mov_b32 s{sCnt}, 0""")
    A.label(lab)
    A(f"""buffer_load_dwordx2 v[20:21], v10, {WS}, s{soff} offen sc1
s_add_u32 s{sCnt}, s{sCnt}, 1
v_and_b32 v20, v20, v21
v_cmp_ne_u32 vcc, 1, v20
s_cmp_gt_u32 s{sCnt}, {POLL_MAX}
s_cbranch_scc1 {lab}_d
s_cbranch_vccz {lab}_d
s_sleep 8
s_branch {lab}""")
    A.label(lab + '_d')
    A("s_barrier")

def signal_wg(A, lab, base):
    A(f"""s_waitcnt vmcnt(0)
s_barrier
s_cmp_lg_u32 s{sW}, 0
s_cbranch_scc1 {lab}
s_lshl_b32 s{sT0}, s{sA}, 2
s_add_u32 s{sT0}, s{sT0}, {base}
v_mov_b32 v11, 1
s_mov_b64 exec, 1
buffer_store_dword v11, v{vL16}, {WS}, s{sT0} offen sc1
s_mov_b64 exec, -1""")
    A.label(lab)

def gemm_phase(A, tag, SX, xbase, xmods, SWt, ldw, stride, orient, epi, pre_x=None):
    L = lambda x: f'{tag}_{x}'
    d1 = emit_wdma_off(A, vWo, ldw, 10, 11)
    A(f"""s_mul_i32 s{sLds}, s{sW}, {DEPTH * 2048}
v_add_u32 v{vTr}, s{sLds}, v{vTr0}
v_xor_b32 v{vTr1}, 32, v{vTr}
s_lshl_b32 s{sCol}, s{sPair}, 6""")
    items = [(SWt, vWo, sCol, u * 32 * ldw, d1 * ldw, u, 18 + u) for u in range(18)]
    def xdma(sseg, sbuf):
        A(f"""s_min_u32 s{sT1}, s{sseg}, 63
s_mul_i32 s{sT1}, s{sT1}, {32 * 1152}
s_add_u32 s{sT1}, s{sT1}, s{sXw}
s_add_u32 s{sT1}, s{sT1}, {xbase}
s_add_u32 s{sT2}, s{sbuf}, s{sLw}""")
        emit_xdma(A, SX, vXo, sT1, None, sT2, sT0, None, 1152, xmods)
    A(f"""s_mov_b32 s{sSeg}, s{sFirst}
s_mov_b32 s{sBuf}, {3 * 36864}
s_add_u32 s{sNext}, s{sFirst}, {stride}
s_mov_b32 s{sBufN}, 0""")
    if pre_x is None:
        xdma(sSeg, sBuf)
    emit_wload(A, items, vTr, vTr1, sLds, sT0, DEPTH)
    if pre_x is not None:
        pre_x()
        xdma(sSeg, sBuf)
    A("s_barrier")
    xdma(sNext, sBufN)
    A("s_waitcnt vmcnt(9)")
    A.label(L('loop'))
    A("s_barrier")
    A(f"""s_add_u32 s{sNext}, s{sNext}, {stride}
s_add_u32 s{sBufN}, s{sBufN}, 36864
s_cmp_eq_u32 s{sBufN}, {4 * 36864}
s_cselect_b32 s{sBufN}, 0, s{sBufN}""")
    xdma(sNext, sBufN)
    A(f"v_add_u32 v{vX}, s{sBuf}, v{vL16}")
    emit_group_mma(A, [(0, orient), (18, orient)], vX, XB, ACC)
    A("s_waitcnt vmcnt(9)")
    epi()
    A(f"""s_add_u32 s{sSeg}, s{sSeg}, {stride}
s_add_u32 s{sBuf}, s{sBuf}, 36864
s_cmp_eq_u32 s{sBuf}, {4 * 36864}
s_cselect_b32 s{sBuf}, 0, s{sBuf}
s_cmp_lt_u32 s{sSeg}, 64
s_cbranch_scc1 {L('loop')}""")
    A("s_waitcnt vmcnt(0)")

def gen_a1(A, flags, tag='A1'):
    L = lambda x: f'{tag}_{x}'
    A(f"s_cmp_ge_u32 s{sA}, 126")
    A(f"s_cbranch_scc1 {L('skip')}")
    divmod_const(A, sT1, sFirst, sA, 9, sT0)
    A(f"""s_lshl_b32 s{sPair}, s{sT1}, 2
s_add_u32 s{sPair}, s{sPair}, s{sW}
s_min_u32 s{sPair}, s{sPair}, 53
s_cmp_lt_u32 s{sPair}, 18
s_cselect_b32 s{sSc}, {fbits(CA):#x}, 1.0
s_cmp_ge_u32 s{sT1}, 9
s_cbranch_scc1 {L('v')}""")
    A(f"""v_and_b32 v10, 15, v0
v_mul_u32_u24 v10, 2304, v10
v_lshrrev_b32 v11, 4, v0
v_lshl_add_u32 v56, v11, 3, v10""")
    def epi_qk():
        A(f"""s_mul_i32 s{sOut}, s{sSeg}, {32 * 2304}
s_add_u32 s{sOut}, s{sOut}, s{sCol}
s_add_u32 s{sOut}, s{sOut}, {QKA_OFF}
s_add_u32 s{sT0}, s{sOut}, {16 * 2304}""")
        for t in range(2):
            for tt in range(2):
                a = ACC + (2 * t + tt) * 4; d = 58 + 2 * (2 * t + tt)
                for r in range(4):
                    A(f"v_mul_f32 v{a+r}, s{sSc}, v{a+r}")
                A(f"v_cvt_pk_bf16_f32 v{d}, v{a}, v{a+1}")
                A(f"v_cvt_pk_bf16_f32 v{d+1}, v{a+2}, v{a+3}")
                A(f"buffer_store_dwordx2 v[{d}:{d+1}], v56, {WS}, s{sT0 if tt else sOut} offen offset:{32*t} sc1")
    gemm_phase(A, tag + 'q', SXA, 0, '', SWQ, 3456, 9, 'F', epi_qk)
    A(f"s_branch {L('done')}")
    A.label(L('v'))
    A(f"""v_and_b32 v10, 15, v0
v_lshlrev_b32 v10, 12, v10
v_bfe_u32 v11, v0, 4, 1
v_lshl_add_u32 v10, v11, 4, v10
v_lshrrev_b32 v11, 5, v0
v_lshl_add_u32 v56, v11, 3, v10""")
    def epi_v():
        A(f"""s_sub_u32 s{sOut}, s{sPair}, 36
s_lshl_b32 s{sOut}, s{sOut}, 17
s_lshl_b32 s{sT0}, s{sSeg}, 6
s_add_u32 s{sOut}, s{sOut}, s{sT0}
s_add_u32 s{sOut}, s{sOut}, {VTA_OFF}
s_add_u32 s{sT0}, s{sOut}, 65536""")
        for t in range(2):
            for tt in range(2):
                a = ACC + (2 * t + tt) * 4; d = 58 + 2 * (2 * t + tt)
                A(f"v_cvt_pk_bf16_f32 v{d}, v{a}, v{a+1}")
                A(f"v_cvt_pk_bf16_f32 v{d+1}, v{a+2}, v{a+3}")
                A(f"buffer_store_dwordx2 v[{d}:{d+1}], v56, {WS}, s{sT0 if t else sOut} offen offset:{32*tt} sc1")
    gemm_phase(A, tag + 'v', SXA, 0, '', SWQ, 3456, 9, 'T', epi_v)
    A.label(L('done'))
    if flags:
        emit_init_wait(A, L('iw'), sDBG, sW, sT0, sCnt, 10, POLL_MAX)
        signal_wg(A, L('sg'), FLG_OFF + 2048)
    A.label(L('skip'))
    A("s_barrier")

def gen_a3(A, flags, tag='A3'):
    L = lambda x: f'{tag}_{x}'
    A(f"s_cmp_ge_u32 s{sA}, 125")
    A(f"s_cbranch_scc1 {L('skip')}")
    divmod_const(A, sT1, sFirst, sA, 25, sT0)
    A(f"""s_lshl_b32 s{sPair}, s{sT1}, 2
s_add_u32 s{sPair}, s{sPair}, s{sW}
s_min_u32 s{sPair}, s{sPair}, 17
v_and_b32 v10, 15, v0
v_mul_u32_u24 v10, 2304, v10
v_lshrrev_b32 v11, 4, v0
v_lshl_add_u32 v56, v11, 3, v10""")
    def epi():
        A(f"""s_mul_i32 s{sOut}, s{sSeg}, {32 * 2304}
s_add_u32 s{sOut}, s{sOut}, s{sCol}
s_add_u32 s{sT0}, s{sOut}, {16 * 2304}""")
        for t in range(2):
            for tt in range(2):
                a = ACC + (2 * t + tt) * 4; d = 58 + 2 * (2 * t + tt)
                A(f"v_cvt_pk_bf16_f32 v{d}, v{a}, v{a+1}")
                A(f"v_cvt_pk_bf16_f32 v{d+1}, v{a+2}, v{a+3}")
                A(f"buffer_store_dwordx2 v[{d}:{d+1}], v56, {OUT}, s{sT0 if tt else sOut} offen offset:{32*t}")
    def pre():
        if flags:
            A(f"s_mov_b32 s{sT1}, {FLG_OFF + 4096 + 2048}")
            wait_flags(A, L('w'), sT1)
    gemm_phase(A, tag, SWS, OA_OFF, ' sc1', SWO, 1152, 25, 'F', epi, pre_x=pre)
    A.label(L('skip'))
    A("s_barrier")

def gen_a4(A, flags, tag='A4'):
    L = lambda x: f'{tag}_{x}'
    ts(A, 5, SWS, 10)
    A(f"s_cmp_ge_u32 s{sA}, 120")
    A(f"s_cbranch_scc1 {L('skip')}")
    divmod_const(A, sSeg, sPair, sA, 12, sT0)
    d1 = emit_wdma_off(A, vWo, 1152, 10, 11, 'perm')
    D4 = 16
    A(f"""s_mul_i32 s{sLds}, s{sW}, {D4 * 2048}
v_add_u32 v{vTr}, s{sLds}, v{vTr0}
v_xor_b32 v{vTr1}, 32, v{vTr}
s_mul_i32 s{sCol}, s{sPair}, 96
s_mul_i32 s{sT0}, s{sW}, {1024 * 1152}
s_add_u32 s{sT2}, s{sCol}, s{sT0}""")
    items = []
    for ks in range(32):
        items.append((SWOB, vWo, sT2, ks * 32 * 1152, d1 * 1152, ks, 32 + ks))
        items.append((SWOB, vWo, sT2, ks * 32 * 1152 + 64, d1 * 1152, 64 + ks, 96))
    emit_wload(A, items, vTr, vTr1, sLds, sT0, D4)
    A("s_barrier")
    ts(A, 6, SWS, 10)
    NBUF = 20
    bufs = [8 + 4 * i for i in range(10)] + [208 + 4 * i for i in range(10)]
    AC = 48
    A(f"""s_mul_i32 s{sT0}, s{sW}, 6144
v_add_u32 v72, s{sT0}, v{vL16}
s_lshl_b32 s{sT0}, s{sW}, 11
v_add_u32 v73, s{sT0}, v{vL16}
v_and_b32 v10, 15, v0
v_mul_u32_u24 v10, 2304, v10
v_lshrrev_b32 v11, 4, v0
v_lshl_add_u32 v74, v11, 3, v10""")
    A.label(L('loop'))
    if flags:
        A(f"""s_lshr_b32 s{sT1}, s{sSeg}, 1
s_lshl_b32 s{sT1}, s{sT1}, 12
s_and_b32 s{sT2}, s{sSeg}, 1
s_lshl_b32 s{sT2}, s{sT2}, 9
s_add_u32 s{sT1}, s{sT1}, s{sT2}
s_add_u32 s{sT1}, s{sT1}, {FLG_OFF + 1024}""")
        wait_flags(A, L('w'), sT1)
    A(f"""s_lshl_b32 s{sT0}, s{sSeg}, 18
s_lshl_b32 s{sT1}, s{sW}, 15
s_add_u32 s{sT0}, s{sT0}, s{sT1}
s_add_u32 s{sT0}, s{sT0}, {OB_OFF}
s_add_u32 s{sT1}, s{sT0}, {1 << 17}""")
    def ld(n):
        ks, tt = n >> 1, n & 1
        s_ = sT1 if tt else sT0
        if ks and ks % 4 == 0:
            A(f"s_add_u32 s{s_}, s{s_}, 4096")
        b = bufs[n % NBUF]
        A(f"buffer_load_dwordx4 v[{b}:{b+3}], v{vL16}, {WS}, s{s_} offen offset:{(ks % 4) * 1024} sc1")
    for n in range(NBUF):
        ld(n)
    for n in range(64):
        ks, tt = n >> 1, n & 1
        b = bufs[n % NBUF]
        for t in range(3):
            f, wb = wreg(t * 32 + ks)
            a = AC + (2 * t + tt) * 4
            A(f"v_mfma_f32_16x16x32_bf16 v[{a}:{a+3}], {rng(f, wb, 4)}, v[{b}:{b+3}], {'0' if ks == 0 else rng('v', a, 4)}")
        if n + NBUF < 64:
            ld(n + NBUF)
    for i in range(6):
        A(f"ds_write_b128 v72, v[{AC+4*i}:{AC+4*i+3}] offset:{i*1024}")
    A("s_waitcnt lgkmcnt(0)")
    A("s_barrier")
    A(f"s_cmp_eq_u32 s{sW}, 3")
    A(f"s_cbranch_scc1 {L('nored')}")
    for tt in range(2):
        for p in range(4):
            b = 8 + 16 * tt + 4 * p
            A(f"ds_read_b128 v[{b}:{b+3}], v73 offset:{p * 6144 + tt * 1024}")
    A(f"""s_mul_i32 s{sOut}, s{sSeg}, {32 * 2304}
s_add_u32 s{sOut}, s{sOut}, s{sCol}
s_lshl_b32 s{sT0}, s{sW}, 5
s_add_u32 s{sOut}, s{sOut}, s{sT0}
s_add_u32 s{sOut}, s{sOut}, 1152
s_add_u32 s{sT0}, s{sOut}, {16 * 2304}""")
    for tt in range(2):
        b = 8 + 16 * tt
        for h in range(2):
            A(f"v_pk_add_f32 v[{b+2*h}:{b+2*h+1}], v[{b+2*h}:{b+2*h+1}], v[{b+4+2*h}:{b+5+2*h}]")
            A(f"v_pk_add_f32 v[{b+8+2*h}:{b+9+2*h}], v[{b+8+2*h}:{b+9+2*h}], v[{b+12+2*h}:{b+13+2*h}]")
            A(f"v_pk_add_f32 v[{b+2*h}:{b+2*h+1}], v[{b+2*h}:{b+2*h+1}], v[{b+8+2*h}:{b+9+2*h}]")
            A(f"v_cvt_pk_bf16_f32 v{b+4+h}, v{b+2*h}, v{b+2*h+1}")
        A(f"buffer_store_dwordx2 v[{b+4}:{b+5}], v74, {OUT}, s{sT0 if tt else sOut} offen")
    A.label(L('nored'))
    ts(A, 8, SWS, 76, sSeg)
    A(f"""s_barrier
s_add_u32 s{sSeg}, s{sSeg}, 10
s_cmp_lt_u32 s{sSeg}, 64
s_cbranch_scc1 {L('loop')}""")
    A.label(L('skip'))

def gen_a2(A, flags, tag='A2'):
    L = lambda x: f'{tag}_{x}'
    LK, LT, LV = 0, 65536, 73728
    sHd, sQ0, sIt, sPass, sBig = sSeg, sFirst, sNext, sBufN, sSc
    A(f"""s_lshr_b32 s{sHd}, s{sA}, 2
s_and_b32 s{sQ0}, s{sA}, 3
s_lshl_b32 s{sQ0}, s{sQ0}, 2
s_add_u32 s{sQ0}, s{sQ0}, s{sW}
s_lshl_b32 s{sQ0}, s{sQ0}, 7
s_mul_i32 s{sCol}, s{sHd}, 36
s_mov_b32 s{sBig}, {fbits(2.0**60):#x}""")
    A(f"""v_and_b32 v10, 31, v0
v_mul_u32_u24 v10, 2304, v10
v_lshrrev_b32 v11, 5, v0
v_lshl_add_u32 v12, v11, 4, v10
v_mul_u32_u24 v13, 2304, v0""")
    for p in range(5):
        A(f"""v_add_u32 v10, {64 * p}, v0
v_mul_u32_u24 v11, 3277, v10
v_lshrrev_b32 v11, 16, v11
v_mul_u32_u24 v19, 20, v11
v_sub_u32 v10, v10, v19
v_min_u32 v10, 17, v10
v_lshlrev_b32 v10, 12, v10
v_lshl_add_u32 v{14+p}, v11, 4, v10""")
    ts(A, 1, SWS, 10)
    if flags:
        emit_init_wait(A, L('iw'), sDBG, sW, sT0, sCnt, 10, POLL_MAX)
        A(f"s_mov_b32 s{sT1}, {FLG_OFF + 2048}")
        wait_flags(A, L('w'), sT1, 63)
    ts(A, 2, SWS, 10)
    A(f"""s_mul_i32 s{sT1}, s{sW}, {512 * 2304}
s_add_u32 s{sT1}, s{sT1}, s{sCol}
s_add_u32 s{sT1}, s{sT1}, {QKA_OFF + 1152}
s_lshl_b32 s{sT2}, s{sW}, 14""")
    for i in range(16):
        A(f"""s_add_u32 m0, s{sT2}, {LK + i * 1024}
s_add_u32 s{sT0}, s{sT1}, {i * 32 * 2304}
buffer_load_dwordx4 v12, {WS}, s{sT0} offen sc1 lds""")
    A(f"s_lshl_b32 s{sT2}, s{sW}, 11")
    for i in range(8):
        A(f"""s_add_u32 m0, s{sT2}, {LT + i * 256}
s_add_u32 s{sT0}, s{sT1}, {i * 64 * 2304 + 32}
buffer_load_dword v13, {WS}, s{sT0} offen sc1 lds""")
    A(f"""s_mul_i32 s{sT1}, s{sHd}, {18 * 4096}
s_lshl_b32 s{sT0}, s{sW}, 10
s_add_u32 s{sT1}, s{sT1}, s{sT0}
s_add_u32 s{sT1}, s{sT1}, {VTA_OFF}
s_mul_i32 s{sT2}, s{sW}, 20480""")
    for b in range(4):
        for p in range(5):
            A(f"""s_add_u32 m0, s{sT2}, {LV + b * 5120 + p * 1024}
s_add_u32 s{sT0}, s{sT1}, {b * 256}
buffer_load_dwordx4 v{14+p}, {WS}, s{sT0} offen sc1 lds""")
    QM = lambda i: 32 + 8 * i
    QT = lambda i: 36 + 8 * i
    A(f"""s_mul_i32 s{sT1}, s{sQ0}, 2304
s_add_u32 s{sT1}, s{sT1}, s{sCol}
s_add_u32 s{sT1}, s{sT1}, {QKA_OFF}""")
    for i in range(4):
        A(f"""s_add_u32 s{sT0}, s{sT1}, {i * 32 * 2304}
buffer_load_dwordx4 v[{QM(i)}:{QM(i)+3}], v12, {WS}, s{sT0} offen sc1
buffer_load_dword v{QT(i)}, v12, {WS}, s{sT0} offen offset:32 sc1
v_mov_b32 v{QT(i)+1}, 0
v_mov_b64 v[{QT(i)+2}:{QT(i)+3}], 0""")
    A("v_cmp_gt_u32 vcc, 32, v0")
    for i in range(4):
        A(f"v_cndmask_b32 v{QT(i)}, 0, v{QT(i)}, vcc")
    A(f"""v_mul_u32_u24 v10, 320, v0
s_add_u32 s{sT2}, s{sT2}, {LV + 18 * 16}
v_add_u32 v10, s{sT2}, v10
v_mov_b32 v20, 0x3f803f80
v_mov_b32 v21, 0x3f803f80
v_mov_b32 v22, 0x3f803f80
v_mov_b32 v23, 0x3f803f80
s_waitcnt vmcnt(0)
ds_write_b128 v10, v[20:23]""")
    KM = [64, 80]; KT = [68, 84]; VF = [72, 88]
    S = [96, 112]; P0, P1 = 128, 132
    O = lambda i: 16 * i
    NM = lambda i: 136 + 16 * i
    aK, aT, aV_ = 24, 25, 26
    for par in range(2):
        A(f"v_mov_b32 v{KT[par]+1}, 0")
        A(f"v_mov_b64 v[{KT[par]+2}:{KT[par]+3}], 0")
    for r in range(NM(0), NM(4), 2):
        A(f"v_mov_b64 v[{r}:{r+1}], 0")
    A(f"s_mov_b32 s{sPass}, 0")
    A("s_waitcnt lgkmcnt(0)")
    A("s_barrier")
    ts(A, 3, SWS, 10)
    def addr_init():
        A(f"""v_mov_b32 v{aK}, v{vL16}
v_and_b32 v10, 31, v0
v_lshlrev_b32 v{aT}, 2, v10
v_add_u32 v{aT}, {LT}, v{aT}
v_min_u32 v10, 19, v10
v_lshlrev_b32 v10, 4, v10
v_lshrrev_b32 v11, 5, v0
v_mul_u32_u24 v11, 320, v11
v_add3_u32 v{aV_}, v10, v11, s{sT0}""")
    def rdK(par, off, manual=False):
        A(f"ds_read_b128 v[{KM[par]}:{KM[par]+3}], v{aK} offset:{off * 1024}", manual)
        A(f"ds_read_b32 v{KT[par]}, v{aT} offset:{off * 128}", manual)
    def rdV(par, off, manual=False):
        A(f"ds_read_b128 v[{VF[par]}:{VF[par]+3}], v{aV_} offset:{off * 1280}", manual)
        A(f"ds_read_b128 v[{VF[par]+4}:{VF[par]+7}], v{aV_} offset:{off * 1280 + 640}", manual)
    def qk(par, i, sb, part):
        if part == 0:
            A(f"v_mfma_f32_32x32x16_bf16 v[{sb}:{sb+15}], v[{KM[par]}:{KM[par]+3}], v[{QM(i)}:{QM(i)+3}], v[{NM(i)}:{NM(i)+15}]")
        else:
            A(f"v_mfma_f32_32x32x16_bf16 v[{sb}:{sb+15}], v[{KT[par]}:{KT[par]+3}], v[{QT(i)}:{QT(i)+3}], v[{sb}:{sb+15}]")
    def pv(par, i, half):
        v = VF[par] + 4 * half; p = P1 if half else P0
        A(f"v_mfma_f32_32x32x16_bf16 a[{O(i)}:{O(i)+15}], v[{v}:{v+3}], v[{p}:{p+3}], a[{O(i)}:{O(i)+15}]")
    A.label(L('pass'))
    A(f"s_mov_b32 s{sT0}, {LV}")
    addr_init()
    rdK(0, 0); rdV(0, 0); rdV(1, 0)
    for r in range(64):
        A(f"v_accvgpr_write_b32 a{r}, 0")
    A(f"v_mov_b64 v[{P1}:{P1+1}], 0")
    A(f"v_mov_b64 v[{P1+2}:{P1+3}], 0")
    qk(0, 0, S[0], 0); qk(0, 0, S[0], 1)
    A(f"s_mov_b32 s{sIt}, 0")
    A("s_waitcnt lgkmcnt(0)")
    A("s_nop 7")
    A.label(L('loop'))
    for n in range(8):
        par, i = n >> 2, n & 3
        npar, ni = ((n + 1) >> 2) & 1, (n + 1) & 3
        ppar, pi = ((n - 1) >> 2) & 1, (n - 1) & 3
        sb, nsb = S[n & 1], S[(n + 1) & 1]
        def ex(q):
            for r in range(4 * q, 4 * q + 4):
                A(f"v_exp_f32 v{sb+r}, v{sb+r}")
        def cv(q):
            d = (P0, P0 + 2, P1, P1 + 2)[q]
            A(f"v_cvt_pk_bf16_f32 v{d}, v{sb+4*q}, v{sb+4*q+1}")
            A(f"v_cvt_pk_bf16_f32 v{d+1}, v{sb+4*q+2}, v{sb+4*q+3}")
        if i == 3:
            A("s_waitcnt lgkmcnt(0)")
        qk(npar, ni, nsb, 0)
        if i == 0:
            rdK(1 - par, par + 1, True)
        ex(0)
        qk(npar, ni, nsb, 1)
        cv(0); ex(1)
        pv(ppar, pi, 1)
        if i == 0:
            rdV(1 - par, par + 1, True)
        cv(1); ex(2)
        pv(par, i, 0)
        cv(2); ex(3)
        if n == 7:
            A(f"""v_add_u32 v{aK}, 2048, v{aK}
v_add_u32 v{aT}, 256, v{aT}
v_add_u32 v{aV_}, 2560, v{aV_}
s_add_u32 s{sIt}, s{sIt}, 1
s_cmp_lt_u32 s{sIt}, 32""")
        cv(3)
    A(f"s_cbranch_scc1 {L('loop')} ;nofence")
    pv(1, 3, 1)
    A("s_waitcnt lgkmcnt(0)")
    for i in range(4):
        A(f"""v_accvgpr_read_b32 v{100+2*i}, a{O(i)+10}
v_accvgpr_read_b32 v{101+2*i}, a{O(i)+10}
v_permlane32_swap_b32 v{100+2*i}, v{101+2*i}
v_rcp_f32 v{101+2*i}, v{100+2*i}""")
    A(f"""v_max3_f32 v108, v100, v101, v102
v_max3_f32 v109, v103, v104, v105
v_max3_f32 v108, v108, v106, v107
v_add_f32 v110, v100, v102
v_add_f32 v111, v104, v106
v_add_f32 v110, v110, v111
v_max_f32 v108, v108, v109
v_cmp_nlt_f32 vcc, v108, s{sBig}
v_cmp_u_f32 s[50:51], v110, v110
s_or_b64 vcc, vcc, s[50:51]
s_cmp_lg_u32 s{sPass}, 0
s_cbranch_scc1 {L('store')}
s_cbranch_vccz {L('store')}""")
    A(f"s_mov_b32 s{sT0}, {LV}")
    addr_init()
    for i in range(4):
        A(f"v_mov_b32 v{200+i}, 0xff800000")
    A(f"s_mov_b32 s{sIt}, 0")
    A.label(L('mx'))
    rdK(0, 0)
    for i in range(4):
        sb = S[i & 1]
        qk(0, i, sb, 0); qk(0, i, sb, 1)
        for r in range(0, 16, 2):
            A(f"v_max3_f32 v{200+i}, v{200+i}, v{sb+r}, v{sb+r+1}")
    A(f"""v_add_u32 v{aK}, 1024, v{aK}
v_add_u32 v{aT}, 128, v{aT}
s_add_u32 s{sIt}, s{sIt}, 1
s_cmp_lt_u32 s{sIt}, 64
s_cbranch_scc1 {L('mx')}""")
    for i in range(4):
        A(f"""v_mov_b32 v204, v{200+i}
v_permlane32_swap_b32 v{200+i}, v204
v_max_f32 v204, v204, v{200+i}
v_sub_f32 v204, 0, v204""")
        for r in range(16):
            A(f"v_mov_b32 v{NM(i)+r}, v204")
    A(f"s_mov_b32 s{sPass}, 1")
    A(f"s_branch {L('pass')}")
    A.label(L('store'))
    ts(A, 4, SWS, 10)
    A(f"""v_and_b32 v10, 31, v0
v_mul_u32_u24 v10, 1152, v10
v_lshrrev_b32 v11, 5, v0
v_lshl_add_u32 v12, v11, 3, v10
s_mul_i32 s{sT1}, s{sQ0}, 1152
s_add_u32 s{sT1}, s{sT1}, s{sCol}
s_add_u32 s{sT1}, s{sT1}, {OA_OFF}""")
    for i in range(4):
        o = NM(i)
        for r in range(10):
            A(f"v_accvgpr_read_b32 v{o+r}, a{O(i)+r}")
        for r in range(10):
            A(f"v_mul_f32 v{o+r}, v{o+r}, v{101+2*i}")
        for r in range(5):
            A(f"v_cvt_pk_bf16_f32 v{o+10+r}, v{o+2*r}, v{o+2*r+1}")
        A(f"""s_add_u32 s{sT0}, s{sT1}, {i * 32 * 1152}
buffer_store_dwordx2 v[{o+10}:{o+11}], v12, {WS}, s{sT0} offen sc1
buffer_store_dwordx2 v[{o+12}:{o+13}], v12, {WS}, s{sT0} offen offset:16 sc1
s_mov_b32 exec_hi, 0
buffer_store_dword v{o+14}, v12, {WS}, s{sT0} offen offset:32 sc1
s_mov_b64 exec, -1""")
    if flags:
        signal_wg(A, L('sg'), FLG_OFF + 4096 + 2048)
    A("s_waitcnt vmcnt(0)")
    A("s_barrier")
```

```python
from asmlib import Asm
from layout import *
from gemm import *
from chain import C_SCALE, fbits, srd
from prof import ts
POLL_MAX = 200000
NB = 3

def gen_b(A, do1=True, do2=True, flags=True, tag='B'):
    L = lambda x: f'{tag}_{x}'
    sH, sW, sJ = 3, 4, 5
    SQ, SK, SV, SX, SWS = 8, 12, 16, 20, 24
    sDBG = 28
    sT0, sT1, sT2, sLds, sCol, sSeg, sN, sBuf, sXw, sLw, sC, sOut, sCnt, sNext, sBufN, sPrev = range(32, 48)
    sKF, sOF = 48, 49
    WS = f"s[{SWS}:{SWS+3}]"
    vL16, vTr, vTr1, vWo, vXo, vX, vOne = 1, 2, 3, 4, 5, 6, 7
    XB = [8, 12, 16, 20]
    ACC = 24
    A(f"""s_load_dwordx2 s[60:61], s[0:1], 24
s_load_dwordx4 s[64:67], s[0:1], 40
s_load_dwordx2 s[68:69], s[0:1], 56
s_load_dwordx4 s[72:75], s[0:1], 88
v_lshrrev_b32 v10, 6, v0
v_and_b32 v0, 63, v0
v_readfirstlane_b32 s{sW}, v10
s_waitcnt lgkmcnt(0)""")
    srd(A, SX, 60, 2048 * 1152)
    srd(A, SQ, 64, 576 * 8192); srd(A, SK, 66, 576 * 8192); srd(A, SV, 68, 576 * 8192)
    srd(A, SWS, 74, WS_BYTES)
    A(f"""s_mov_b32 s{sDBG}, s72
s_mov_b32 s{sDBG+1}, s73
s_mov_b32 s{sC}, {fbits(C_SCALE):#x}
v_mov_b32 v{vOne}, 1""")
    emit_lane_consts(A, vL16, vTr, 10, 11)
    d1 = emit_wdma_off(A, vWo, 8192, 10, 11)
    emit_xdma_off(A, vXo, 1152, 10)
    DEPTH = 12
    A(f"""s_mul_i32 s{sLds}, s{sW}, {DEPTH * 2048}
s_add_u32 s{sLds}, s{sLds}, 36864
v_add_u32 v{vTr}, s{sLds}, v{vTr}
v_xor_b32 v{vTr1}, 32, v{vTr}
s_lshl_b32 s{sCol}, s{sH}, 8
s_lshl_b32 s{sT0}, s{sW}, 6
s_add_u32 s{sCol}, s{sCol}, s{sT0}
s_lshr_b32 s{sT0}, s{sW}, 1
s_mul_i32 s{sXw}, s{sT0}, {16 * 1152}
s_and_b32 s{sT0}, s{sW}, 1
s_mul_i32 s{sT0}, s{sT0}, 576
s_add_u32 s{sXw}, s{sXw}, s{sT0}
s_mul_i32 s{sLw}, s{sW}, 9216
s_lshl_b32 s{sKF}, s{sH}, 12
s_lshl_b32 s{sT0}, s{sW}, 2
s_add_u32 s{sKF}, s{sKF}, s{sT0}
s_add_u32 s{sKF}, s{sKF}, {FLG_OFF}
s_lshl_b32 s{sOF}, s{sH}, 4
s_add_u32 s{sOF}, s{sOF}, s{sT0}
s_add_u32 s{sOF}, s{sOF}, {FLG_OFF + 1024}""")
    def xdma(sseg, sbuf):
        A(f"""s_min_u32 s{sT1}, s{sseg}, 63
s_mul_i32 s{sT1}, s{sT1}, {32 * 1152}
s_add_u32 s{sT1}, s{sT1}, s{sXw}
s_add_u32 s{sT2}, s{sbuf}, s{sLw}""")
        emit_xdma(A, SX, vXo, sT1, None, sT2, sT0, None, 1152)
    def witems(mats):
        it = []
        for m, s_ in mats:
            for u in range(18):
                it.append((s_, vWo, sCol, u * 32 * 8192, d1 * 8192, (2 * m) * 18 + u, (2 * m + 1) * 18 + u))
        return it
    def flag(soff):
        A(f"""s_mov_b64 exec, 1
buffer_store_dword v{vOne}, v{vL16}, {WS}, s{soff} offen sc1
s_mov_b64 exec, -1""")
    def kv_flag(sseg):
        A(f"""s_lshl_b32 s{sT1}, s{sseg}, 4
s_add_u32 s{sT1}, s{sT1}, s{sKF}""")
        flag(sT1)
    def ring_start():
        A(f"""s_mov_b32 s{sSeg}, s{sJ}
s_mov_b32 s{sBuf}, 0
s_add_u32 s{sNext}, s{sJ}, {NB}
s_mov_b32 s{sBufN}, 36864""")
    def ring_adv():
        A(f"""s_mov_b32 s{sPrev}, s{sSeg}
s_add_u32 s{sSeg}, s{sSeg}, {NB}
s_add_u32 s{sBuf}, s{sBuf}, 36864
s_cmp_eq_u32 s{sBuf}, {3 * 36864}
s_cselect_b32 s{sBuf}, 0, s{sBuf}""")
    def next_dma():
        A(f"""s_add_u32 s{sNext}, s{sNext}, {NB}
s_add_u32 s{sBufN}, s{sBufN}, 36864
s_cmp_eq_u32 s{sBufN}, {3 * 36864}
s_cselect_b32 s{sBufN}, 0, s{sBufN}""")
        xdma(sNext, sBufN)

    ts(A, 0, SWS, 10)
    if do1:
        ring_start()
        xdma(sSeg, sBuf)
        if flags:
            A(f"""v_mov_b32 v12, {POISON:#x}
v_mov_b32 v13, {POISON:#x}
v_mov_b32 v14, {POISON:#x}
v_mov_b32 v15, {POISON:#x}
v_lshrrev_b32 v16, 1, v{vL16}
s_mov_b32 s{sN}, s{sJ}""")
            A.label(L('pz'))
            A(f"""s_lshl_b32 s{sT0}, s{sH}, 6
s_add_u32 s{sT0}, s{sT0}, s{sN}
s_lshl_b32 s{sT0}, s{sT0}, 13
s_add_u32 s{sT0}, s{sT0}, {MEM_OFF}
s_lshl_b32 s{sT1}, s{sW}, 10
s_add_u32 s{sT1}, s{sT1}, s{sT0}
s_lshl_b32 s{sT2}, s{sW}, 9
s_add_u32 s{sT2}, s{sT2}, s{sT0}
s_add_u32 s{sT2}, s{sT2}, 4096
buffer_store_dwordx4 v[12:15], v{vL16}, {WS}, s{sT1} offen sc1
buffer_store_dwordx2 v[12:13], v16, {WS}, s{sT2} offen sc1
s_add_u32 s{sN}, s{sN}, {NB}
s_cmp_lt_u32 s{sN}, 64
s_cbranch_scc1 {L('pz')}""")
        emit_wload(A, witems([(0, SK), (1, SV)]), vTr, vTr1, sLds, sT0, DEPTH)
        ts(A, 1, SWS, 10)
        if flags:
            emit_init_wait(A, L('iw'), sDBG, sW, sT0, sCnt, 10, POLL_MAX)
        A("s_barrier")
        xdma(sNext, sBufN)
        A(f"s_mov_b32 s{sPrev}, 192")
        A("s_waitcnt vmcnt(9)")
        A.label(L('kv'))
        A("s_barrier")
        next_dma()
        A(f"v_add_u32 v{vX}, s{sBuf}, v{vL16}")
        def sig_prev():
            A("s_waitcnt vmcnt(9)")
            if flags:
                kv_flag(sPrev)
        tiles = [(0, 'F'), (18, 'F'), (36, 'T'), (54, 'T')]
        emit_group_mma(A, tiles, vX, XB, ACC, side={6: sig_prev})
        A(f"""s_lshl_b32 s{sT0}, s{sH}, 6
s_add_u32 s{sT0}, s{sT0}, s{sSeg}
s_lshl_b32 s{sT0}, s{sT0}, 14
s_lshl_b32 s{sT1}, s{sW}, 10
s_add_u32 s{sOut}, s{sT0}, s{sT1}
s_add_u32 s{sT2}, s{sOut}, 4096
s_add_u32 s{sT1}, s{sOut}, s{sT1}
s_add_u32 s{sT1}, s{sT1}, 8192""")
        for tt in range(2):
            d = 56 + 4 * tt
            for t in range(2):
                a = ACC + (2 * t + tt) * 4
                for r in range(4):
                    A(f"v_mul_f32 v{a+r}, s{sC}, v{a+r}")
                A(f"v_cvt_pk_bf16_f32 v{d+2*t}, v{a}, v{a+1}")
                A(f"v_cvt_pk_bf16_f32 v{d+2*t+1}, v{a+2}, v{a+3}")
            A(f"buffer_store_dwordx4 v[{d}:{d+3}], v{vL16}, {WS}, s{sOut if tt == 0 else sT2} offen sc1")
        for t in range(2):
            d = 64 + 4 * t
            for tt in range(2):
                a = ACC + (2 * (2 + t) + tt) * 4
                A(f"v_cvt_pk_bf16_f32 v{d+2*tt}, v{a}, v{a+1}")
                A(f"v_cvt_pk_bf16_f32 v{d+2*tt+1}, v{a+2}, v{a+3}")
            A(f"buffer_store_dwordx4 v[{d}:{d+3}], v{vL16}, {WS}, s{sT1} offen offset:{t*1024} sc1")
        ring_adv()
        A(f"s_waitcnt vmcnt({14 if flags else 13})")
        A(f"s_cmp_lt_u32 s{sSeg}, 64")
        A(f"s_cbranch_scc1 {L('kv')}")
        A("s_waitcnt vmcnt(0)")
        if flags:
            kv_flag(sPrev)
        A("s_barrier")

    ts(A, 2, SWS, 10)
    if do2:
        LQ = 3 * 36864
        ring_start()
        xdma(sSeg, sBuf)
        emit_wload(A, witems([(2, SQ)]), vTr, vTr1, sLds, sT0, DEPTH)
        ts(A, 3, SWS, 10)
        A("s_barrier")
        xdma(sNext, sBufN)
        sTT, sEH, sKx, sVx, sKm, sVm = 50, 51, 52, 53, 54, 55
        A(f"""s_and_b32 s{sTT}, s{sW}, 1
s_lshr_b32 s{sEH}, s{sW}, 1
v_and_b32 v10, 15, v0
v_lshrrev_b32 v11, 4, v0
v_lshlrev_b32 v11, 2, v11
s_lshl_b32 s{sT0}, s{sTT}, 4
v_add_u32 v10, s{sT0}, v10
v_mov_b32 v12, 0xf149f2ca""")
        for kt in range(2):
            for r in range(4):
                A(f"""v_add_u32 v13, {16 * kt + r}, v11
v_cmp_le_u32 vcc, v13, v10
v_cndmask_b32 v{80 + 4*kt + r}, v12, 0, vcc""")
        A(f"""v_mov_b32 v88, 0x3f803f80
v_mov_b32 v89, 0x3f803f80
v_mov_b32 v90, 0x3f803f80
v_mov_b32 v91, 0x3f803f80
v_lshrrev_b32 v92, 1, v{vL16}
s_lshl_b32 s{sT0}, s{sW}, 10
s_add_u32 s{sT0}, s{sT0}, {LQ}
v_add_u32 v93, s{sT0}, v{vL16}
s_lshl_b32 s{sT0}, s{sTT}, 12
s_add_u32 s{sT0}, s{sT0}, {LQ}
v_add_u32 v94, s{sT0}, v{vL16}
s_lshl_b32 s{sT0}, s{sW}, 12
s_add_u32 s{sT0}, s{sT0}, {LQ + 8192}
v_add_u32 v96, s{sT0}, v92
v_and_b32 v10, 15, v0
v_lshlrev_b32 v10, 5, v10
v_lshrrev_b32 v11, 4, v0
v_lshl_add_u32 v10, v11, 3, v10
v_add_u32 v95, s{sT0}, v10
s_waitcnt vmcnt(9)""")
        A.label(L('at'))
        A("s_barrier")
        A(f"""s_lshl_b32 s{sT0}, s{sH}, 6
s_add_u32 s{sT0}, s{sT0}, s{sSeg}
s_lshl_b32 s{sKx}, s{sT0}, 14
s_add_u32 s{sT1}, s{sKx}, 4096
s_lshl_b32 s{sT2}, s{sEH}, 12
s_add_u32 s{sVx}, s{sKx}, s{sT2}
s_add_u32 s{sVx}, s{sVx}, 8192
s_lshl_b32 s{sKm}, s{sT0}, 13
s_add_u32 s{sKm}, s{sKm}, {MEM_OFF}
s_lshl_b32 s{sT2}, s{sEH}, 10
s_add_u32 s{sVm}, s{sKm}, s{sT2}
s_add_u32 s{sVm}, s{sVm}, 4096""")
        for kt in range(2):
            for u in range(4):
                b = 16 * kt + 4 * u
                A(f"buffer_load_dwordx4 a[{b}:{b+3}], v{vL16}, {WS}, s{sKx if kt == 0 else sT1} offen offset:{u*1024} sc1")
        for e in range(4):
            A(f"buffer_load_dwordx4 a[{32+4*e}:{35+4*e}], v{vL16}, {WS}, s{sVx} offen offset:{e*1024} sc1")
        next_dma()
        A(f"v_add_u32 v{vX}, s{sBuf}, v{vL16}")
        emit_group_mma(A, [(72, 'F'), (90, 'F')], vX, XB, ACC)
        for tt in range(2):
            d = 56 + 4 * tt
            for t in range(2):
                a = ACC + (2 * t + tt) * 4
                A(f"v_cvt_pk_bf16_f32 v{d+2*t}, v{a}, v{a+1}")
                A(f"v_cvt_pk_bf16_f32 v{d+2*t+1}, v{a+2}, v{a+3}")
            A(f"ds_write_b128 v93, v[{d}:{d+3}] offset:{tt * 4096}")
        A("s_waitcnt lgkmcnt(0)")
        A("s_barrier")
        Q = 8
        for u in range(4):
            A(f"ds_read_b128 v[{Q+4*u}:{Q+4*u+3}], v94 offset:{u*1024}")
        S0, S1, SM = 24, 28, 32
        for u in range(4):
            for kt, s_ in ((0, S0), (1, S1)):
                c = rng('v', 80 + 4 * kt, 4) if u == 0 else rng('v', s_, 4)
                A(f"v_mfma_f32_16x16x32_bf16 v[{s_}:{s_+3}], a[{16*kt+4*u}:{16*kt+4*u+3}], v[{Q+4*u}:{Q+4*u+3}], {c}")
        A(f"s_mov_b32 s{sCnt}, 0")
        A("s_waitcnt vmcnt(9)")
        if flags:
            A.label(L('mq'))
            A(f"""buffer_load_dword v40, v{vL16}, {WS}, s{sVm} offen sc1
s_add_u32 s{sCnt}, s{sCnt}, 1
v_cmp_eq_u32 vcc, {POISON:#x}, v40
s_cmp_gt_u32 s{sCnt}, {POLL_MAX}
s_cbranch_scc1 {L('mp')}
s_cbranch_vccz {L('mp')}
s_sleep 6
s_branch {L('mq')}""")
        A.label(L('mp'))
        for u in range(2):
            A(f"buffer_load_dwordx4 v[{64+4*u}:{67+4*u}], v{vL16}, {WS}, s{sKm} offen offset:{u*1024} sc1")
        A(f"buffer_load_dwordx2 v[56:57], v92, {WS}, s{sVm} offen sc1")
        A(f"buffer_load_dwordx2 v[58:59], v92, {WS}, s{sVm} offen offset:512 sc1")
        if flags:
            A(f"""s_add_u32 s{sCnt}, s{sCnt}, 1
v_max3_u32 v60, v64, v67, v68
v_max3_u32 v61, v71, v56, v58
v_max_u32 v60, v60, v61
v_cmp_eq_u32 vcc, {POISON:#x}, v60
s_cmp_gt_u32 s{sCnt}, {POLL_MAX}
s_cbranch_scc1 {L('mg')} ;nofence
s_cbranch_vccz {L('mg')} ;nofence
s_sleep 4
s_branch {L('mp')} ;nofence""")
            A.label(L('mg') + ' ;soft')
        for n in range(8):
            A(f"ds_write_b32 v95, v{64+n} offset:{n*512}")
        for u in range(4):
            A(f"ds_read_b64_tr_b16 v[{40+4*u}:{41+4*u}], v96 offset:{u*1024}")
            A(f"ds_read_b64_tr_b16 v[{42+4*u}:{43+4*u}], v96 offset:{u*1024+512}")
        for u in range(4):
            c = '0' if u == 0 else rng('v', SM, 4)
            A(f"v_mfma_f32_16x16x32_bf16 v[{SM}:{SM+3}], v[{40+4*u}:{43+4*u}], v[{Q+4*u}:{Q+4*u+3}], {c}")
        sv = list(range(S0, S0 + 10))
        A(f"""v_max3_f32 v60, v{sv[0]}, v{sv[1]}, v{sv[2]}
v_max3_f32 v61, v{sv[3]}, v{sv[4]}, v{sv[5]}
v_max3_f32 v60, v60, v{sv[6]}, v{sv[7]}
v_mul_f32 v{SM}, s{sC}, v{SM}
v_mul_f32 v{SM+1}, s{sC}, v{SM+1}
v_max3_f32 v61, v61, v{sv[8]}, v{sv[9]}
v_max_f32 v60, v60, v61
v_mov_b32 v61, v60
v_permlane32_swap_b32 v60, v61
v_max_f32 v60, v60, v61
v_mov_b32 v61, v60
v_permlane16_swap_b32 v60, v61
v_max_f32 v60, v60, v61""")
        for r in sv:
            A(f"v_sub_f32 v{r}, v{r}, v60")
        for r in sv:
            A(f"v_exp_f32 v{r}, v{r}")
        PX, PM = 64, 68
        for n in range(4):
            A(f"v_cvt_pk_bf16_f32 v{PX+n}, v{sv[2*n]}, v{sv[2*n+1]}")
        A(f"""v_cvt_pk_bf16_f32 v{PM}, v{SM}, v{SM+1}
v_mov_b32 v{PM+1}, 0
v_mov_b32 v{PM+2}, 0
v_cvt_pk_bf16_f32 v{PM+3}, v{SM}, v{SM+1}""")
        O, LS = 40, 36
        A(f"v_mfma_f32_16x16x32_bf16 v[{LS}:{LS+3}], v[88:91], v[{PX}:{PX+3}], 0")
        for e in range(4):
            A(f"v_mfma_f32_16x16x32_bf16 v[{O+4*e}:{O+4*e+3}], a[{32+4*e}:{35+4*e}], v[{PX}:{PX+3}], 0")
        A(f"v_mfma_f32_16x16x16_bf16 v[{LS}:{LS+3}], v[88:89], v[{PM}:{PM+1}], v[{LS}:{LS+3}]")
        for e in range(4):
            vm = 56 + 2 * (e >> 1); p = PM + 2 * (e & 1)
            A(f"v_mfma_f32_16x16x16_bf16 v[{O+4*e}:{O+4*e+3}], v[{vm}:{vm+1}], v[{p}:{p+1}], v[{O+4*e}:{O+4*e+3}]")
        A(f"""v_rcp_f32 v60, v{LS}
s_lshl_b32 s{sT0}, s{sSeg}, 1
s_add_u32 s{sT0}, s{sT0}, s{sTT}
s_lshl_b32 s{sT0}, s{sT0}, 17
s_lshl_b32 s{sT1}, s{sH}, 12
s_add_u32 s{sT0}, s{sT0}, s{sT1}
s_lshl_b32 s{sT1}, s{sEH}, 11
s_add_u32 s{sT0}, s{sT0}, s{sT1}
s_add_u32 s{sT0}, s{sT0}, {OB_OFF}""")
        for x in range(2):
            d = 24 + 4 * x
            for n in range(4):
                o = O + 8 * x + 2 * n
                A(f"v_mul_f32 v{o}, v{o}, v60")
                A(f"v_mul_f32 v{o+1}, v{o+1}, v60")
                A(f"v_cvt_pk_bf16_f32 v{d+n}, v{o}, v{o+1}")
            A(f"buffer_store_dwordx4 v[{d}:{d+3}], v{vL16}, {WS}, s{sT0} offen offset:{x*1024} sc1")
        A("s_waitcnt vmcnt(0)")
        if flags:
            A(f"""s_lshr_b32 s{sT1}, s{sSeg}, 1
s_lshl_b32 s{sT1}, s{sT1}, 12
s_and_b32 s{sT2}, s{sSeg}, 1
s_lshl_b32 s{sT2}, s{sT2}, 9
s_add_u32 s{sT1}, s{sT1}, s{sT2}
s_add_u32 s{sT1}, s{sT1}, s{sOF}""")
            flag(sT1)
        ts(A, 8, SWS, 72, sSeg)
        ring_adv()
        A(f"s_cmp_lt_u32 s{sSeg}, 64")
        A(f"s_cbranch_scc1 {L('at')}")
    A("s_endpgm")
```

```python
from asmlib import Asm
from layout import *
import struct, math, os
from prof import ts

NSTEPS = 64
C_SCALE = (128 ** -0.5) * math.log2(math.e)
def fbits(x): return struct.unpack('<I', struct.pack('<f', x))[0]
EXP = os.environ.get('EXP', 'E')

LDS_CHUNKS = [('q', 0), ('k', 0), ('q', 2), ('k', 2), ('o', (0, 0)), ('o', (1, 0)), ('v', 6), ('v', 7)]
REG_CHUNKS = [(m, j) for j in range(9) for m in 'qk' if (m, j) not in LDS_CHUNKS] + \
             [('v', j) for j in (0, 2, 1, 3, 8, 4, 5)] + \
             [('o', (0, 1)), ('o', (1, 1)), ('o', (2, 0)), ('o', (3, 0)), ('o', (2, 1)), ('o', (3, 1))]
assert len(REG_CHUNKS) == 27
def lds_off(ch, tt, k5):
    if ch == ('o', 8):
        return 32768 + k5 * 1024
    i = LDS_CHUNKS.index(ch)
    if i < 6:
        return ((i >> 1) * 2 + k5) * 4096 + ((i & 1) * 2 + tt) * 1024
    return i * 4096 + k5 * 2048 + tt * 1024
_blk = {}
def _regblock(n):
    return ('a', 8 * n) if n < 32 else ('v', 72 + 8 * (n - 32))
n = 0
for ch in REG_CHUNKS:
    for tt in range(2):
        _blk[(ch, tt)] = _regblock(n); n += 1
_blk[(('o', 8), 1)] = _regblock(n); n += 1
assert n == 55
def rng(f, b, n): return '%s[%d:%d]' % (f, b, b + n - 1)
def blk_regs(ch, tt):
    f, b = _blk[(ch, tt)]
    return rng(f, b, 8)

vDummy, vL16, vL8, vIdx, vQKw, vOw, vPst, vMst, vW, vPc = 0, 1, 2, 3, 4, 5, 6, 7, 8, 9
VX = 64
sH, sW = 3, 4
SRD_Q, SRD_K, SRD_V, SRD_O, SRD_WS = 8, 12, 16, 20, 24
sDBG, sMEM0 = 28, 30
sStep, sTag, sMw, sMp, sRa, sReady, sRole, sFast, sC = 32, 33, 34, 35, 36, 37, 38, 39, 40
sT0, sT1, sT2, sT3 = 41, 42, 43, 44
sSeg, sNeed, sCnt = 101, 46, 47
sEx = 48
sPz = 50
sTm = 52
sKMa, sTa, sVMa, sVXa, sKXa, sP0, sP1, sP2, sGa, sGb, sLate = 60, 61, 62, 63, 64, 65, 66, 67, 69, 70, 71
sKMp, sW10 = 68, 100
sOnes, sBig, sRep = 72, 74, 75
sXcc, sW11, sTouch, sTagM = 76, 77, 78, 79
SRD_R = 96
sQP = 96
POLL_MAX = 20000
NREP = int(os.environ.get('NREP', '4'))
WS = f"s[{SRD_WS}:{SRD_WS+3}]"

def srd(A, d, ptr, nbytes):
    A(f"""s_mov_b32 s{d}, s{ptr}
s_and_b32 s{d+1}, s{ptr+1}, 0xffff
s_mov_b32 s{d+2}, {nbytes}
s_mov_b32 s{d+3}, 0x20000""")

def kv_wait(A, lab, vt):
    A(f"""s_lshl_b32 s{sT3}, s{sH}, 12
s_add_u32 s{sT3}, s{sT3}, {FLG_OFF}
s_mov_b32 s{sCnt}, 0""")
    A.label(lab)
    A(f"""buffer_load_dwordx4 v[{vt}:{vt+3}], v{vL16}, {WS}, s{sT3} offen sc1
s_add_u32 s{sCnt}, s{sCnt}, 1
v_and_b32 v{vt}, v{vt}, v{vt+1}
v_and_b32 v{vt+2}, v{vt+2}, v{vt+3}
v_and_b32 v{vt}, v{vt}, v{vt+2}
v_cmp_eq_u32 vcc, 1, v{vt}
s_ff0_i32_b64 s{sReady}, vcc
s_min_u32 s{sReady}, s{sReady}, 64
s_cmp_gt_u32 s{sCnt}, {POLL_MAX * 8}
s_cbranch_scc1 {lab}_d
s_cmp_gt_u32 s{sReady}, s{sNeed}
s_cbranch_scc1 {lab}_d
s_sleep 8
s_branch {lab}""")
    A.label(lab + '_d')

def bits(A, dst, terms, tmp, first=True):
    for (b, wd, sh) in terms:
        A(f"v_bfe_u32 v{tmp}, v0, {b}, {wd}")
        if first:
            A(f"v_lshlrev_b32 v{dst}, {sh}, v{tmp}"); first = False
        else:
            A(f"v_lshl_add_u32 v{dst}, v{tmp}, {sh}, v{dst}")

def gen_chain(A, dbg=0, tag='C', flags=False):
    L = lambda x: f'{tag}_{x}'
    NST = 12
    R0, R1, R2 = 34, 38, 58
    if dbg:
        A(f"s_memtime s[{sTm+6}:{sTm+7}]")
    A(f"""s_lshr_b32 s{sH}, s2, 3
s_load_dwordx4 s[60:63], s[0:1], 32
s_load_dwordx4 s[64:67], s[0:1], 48
s_load_dwordx2 s[68:69], s[0:1], 64
s_load_dwordx4 s[72:75], s[0:1], 88
v_lshrrev_b32 v10, 6, v0
v_and_b32 v0, 63, v0
v_readfirstlane_b32 s{sW}, v10
s_getreg_b32 s{sXcc}, hwreg(HW_REG_XCC_ID)
v_lshlrev_b32 v{vL16}, 4, v0
v_lshlrev_b32 v{vL8}, 3, v0
s_waitcnt lgkmcnt(0)""")
    srd(A, SRD_Q, 62, 576 * 4096 * 2)
    srd(A, SRD_K, 64, 576 * 4096 * 2)
    srd(A, SRD_V, 66, 576 * 4096 * 2)
    srd(A, SRD_O, 68, 576 * 4096 * 2)
    srd(A, SRD_WS, 74, WS_BYTES)
    A(f"""s_mov_b32 s{sDBG}, s72
s_mov_b32 s{sDBG+1}, s73
s_mov_b32 s{sMEM0}, s60
s_mov_b32 s{sMEM0+1}, s61
s_mov_b32 s{sC}, {fbits(C_SCALE):#x}
s_lshl_b32 s{sW11}, s{sW}, 11
s_and_b32 s{sXcc}, s{sXcc}, 15
s_mov_b32 s{sPz}, {POISON:#x}
s_mov_b32 s{sPz+1}, {POISON:#x}""")
    ts(A, 0, SRD_WS, 10)
    A(f"""s_add_u32 s{sT0}, s{sH}, 32
s_cmp_eq_u32 s{sW}, 1
s_cselect_b32 s{sT0}, s{sH}, s{sT0}
s_cselect_b32 s{sRole}, 1, 0
s_add_u32 s{sT1}, s{sH}, 64
s_min_u32 s{sT1}, s{sT1}, 71
s_cmp_ge_u32 s{sW}, 2
s_cselect_b32 s{sT0}, s{sT1}, s{sT0}
s_lshl_b32 s{sRa}, s{sT0}, 12
s_add_u32 s{sRa}, s{sRa}, {PART_OFF}
s_cmp_lt_u32 s{sH}, 8
s_cselect_b32 s{sT1}, 0, 2
s_cmp_eq_u32 s{sW}, 2
s_cselect_b32 s{sRole}, s{sT1}, s{sRole}
s_cmp_eq_u32 s{sW}, 3
s_cselect_b32 s{sRole}, 2, s{sRole}""")
    A(f"""s_bfe_u32 s{sT1}, s{sT0}, 0x20003
s_lshl_b32 s{sT1}, s{sT1}, 11
s_cmp_lt_u32 s{sT0}, 32
s_cselect_b32 s{sT3}, 1024, 0
s_add_u32 s{sT1}, s{sT1}, s{sT3}
s_and_b32 s{sT3}, s{sT0}, 1
s_lshl_b32 s{sT3}, s{sT3}, 9
s_add_u32 s{sT1}, s{sT1}, s{sT3}
s_bfe_u32 s{sT3}, s{sT0}, 0x20001
s_lshl_b32 s{sT3}, s{sT3}, 6
s_add_u32 s{sT1}, s{sT1}, s{sT3}
s_lshl_b32 s{sT2}, s{sT0}, 7
s_cmp_ge_u32 s{sT0}, 64
s_cselect_b32 s{sT1}, s{sT2}, s{sT1}
s_cselect_b32 s{sT2}, 6, 8
v_bfe_u32 v10, v0, 2, 1
v_lshlrev_b32 v10, s{sT2}, v10""")
    bits(A, 10, [(1, 1, 5), (4, 1, 4), (0, 1, 3)], 11, False)
    A(f"""v_lshrrev_b32 v11, 5, v0
v_bfe_u32 v12, v0, 3, 1
v_lshl_add_u32 v11, v11, 1, v12
v_and_b32 v11, {NREP - 1}, v11
v_mul_u32_u24 v11, {MREP}, v11
v_add3_u32 v{vMst}, v10, v11, s{sT1}""")
    A(f"""v_mov_b64 v[12:13], 0
v_mov_b64 v[14:15], 0
v_mov_b64 v[16:17], 1
v_mov_b64 v[18:19], 1
v_mov_b64 v[20:21], s[{sPz}:{sPz+1}]""")
    if flags:
        A(f"""s_lshl_b32 s{sT0}, s{sH}, 12
s_lshl_b32 s{sT1}, s{sW}, 10
s_add_u32 s{sT0}, s{sT0}, s{sT1}
s_add_u32 s{sT0}, s{sT0}, {FLG_OFF}
buffer_store_dwordx4 v[12:15], v{vL16}, {WS}, s{sT0} offen sc1""")
    A(f"""s_cmp_eq_u32 s{sRole}, 2
s_cbranch_scc1 {L('noinit')}""")
    for i in range(4):
        A(f"buffer_store_dwordx4 v[16:19], v{vL16}, {WS}, s{sRa} offen offset:{i*1024} sc1")
    for slot in range(3):
        A(f"s_mov_b32 s{sT0}, {MIMG_OFF + slot * MIMG_SLOT}")
        A(f"buffer_store_dwordx2 v[20:21], v{vMst}, {WS}, s{sT0} offen sc1")
    A.label(L('noinit'))
    bits(A, 10, [(2, 2, 1), (0, 1, 0)], 11)
    A("v_mul_u32_u24 v10, 1152, v10")
    A("v_mov_b32 v22, v10")
    bits(A, 10, [(4, 2, 3), (1, 1, 2)], 11, False)
    bits(A, 22, [(4, 2, 5), (1, 1, 4)], 11, False)
    A(f"""s_lshl_b32 s{sT0}, s{sW}, 7
v_add_u32 v10, s{sT0}, v10""")
    for b in range(2):
        for t in range(4):
            A(f"global_load_dword v{24+4*b+t}, v10, s[{sMEM0}:{sMEM0+1}] offset:{512*(1-b) + 32*t}", manual=True)
    A(f"global_load_dwordx4 v[{R2}:{R2+3}], v22, s[{sMEM0}:{sMEM0+1}] offset:1024", manual=True)
    A(f"""v_bfe_u32 v11, v0, 4, 1
v_lshlrev_b32 v11, 1, v11
v_xor_b32 v11, v11, v0
v_and_b32 v12, 3, v11
v_lshlrev_b32 v13, 4, v12""")
    bits(A, 66, [(5, 1, 18), (2, 1, 17), (3, 1, 14), (4, 1, 13)], 11)
    A("v_add_u32 v66, v66, v13")
    bits(A, 67, [(3, 1, 16), (4, 1, 15), (5, 1, 14), (2, 1, 13)], 11)
    A("v_add_u32 v67, v67, v13")
    bits(A, 14, [(4, 1, 4), (3, 1, 2), (5, 1, 1), (2, 1, 0)], 11)
    A(f"""v_mul_u32_u24 v15, 1152, v14
v_lshrrev_b32 v11, 1, v12
v_mul_u32_u24 v11, {64 * 1152}, v11
v_and_b32 v12, 1, v12
v_lshl_add_u32 v12, v12, 4, v15
v_add_u32 v69, v12, v11
v_lshrrev_b32 v11, 4, v0
v_lshlrev_b32 v11, 1, v11
v_xor_b32 v11, v11, v0
v_and_b32 v11, 7, v11
v_lshlrev_b32 v13, 4, v11""")
    bits(A, 68, [(3, 1, 17), (4, 1, 14), (5, 1, 13)], 11)
    A("v_add_u32 v68, v68, v13")
    bits(A, 70, [(3, 1, 13), (4, 1, 16), (5, 1, 15)], 11)
    A("v_add_u32 v70, v70, v13")
    bits(A, 14, [(3, 1, 0), (4, 1, 2), (5, 1, 4)], 11)
    A("""v_mul_u32_u24 v14, 1152, v14
v_add_u32 v71, v14, v13""")
    sCV, sCO, sCO8, sLds, sCX = sT1, sT2, sT3, sSeg, sNeed
    A(f"""s_lshl_b32 s{sCV}, s{sH}, 8
s_and_b32 s{sT0}, s{sW}, 1
s_lshl_b32 s{sT0}, s{sT0}, 7
s_add_u32 s{sCX}, s{sCV}, s{sT0}
s_lshl_b32 s{sT0}, s{sW}, 6
s_add_u32 s{sCV}, s{sCV}, s{sT0}
s_mul_i32 s{sCO}, s{sH}, {128 * 1152}
s_lshl_b32 s{sT0}, s{sW}, 5
s_add_u32 s{sCO8}, s{sCO}, s{sT0}
s_add_u32 s{sCO8}, s{sCO8}, 1024
s_lshl_b32 s{sT0}, s{sW}, 7
s_add_u32 s{sCO}, s{sCO}, s{sT0}
s_mul_i32 s{sLds}, s{sW}, {L_WSZ}
s_add_u32 s{sLds}, s{sLds}, {L_W}
s_lshl_b32 s{sKXa}, s{sW}, 12
s_cmp_lt_u32 s{sW}, 2
s_cselect_b32 s{SRD_Q}, s{SRD_Q}, s{SRD_K}
s_cselect_b32 s{SRD_Q+1}, s{SRD_Q+1}, s{SRD_K+1}""")
    for p in range(4):
        A(f"""s_xor_b32 s{sT0}, s{sW}, {p}
s_lshl_b32 s{sQP+p}, s{sT0}, 19""")
    items = [('x', j, k5) for j in (1, 3, 4, 5, 6, 7, 8) for k5 in range(2)] + \
            [('o', rp, jj, k5) for rp, jj in ((0, 1), (1, 0), (1, 1)) for k5 in range(2)] + [('v', j) for j in (0, 2, 1, 3, 8, 4, 5)] + \
            [('x', 0, 0), ('x', 0, 1), ('x', 2, 0), ('x', 2, 1), ('o', 0, 0, 0), ('o', 0, 0, 1), ('v', 6), ('v', 7), ('o8',)]
    assert len(items) == 36
    NU_ = 9
    def issue(k):
        it = items[k]; un = k % NU_
        for i in range(4):
            rot = None
            if it[0] == 'x':
                s_, sb = SRD_Q, sCX
                if it[1] == 8:
                    so, vo = (512 + 32 * it[2] + 16 * (i >> 1) + 2 * (i & 1)) * 8192, 70
                else:
                    so, vo, rot = (256 * (1 - (it[1] & 1)) + 8 * it[2] + 4 * (i >> 1) + 32 * (i & 1)) * 8192, 68, it[1] >> 1
            elif it[0] == 'o':
                s_, sb, vo = SRD_O, sCO, 71
                so = (64 * it[2] + 32 * it[3] + 8 * (i >> 1) + 2 * (i & 1)) * 1152 + it[1] * 512
            elif it[0] == 'v':
                s_, sb = SRD_V, sCV
                if it[1] == 8:
                    so, vo = (512 + 32 * (i >> 1) + 16 * (i & 1)) * 8192, 67
                else:
                    so, vo, rot = (256 * (1 - (it[1] & 1)) + 8 * (i >> 1) + 4 * (i & 1)) * 8192, 66, it[1] >> 1
            else:
                s_, sb, vo = SRD_O, sCO8, 69
                so = (32 * (i >> 1) + 8 * (i & 1)) * 1152
            A(f"s_add_u32 m0, s{sLds if un < 8 else sKXa}, {(un * 4096 if un < 8 else 0) + i * 1024}")
            A(f"s_add_u32 s{sT0}, s{sb}, {so}")
            if rot is not None:
                A(f"s_add_u32 s{sT0}, s{sT0}, s{sQP + rot}")
            A(f"buffer_load_dwordx4 v{vo}, s[{s_}:{s_+3}], s{sT0} offen lds")
    for k in range(NU_):
        issue(k)
    A(f"""s_mul_i32 s{sT0}, s{sXcc}, s{sXcc}
s_lshl_b32 s{sT0}, s{sT0}, 10
s_add_u32 s{sT0}, s{sT0}, s{sXcc}
s_lshl_b32 s{sT0}, s{sT0}, 8
s_add_u32 s{sXcc}, s{sT0}, 1
v_mov_b32 v12, 128
v_mov_b32 v13, s{sXcc}
s_waitcnt vmcnt(36)
s_barrier
s_cmp_lg_u32 s{sW}, 0
s_cbranch_scc1 {L('arr')}
s_mov_b64 exec, 1
global_atomic_add v12, v13, s[{sDBG}:{sDBG+1}]
s_mov_b64 exec, -1""")
    A.label(L('arr'))
    A(f"""s_mov_b32 s{sKMa}, 0x05040100
s_mov_b32 s{sTa}, 0x07060302""")
    for b, R in ((0, R0), (1, R1)):
        x = 24 + 4 * b
        A(f"""v_perm_b32 v{R}, v{x+1}, v{x}, s{sKMa}
v_perm_b32 v{R+1}, v{x+3}, v{x+2}, s{sKMa}
v_perm_b32 v{R+2}, v{x+1}, v{x}, s{sTa}
v_perm_b32 v{R+3}, v{x+3}, v{x+2}, s{sTa}""")
    A(f"""v_and_b32 v10, 2, v0
v_cmp_eq_u32 vcc, 0, v10
v_mov_b32 v11, 0xeeee
v_mov_b32 v12, 0x4444
v_cndmask_b32 v{vIdx}, v11, v12, vcc""")
    bits(A, 10, [(0, 4, 5), (4, 2, 3)], 11)
    A(f"""s_and_b32 s{sT0}, s{sW}, 1
s_lshl_b32 s{sT0}, s{sT0}, 11
s_add_u32 s{sT0}, s{sT0}, {L_QK}
v_add_u32 v10, s{sT0}, v10
s_cmp_lt_u32 s{sW}, 2
s_cselect_b32 s{sT0}, 4, 0
v_add_u32 v{vQKw}, s{sT0}, v10""")
    bits(A, 10, [(0, 1, 4), (2, 2, 6), (4, 1, 5), (5, 1, 8)], 11)
    A(f"""s_lshl_b32 s{sT0}, s{sW}, 9
s_add_u32 s{sT0}, s{sT0}, {L_O}
v_add_u32 v{vOw}, s{sT0}, v10""")
    bits(A, 10, [(3, 3, 12), (0, 3, 4)], 11)
    bits(A, 12, [(5, 1, 12), (0, 5, 2)], 11)
    A(f"""s_lshl_b32 s{sT0}, s{sH}, 7
v_add_u32 v{vPst}, s{sT0}, v10
v_add_u32 v{vPc}, s{sT0}, v12
s_lshl_b32 s{sT0}, s{sW}, 15
s_add_u32 s{sP0}, s{sT0}, {PART_OFF}
s_add_u32 s{sP1}, s{sP0}, {4 * 32768}
s_lshl_b32 s{sT0}, s{sW}, 13
s_add_u32 s{sP2}, s{sT0}, {PART_OFF + 8 * 32768}
v_add_u32 v{vW}, s{sLds}, v{vL16}
s_mov_b32 s{sEx}, 0xcccccccc
s_mov_b32 s{sEx+1}, 0xcccccccc
s_add_u32 s{sT0}, s{sH}, s{sW}
s_and_b32 s{sT0}, s{sT0}, {NREP - 1}
s_mul_i32 s{sRep}, s{sT0}, {MREP}
s_lshl_b32 s{sTouch}, s{sW}, 12
s_mov_b32 s{sOnes}, 0x3f803f80
s_mov_b32 s{sOnes+1}, 0x3f803f80
s_mov_b32 s{sBig}, {fbits(2.0**60):#x}""")
    A(f"""v_and_b32 v10, 4, v0
v_cmp_eq_u32 vcc, 0, v10
v_mov_b32 v11, 0x3f800000
v_mov_b32 v12, 0x3f80
v_cndmask_b32 v11, v11, v12, vcc
v_and_b32 v10, 3, v0""")
    for d in range(4):
        A(f"""v_cmp_eq_u32 vcc, {d}, v10
v_cndmask_b32 v{20+d}, 0, v11, vcc""")
    A("v_mov_b64 v[42:43], v[20:21]")
    A("v_mov_b64 v[44:45], v[22:23]")
    bits(A, 64, [(5, 1, 10), (4, 1, 8), (4, 1, 5), (2, 2, 6), (0, 2, 3)], 11)
    bits(A, 65, [(5, 1, 11), (4, 1, 9), (2, 2, 7), (3, 2, 5), (0, 2, 3)], 11)
    for k in range(36):
        issued = min(k + NU_, 36)
        it = items[k]; un = k % NU_
        A(f"s_waitcnt vmcnt({4 * (issued - (k + 1))})")
        sbase = sLds if un < 8 else sKXa
        ub = un * 4096 if un < 8 else 0
        wide = it[0] in 'xo' and it[0] != 'o8'
        wb = []
        for n in range(4):
            if wide:
                k5 = it[-1]; tt = n & 1
                ch = (('q', 'k')[n >> 1], it[1]) if it[0] == 'x' else ('o', (2 * it[1] + (n >> 1), it[2]))
                A(f"v_xor_b32 v46, {32 * n}, v65")
                o0, o1 = ub, ub + 1024
            else:
                k5 = n >> 1; tt = n & 1
                ch = ('v', it[1]) if it[0] == 'v' else ('o', 8)
                A(f"v_xor_b32 v46, {32 * tt}, v64")
                o0, o1 = ub + k5 * 2048, ub + k5 * 2048 + 512
            A(f"v_add_u32 v46, s{sbase}, v46")
            if (ch, tt) in _blk:
                f, b = _blk[(ch, tt)]; b += 4 * k5
            else:
                f, b = 'v', 10 + 4 * n
                wb.append((b, lds_off(ch, tt, k5)))
            A(f"ds_read_b64_tr_b16 {rng(f, b, 2)}, v46 offset:{o0}")
            A(f"ds_read_b64_tr_b16 {rng(f, b + 2, 2)}, v46 offset:{o1}")
        A("s_waitcnt lgkmcnt(0)")
        if k + NU_ < 36:
            issue(k + NU_)
        for b, off in wb:
            A(f"ds_write_b128 v{vW}, v[{b}:{b+3}] offset:{off}")
    A("s_barrier")
    A(f"ds_write_b128 v{vL16}, v[42:45] offset:{L_SEL}")
    ts(A, 1, SRD_WS, 10)
    A(f"""v_mov_b32 v10, 128
s_mov_b32 s{sCnt}, 0""")
    A.label(L('rdv_loop'))
    A(f"""global_load_dword v12, v10, s[{sDBG}:{sDBG+1}] sc1
s_add_u32 s{sCnt}, s{sCnt}, 1
v_readfirstlane_b32 s{sT0}, v12
s_cmp_gt_u32 s{sCnt}, {POLL_MAX}
s_cbranch_scc1 {L('rdv_done')}
s_and_b32 s{sT1}, s{sT0}, 0xff
s_cmp_ge_u32 s{sT1}, 32
s_cbranch_scc1 {L('rdv_done')}
s_sleep 4
s_branch {L('rdv_loop')}""")
    A.label(L('rdv_done'))
    A(f"""s_lshl_b32 s{sT1}, s{sXcc}, 5
s_cmp_eq_u32 s{sT0}, s{sT1}
s_cselect_b32 s{sFast}, 1, 0
s_mov_b32 s{sStep}, 0
s_lshl_b32 s{sSeg}, s{sH}, 20
s_mov_b32 s{sMp}, {MIMG_OFF}
s_mov_b32 s{sMw}, {MIMG_OFF + MIMG_SLOT}
s_mov_b32 s{sReady}, 64
s_lshl_b32 s{sW10}, s{sW}, 10
s_sub_u32 s{sW10}, s{sW10}, 2048
s_mov_b32 s{SRD_K}, s{SRD_WS}
s_mov_b32 s{SRD_K+1}, s{SRD_WS+1}
s_cmp_ge_u32 s{sW}, 2
s_cselect_b32 s{SRD_K+2}, {WS_BYTES}, 0
s_mov_b32 s{SRD_R}, s{SRD_WS}
s_mov_b32 s{SRD_R+1}, s{SRD_WS+1}
s_cmp_eq_u32 s{sRole}, 1
s_cselect_b32 s{SRD_R+2}, {WS_BYTES}, 0
s_mov_b32 s{SRD_R+3}, 0x20000
s_add_u32 m0, s{sW11}, {L_KX}""")
    if flags:
        A(f"s_mov_b32 s{sNeed}, 0")
        kv_wait(A, L('kv0'), 16)
    if dbg:
        A(f"s_memtime s[{sTm}:{sTm+1}]")
        A("s_waitcnt lgkmcnt(0)")
        A(f"s_mov_b32 s{sTm+5}, s{sTm}")
        for n in range(NST): A(f"s_mov_b32 s{80+n}, 0")
    ts(A, 2, SRD_WS, 12)
    A(f"s_cmp_eq_u32 s{sFast}, 0")
    A(f"s_cbranch_scc1 {L('S_pre')}")
    gen_loop(A, dbg, tag + '_F', '', L('end'), flags)
    gen_loop(A, dbg, tag + '_S', ' sc1', L('end'), flags)
    A.label(L('end'))
    ts(A, 3, SRD_WS, 10)
    if dbg:
        A(f"""s_memtime s[{sTm+2}:{sTm+3}]
s_waitcnt lgkmcnt(0)
s_sub_u32 s{sT0}, s{sTm+2}, s{sTm}
v_mov_b32 v10, s{sT0}
v_mov_b32 v11, s{sFast}
s_lshl_b32 s{sT1}, s{sH}, 8
s_lshl_b32 s{sT2}, s{sW}, 6
s_add_u32 s{sT1}, s{sT1}, s{sT2}
s_add_u32 s{sT1}, s{sT1}, {DBG_OFF + 0x200000}
v_mov_b32 v12, 0
s_sub_u32 s{sT0}, s{sTm}, s{sTm+6}
v_mov_b32 v13, s{sT0}
s_mov_b64 exec, 1
buffer_store_dwordx2 v[10:11], v12, {WS}, s{sT1} offen
buffer_store_dword v13, v12, {WS}, s{sT1} offen offset:8""")
        for n in range(NST):
            A(f"v_mov_b32 v13, s{80+n}")
            A(f"buffer_store_dword v13, v12, {WS}, s{sT1} offen offset:{16+4*n}")
    A("s_endpgm")


def gen_loop(A, dbg, tag, SC, endlab, flags):
    L = lambda x: f'{tag}_{x}'
    def stamp(n):
        if dbg == 5:
            A(f"""s_memrealtime s[{sTm+2}:{sTm+3}]
s_cmp_eq_u32 s{sStep}, {41 if n in (4, 5, 6, 7) else 40}
s_waitcnt lgkmcnt(0)
s_cselect_b32 s{80+n}, s{sTm+2}, s{80+n}""")
            return
        if dbg not in (2, 3): return
        A(f"""s_memtime s[{sTm+2}:{sTm+3}]
s_waitcnt lgkmcnt(0)
s_sub_u32 s{sTm+4}, s{sTm+2}, s{sTm+5}
s_add_u32 s{80+n}, s{80+n}, s{sTm+4}
s_mov_b32 s{sTm+5}, s{sTm+2}""")
    aQ, aK, aV = 10, 18, 26
    R0, R1, R2 = 34, 38, 58
    SB = 42
    def lds_half(ch, tt, k5, dst, manual=False):
        A(f"ds_read_b128 v[{dst+4*k5}:{dst+4*k5+3}], v{vW} offset:{lds_off(ch, tt, k5)}", manual)
    def lds_blk(ch, tt, dst, manual=False):
        lds_half(ch, tt, 0, dst, manual); lds_half(ch, tt, 1, dst, manual)
    def sched(mf, side):
        side = sorted(enumerate(side), key=lambda x: (x[1][1], x[0]))
        for g, m in enumerate(mf):
            m()
            n = 0
            for e in list(side):
                rel, dl, fn = e[1]
                if rel <= g and (n == 0 or dl <= g):
                    fn(); side.remove(e); n += 1
        assert not side, side
    def zero(b, n):
        for r in range(b, b + n, 2):
            A(f"v_mov_b64 v[{r}:{r+1}], 0")
    def smf(acc, a, b):
        A(f"v_smfmac_f32_16x16x64_bf16 v[{acc}:{acc+3}], v[{a}:{a+3}], {b}, v{vIdx}")
    cur_p = [None]
    def xr(p):
        A(f"v_xor_b32 v62, {p * 2048}, v63")
        cur_p[0] = p
    def rdA(slot, buf, manual=False):
        p = slot >> 1
        if p == 0:
            base = 63
        else:
            if cur_p[0] != p:
                xr(p)
            base = 62
        A(f"ds_read_b128 v[{buf}:{buf+3}], v{base} offset:{L_M + (slot & 1) * 1024}", manual)
    def ps(a, dst, part):
        if part == 0: A(f"v_add_f32 v{a}, v{a}, v{a+2}")
        elif part == 1: A(f"v_add_f32 v{a+1}, v{a+1}, v{a+3}")
        else: A(f"v_cvt_pk_bf16_f32 v{dst}, v{a}, v{a+1}")
    def psum(a, dst):
        for part in range(3): ps(a, dst, part)
    def tagit(r):
        A(f"v_bfi_b32 v{r}, 1, s{sTag}, v{r}")
    def rdX(u, x):
        A(f"ds_read_b64_tr_b16 v[{x}:{x+1}], v{vL8} offset:{L_QK + u*1024}")
        A(f"ds_read_b64_tr_b16 v[{x+2}:{x+3}], v{vL8} offset:{L_QK + u*1024 + 512}")
    def pre_a():
        lds_blk(('q', 0), 0, SB, True); lds_blk(('q', 0), 1, SB + 8, True)
        A(f"""s_lshr_b32 s{sKMa}, s{sSeg}, 1
s_add_u32 s{sKMa}, s{sKMa}, {MEM_OFF}
s_lshr_b32 s{sT1}, s{sW11}, 2
s_add_u32 s{sVMa}, s{sKMa}, s{sT1}
s_add_u32 s{sVMa}, s{sVMa}, 4096
s_add_u32 s{sKMa}, s{sKMa}, s{sW10}
s_add_u32 s{sKXa}, s{sSeg}, s{sW11}
s_add_u32 s{sVXa}, s{sKXa}, 8192
s_cmp_lt_u32 s{sStep}, 63
s_cselect_b32 s{sT0}, {0 if 'a' in EXP else 16384}, 0
s_add_u32 s{sSeg}, s{sSeg}, s{sT0}
s_add_u32 s{sTa}, s{sSeg}, s{sTouch}
s_add_u32 s{sNeed}, s{sStep}, 1
s_min_u32 s{sNeed}, s{sNeed}, 63
s_add_u32 s{sGb}, s{sMw}, s{sRep}
s_add_u32 s{sGa}, s{sGb}, s{sW11}
s_add_u32 s{sGb}, s{sGb}, 8192""")
    def pre_b():
        zero(10, 24)
        A(f"""v_add_u32 v63, s{sW11}, v{vL16}
v_xor_b32 v62, 2048, v63
s_and_b32 s{sTag}, s{sStep}, 1
s_sub_u32 s{sTagM}, 0, s{sTag}""")
    A.label(L('pre'))
    pre_a(); pre_b()
    A("s_waitcnt vmcnt(0) lgkmcnt(0)")
    A(f"s_branch {L('top')}")
    A.label(L('gather'))
    def gpoll():
        A(f"""buffer_load_dwordx4 v[{R0}:{R0+3}], v{vL16}, {WS}, s{sGa} offen sc1
buffer_load_dwordx4 v[{R2}:{R2+3}], v{vL16}, {WS}, s{sGb} offen sc1""", manual=True)
    stamp(5)
    def gchk(n=0):
        A(f"""s_waitcnt vmcnt({n})
v_max3_u32 v{vDummy}, v{R0}, v{R0+2}, v{R2}
v_max_u32 v{vDummy}, v{vDummy}, v{R2+2}
v_cmp_eq_u32 vcc, s{sPz}, v{vDummy}""")
        if dbg in (2, 3): A(f"s_add_u32 s91, s91, 1")
    pre_b()
    A(f"""s_mov_b32 s{sCnt}, 0
s_mov_b32 s{sMp}, s{sMw}
s_add_u32 s{sMw}, s{sMw}, {MIMG_SLOT}
s_cmp_eq_u32 s{sMw}, {MIMG_OFF + 3 * MIMG_SLOT}
s_cselect_b32 s{sMw}, {MIMG_OFF}, s{sMw}
s_cmp_lg_u32 s{sRole}, 1
s_cbranch_scc1 {L('g_poll')} ;exit""")
    gchk(2)
    A(f"s_cbranch_vccz {L('top')} ;exit")
    A.label(L('g_poll'))
    for n in range(3):
        gpoll()
        gchk()
        A(f"s_cbranch_vccz {L('top')} ;exit")
    A(f"""s_add_u32 s{sCnt}, s{sCnt}, 1
s_cmp_lt_u32 s{sCnt}, {POLL_MAX}
s_cbranch_scc1 {L('g_poll')} ;nofence""")
    A.label(L('top'))
    stamp(6)
    groups = [('q', 0), ('v', 0), ('q', 8), ('k', 0), ('k', 8), ('v', 8), ('q', 2), ('v', 2), ('q', 4), ('k', 2), ('k', 4), ('v', 4),
              ('q', 6), ('k', 6), ('v', 6), ('q', 1), ('k', 1), ('q', 3), ('q', 5), ('q', 7), ('k', 3), ('k', 5), ('k', 7)]
    abuf = {0: R0, 8: R2, 2: R0, 4: R2, 6: R0, 1: R1, 3: R2, 5: R0, 7: R1}
    KB = [SB, SB + 8]
    def rdK(u, t=None):
        k = KB[u & 1]
        if t in (None, 0): A(f"ds_read_b128 v[{k}:{k+3}], v{vL16} offset:{L_KX + u*1024}")
        if t in (None, 1): A(f"ds_read_b128 v[{k+4}:{k+7}], v{vL16} offset:{L_KX + 4096 + u*1024}")
    def bar(n, st=False):
        A("s_waitcnt lgkmcnt(%d)" % n)
        A("s_barrier")
        if dbg == 5 and st: stamp(7)
    def chk(buf, lab, part):
        if part == 0:
            A(f"v_cmp_eq_u32 s[{sT2+1}:{sT2+2}], s{sPz}, v{buf}")
        elif part == 1:
            A(f"v_cmp_eq_u32 vcc, s{sPz}, v{buf+2}")
        else:
            A(f"s_or_b64 vcc, vcc, s[{sT2+1}:{sT2+2}]")
            A(f"s_cbranch_scc1 {L(lab)} ;exit")
            A.label(L(lab + 'r') + ' ;soft')
    def kvchk():
        if flags:
            A(f"""s_cmp_le_u32 s{sReady}, s{sNeed}
s_cbranch_scc1 {L('kvw')} ;exit""")
            A.label(L('kvr') + ' ;soft')
    def dump(which):
        A(f"""s_mul_i32 s{sT0}, s{sStep}, 16384
s_add_u32 s{sT0}, s{sT0}, {DBG_OFF}
s_cmp_eq_u32 s{sH}, 0
s_cselect_b32 s{sT0}, s{sT0}, {DBG_OFF + 0x100000}
s_add_u32 s{sT1}, s{sT0}, 8192""")
        if which == 0:
            A(f"""buffer_store_dwordx4 v[{R0}:{R0+3}], v63, {WS}, s{sT0} offen
buffer_store_dwordx4 v[{R2}:{R2+3}], v{vL16}, {WS}, s{sT1} offen""")
        else:
            A(f"buffer_store_dwordx4 v[{R1}:{R1+3}], v63, {WS}, s{sT0} offen offset:1024")
    def wq(t, r):
        A(f"ds_write_b32 v{vQKw}, v{r} offset:{t * 512}")
    mf = []
    for ch in groups:
        acc = {'q': aQ, 'k': aK, 'v': aV}[ch[0]]
        for tt in range(2):
            b = blk_regs(ch, tt) if (ch, tt) in _blk else rng('v', SB + 8 * tt, 8)
            mf.append(lambda acc=acc, tt=tt, ch=ch, b=b: smf(acc + 4 * tt, abuf[ch[1]], b))
    def stream(ch, rel):
        return [(rel, rel + 1, lambda: lds_half(ch, 0, 0, SB)), (rel, rel + 2, lambda: lds_half(ch, 0, 1, SB)),
                (rel + 1, rel + 2, lambda: lds_half(ch, 1, 0, SB + 8)), (rel + 1, rel + 3, lambda: lds_half(ch, 1, 1, SB + 8))]
    cur_p[0] = 1
    TG = int(os.environ.get('TG', '15'))
    G1G = int(os.environ.get('G1G', '4'))
    def g1():
        A(f"""s_cmp_lg_u32 s{sStep}, 0
s_cselect_b64 exec, -1, 0""")
        A(f"buffer_load_dwordx4 v[{R1}:{R1+3}], v{vL16}, {WS}, s{sGa} offen offset:1024 sc1", manual=True)
        A("s_mov_b64 exec, -1")
    side = [(0, 0, lambda: (A(f"ds_write_b128 v63, v[{R0}:{R0+3}] offset:{L_M}"), dump(0) if dbg == 1 else None))] + stream(('k', 0), 0) + [
        (5, 5, lambda: bar(4, True)),
        (5, 5, lambda: A(f"buffer_load_dwordx4 v{vL16}, {WS}, s{sKXa} offen sc1 lds")),
        (7, 7, lambda: rdA(2, R0)),
        (8, 10, lambda: xr(2)),
        (9, 9, lambda: A(f"buffer_load_dwordx4 v{vL16}, {WS}, s{sKXa} offen offset:1024 sc1 lds")),
        (10, 10, lambda: A(f"buffer_load_dwordx4 v[{VX}:{VX+3}], v{vL16}, {WS}, s{sVXa} offen sc1", manual=True)),
        (11, 11, lambda: rdA(4, R2)),
        (11, 11, lambda: A(f"buffer_load_dwordx4 v[{VX+4}:{VX+7}], v{vL16}, {WS}, s{sVXa} offen offset:1024 sc1", manual=True)),
        (G1G, G1G, g1),
        (16, 17, lambda: xr(3)),
        (19, 19, lambda: rdA(6, R0)),
        (20, 20, lambda: (A("s_waitcnt vmcnt(%d)" % (5 if TG < 20 else 4)), chk(R1, 'late1', 0))),
        (21, 21, lambda: chk(R1, 'late1', 1)),
        (22, 22, lambda: (chk(R1, 'late1', 2), A(f"ds_write_b128 v63, v[{R1}:{R1+3}] offset:{L_M + 1024}"), dump(1) if dbg == 1 else None)),
        (23, 23, lambda: xr(1)),
        (6, TG - 1, lambda: A(f"v_lshlrev_b32 v{vDummy}, 2, v{vL16}")),
        (26, 26, lambda: (bar(NBB), rdA(3, R2))),
        (28, 28, lambda: xr(2)),
        (29, 29, lambda: rdA(5, R0)),
        (30, 32, lambda: xr(3)),
        (33, 33, lambda: rdA(7, R1)),
        (TG, TG, lambda: A(f"buffer_load_dword v{vDummy}, v{vDummy}, {WS}, s{sTa} offen sc1", manual=True)),
        (40, 40, lambda: ps(aQ, aQ + 2, 0)), (41, 41, lambda: ps(aQ, aQ + 2, 1)),
        (42, 42, lambda: ps(aQ + 4, aQ + 3, 0)), (43, 43, lambda: ps(aQ + 4, aQ + 3, 1)),
        (44, 44, lambda: ps(aQ, aQ + 2, 2)), (45, 45, lambda: ps(aQ + 4, aQ + 3, 2)),
    ] + stream(('q', 2), 6) + stream(('k', 2), 12) + stream(('v', 6), 18)
    NBB = 0
    side += [(34, 36, lambda: lds_half(('v', 7), 0, 0, SB)), (34, 37, lambda: lds_half(('v', 7), 0, 1, SB)),
             (34, 38, lambda: lds_half(('v', 7), 1, 0, SB + 8)), (34, 39, lambda: lds_half(('v', 7), 1, 1, SB + 8))]
    if flags:
        side.append((3, 3, kvchk))
    sched(mf, side)
    def vs(slot, buf, tts=(0, 1)):
        for tt in tts:
            b = blk_regs(('v', slot), tt) if (('v', slot), tt) in _blk else rng('v', SB + 8 * tt, 8)
            smf(aV + 4 * tt, buf, b)
    vs(3, R2, (0,))
    psum(aK, aQ + 4)
    wq(2, aQ + 4)
    psum(aK + 4, aQ + 5)
    wq(3, aQ + 5)
    vs(3, R2, (1,))
    wq(0, aQ + 2)
    vs(7, R1, (0,))
    wq(1, aQ + 3)
    vs(7, R1, (1,)); rdA(1, R1)
    A(f"buffer_store_dwordx4 v[{aQ+2}:{aQ+5}], v{vL16}, s[{SRD_K}:{SRD_K+3}], s{sKMa} offen sc1")
    vs(5, R0, (0,))
    A("s_waitcnt lgkmcnt(1) vmcnt(2)")
    A("s_barrier")
    stamp(0)
    S0, S1, SM = 10, 14, 18
    XB = [22, R2]
    VMr = 28
    def pubk(u):
        if 'k' in EXP: return
        x = XB[u & 1]
        A(f"""s_cmp_eq_u32 s{sW}, {u}
s_cselect_b64 exec, -1, 0
buffer_store_dwordx4 v[{x}:{x+3}], v{vL16}, {WS}, s{sKMa} offen offset:{u*1024} sc1
s_mov_b64 exec, -1""")
    def sc(u, ex=()):
        x, k = XB[u & 1], KB[u & 1]
        c = lambda r: '0' if u == 0 else f'v[{r}:{r+3}]'
        ops = [f"v_mfma_f32_16x16x32_bf16 v[{SM}:{SM+3}], v[{x}:{x+3}], v[{x}:{x+3}], {c(SM)}",
               f"v_mfma_f32_16x16x32_bf16 v[{S0}:{S0+3}], v[{k}:{k+3}], v[{x}:{x+3}], {c(S0)}",
               f"v_mfma_f32_16x16x32_bf16 v[{S1}:{S1+3}], v[{k+4}:{k+7}], v[{x}:{x+3}], {c(S1)}"]
        for n, o in enumerate(ops):
            A(o)
            if n < len(ex) and ex[n]: ex[n]()
    rdX(0, XB[0]); rdK(0); rdX(1, XB[1]); rdK(1)
    vs(5, R0, (1,))
    rdX(2, R0)
    vs(1, R1)
    rdX(3, R1)
    sc(0, (None, lambda: rdK(2, 0), lambda: rdK(2, 1)))
    XB[0] = R0
    A(f"v_mov_b64 v[22:23], s[{sOnes}:{sOnes+1}]")
    sc(1, (lambda: ps(aV, VMr, 0), lambda: (rdK(3, 0), ps(aV, VMr, 1)), lambda: rdK(3, 1)))
    XB[1] = R1
    A(f"v_mov_b64 v[24:25], s[{sOnes}:{sOnes+1}]")
    sc(2, (lambda: ps(aV + 4, VMr + 1, 0), lambda: ps(aV + 4, VMr + 1, 1), lambda: lds_blk(('o', (0, 0)), 0, 42)))
    sc(3, (lambda: ps(aV, VMr, 2), lambda: ps(aV + 4, VMr + 1, 2), lambda: lds_blk(('o', (0, 0)), 1, 50)))
    stamp(1)
    sv = [S0, S0+1, S0+2, S0+3, S1, S1+1, S1+2, S1+3, SM, SM+1]
    PX, VMr = 58, 28
    O0, O1, LSUM, ONE = 34, 38, 30, 22
    A(f"""v_mul_f32 v{SM}, s{sC}, v{SM}
v_mul_f32 v{SM+1}, s{sC}, v{SM+1}
buffer_store_dwordx2 v[{VMr}:{VMr+1}], v{vL8}, {WS}, s{sVMa} offen sc1
s_cmp_eq_u32 s{sStep}, {NSTEPS - 1}
v_exp_f32 v62, v{SM}
v_exp_f32 v63, v{SM+1}
s_cbranch_scc1 {endlab} ;exit
v_exp_f32 v26, v{sv[0]}
v_exp_f32 v27, v{sv[1]}
v_cvt_pk_bf16_f32 v20, v62, v63
v_mov_b32 v21, 0
v_exp_f32 v32, v{sv[2]}
v_exp_f32 v33, v{sv[3]}
v_mfma_f32_16x16x16_bf16 v[{O0}:{O0+3}], v[{VMr}:{VMr+1}], v[20:21], 0
v_cvt_pk_bf16_f32 v63, v62, v63
v_mov_b32 v62, 0
v_cvt_pk_bf16_f32 v{PX}, v26, v27
v_exp_f32 v26, v{sv[4]}
v_mfma_f32_16x16x16_bf16 v[{O1}:{O1+3}], v[{VMr}:{VMr+1}], v[62:63], 0
v_exp_f32 v27, v{sv[5]}
v_cvt_pk_bf16_f32 v{PX+1}, v32, v33
v_exp_f32 v62, v{sv[6]}
v_mfma_f32_16x16x16_bf16 v[{LSUM}:{LSUM+3}], v[{ONE}:{ONE+1}], v[20:21], 0
v_exp_f32 v63, v{sv[7]}
v_cvt_pk_bf16_f32 v{PX+2}, v26, v27
v_cvt_pk_bf16_f32 v{PX+3}, v62, v63
v_mfma_f32_16x16x32_bf16 v[{LSUM}:{LSUM+3}], v[{ONE}:{ONE+3}], v[{PX}:{PX+3}], v[{LSUM}:{LSUM+3}]
v_mfma_f32_16x16x32_bf16 v[{O0}:{O0+3}], v[{VX}:{VX+3}], v[{PX}:{PX+3}], v[{O0}:{O0+3}]
v_mfma_f32_16x16x32_bf16 v[{O1}:{O1+3}], v[{VX+4}:{VX+7}], v[{PX}:{PX+3}], v[{O1}:{O1+3}]
v_rcp_f32 v31, v30""")
    def norm():
        for n, o in enumerate((O0, O0 + 2, O1, O1 + 2)):
            A(f"v_pk_mul_f32 v[{o}:{o+1}], v[{o}:{o+1}], v[30:31] op_sel:[0,1] op_sel_hi:[1,1]")
        for n, o in enumerate((O0, O0 + 2, O1, O1 + 2)):
            A(f"v_cvt_pk_bf16_f32 v{PX + n}, v{o}, v{o+1}")
    norm()
    A(f"""s_mov_b64 exec, s[{sEx}:{sEx+1}]
ds_write_b128 v{vOw}, v[{PX}:{PX+3}]
v_max_f32 v32, v30, v31
v_cmp_nlt_f32 vcc, v32, s{sBig}
s_mov_b64 exec, -1
s_cbranch_vccnz {L('slow')} ;exit""")
    A.label(L('slowret') + ' ;soft')
    lds_blk(('o', 8), 0, 34)
    zero(18, 8); zero(VX, 8)
    A("s_waitcnt lgkmcnt(2)")
    A("s_barrier")
    stamp(2)
    OA = [10, 14]
    A(f"ds_read_b128 v[{OA[0]}:{OA[0]+3}], v{vL16} offset:{L_O}")
    A(f"ds_read_b128 v[{OA[1]}:{OA[1]+3}], v{vL16} offset:{L_O + 1024}")
    zero(26, 8)
    ACT = {(2, 0): 18, (2, 1): 22, (3, 0): VX, (3, 1): VX + 4, (0, 0): 30, (0, 1): 18, (1, 0): 22, (1, 1): 34}
    RES = 58
    mf = []
    for r in (2, 3, 0, 1):
        if r == 0:
            mf.append(lambda: smf(26, OA[0], 'v[34:41]'))
            mf.append(lambda: smf(26, OA[1], blk_regs(('o', 8), 1)))
        for jj in ((0, 1) if r != 1 else (1, 0)):
            for tt in range(2):
                ch = ('o', (r, jj))
                b = blk_regs(ch, tt) if (ch, tt) in _blk else rng('v', SB + 8 * tt, 8)
                mf.append(lambda r=r, jj=jj, tt=tt, b=b: smf(ACT[(r, tt)], OA[jj], b))
    def P(a, dst, g0):
        return [(g0, g0, lambda: ps(a, dst, 0)), (g0, g0 + 1, lambda: ps(a, dst, 1)), (g0 + 1, g0 + 1, lambda: ps(a, dst, 2))]
    side = P(18, RES, 4) + [(6, 6, lambda: tagit(RES))] + P(22, RES + 1, 6) + P(VX, RES + 2, 8) + P(VX + 4, RES + 3, 9)
    side += [(8, 9, lambda: zero(18, 2)), (8, 9, lambda: zero(20, 2))]
    side += [(10, 10, lambda: A(f"buffer_store_dwordx4 v[{RES}:{RES+3}], v{vPst}, {WS}, s{sP1} offen{SC}"))]
    side += [(10, 11, lambda: lds_half(('o', (1, 0)), 0, 0, SB)), (10, 12, lambda: lds_half(('o', (1, 0)), 0, 1, SB)),
             (11, 12, lambda: lds_half(('o', (1, 0)), 1, 0, SB + 8)), (11, 13, lambda: lds_half(('o', (1, 0)), 1, 1, SB + 8))]
    side += P(26, 62, 11) + [(12, 12, lambda: tagit(62)), (12, 12, lambda: A(f"buffer_store_dword v62, v{vPc}, {WS}, s{sP2} offen{SC}"))]
    side += [(8, 11, lambda: zero(22, 2)), (8, 12, lambda: zero(24, 2)), (13, 13, lambda: zero(34, 2)), (13, 13, lambda: zero(36, 2))]
    side += P(30, RES, 15) + [(16, 16, lambda: tagit(RES))] + P(18, RES + 1, 16)
    side += [(15, 17, lambda: A(f"ds_read_b128 v[{VX}:{VX+3}], v{vL16} offset:{L_SEL}", manual=True))]
    sched(mf, side)
    psum(22, RES + 2)
    psum(34, RES + 3)
    A(f"buffer_store_dwordx4 v[{RES}:{RES+3}], v{vPst}, {WS}, s{sP0} offen{SC}")
    D = VX + 4
    def rpoll(srd_):
        for i in range(4):
            A(f"buffer_load_dwordx4 v[{10+4*i}:{13+4*i}], v{vL16}, s[{srd_}:{srd_+3}], s{sRa} offen offset:{i*1024} sc1", manual=True)
    stamp(3)
    A(f"s_add_u32 s{sStep}, s{sStep}, 1")
    ts(A, 8, SRD_WS, 62, sStep)
    pre_a()
    A(f"""s_mov_b32 s{sCnt}, 0
s_cmp_eq_u32 s{sRole}, 0
s_waitcnt lgkmcnt(0) vmcnt({os.environ.get('WE', '3')})
s_cbranch_scc1 {L('r_poll')} ;exit
s_cmp_eq_u32 s{sRole}, 2
s_waitcnt vmcnt({os.environ.get('W0', '0')})
s_cbranch_scc1 {L('gather')} ;exit""")
    A.label(L('r_poll'))
    for n in range(3):
        rpoll(SRD_WS)
        for i in range(4):
            A(f"s_waitcnt vmcnt({3 - i})")
            A(f"v_mfma_f32_16x16x32_bf16 v[{D}:{D+3}], v[{VX}:{VX+3}], v[{10+4*i}:{13+4*i}], {'0' if i == 0 else rng('v', D, 4)}")
            if i == 1:
                A(f"v_bitop3_b32 v62, v10, v14, s{sTagM} bitop3:0x7e")
        A(f"""buffer_load_dwordx4 v[{R0}:{R0+3}], v{vL16}, s[{SRD_R}:{SRD_R+3}], s{sGa} offen sc1
buffer_load_dwordx4 v[{R2}:{R2+3}], v{vL16}, s[{SRD_R}:{SRD_R+3}], s{sGb} offen sc1""", manual=True)
        A(f"""v_bitop3_b32 v63, v18, v22, s{sTagM} bitop3:0x7e
v_bitop3_b32 v62, v62, v63, 1 bitop3:0xa8
v_cmp_ne_u32 vcc, 0, v62""")
        for r in range(D, D + 4):
            A(f"v_add_f32_dpp v{r}, v{r}, v{r} row_ror:8 row_mask:0xf bank_mask:0xf")
        A(f"""v_cvt_pk_bf16_f32 v{D}, v{D}, v{D+1}
v_cvt_pk_bf16_f32 v{D+1}, v{D+2}, v{D+3}""")
        if dbg == 2: A(f"s_add_u32 s90, s90, 1")
        A(f"s_cbranch_vccz {L('r_go')} ;exit")
    A(f"""s_add_u32 s{sCnt}, s{sCnt}, 1
s_cmp_lt_u32 s{sCnt}, {POLL_MAX}
s_cbranch_scc1 {L('r_poll')} ;nofence""")
    A.label(L('r_go'))
    A(f"buffer_store_dwordx2 v[{D}:{D+1}], v{vMst}, {WS}, s{sMw} offen{SC}")
    stamp(4)
    A(f"""v_mov_b64 v[62:63], s[{sPz}:{sPz+1}]
buffer_store_dwordx2 v[62:63], v{vMst}, {WS}, s{sMp} offen{SC}
s_branch {L('gather')} ;exit""")
    for lab, buf, so, off in (('late1', R1, sGa, 1024),):
        A.label(L(lab))
        A(f"s_mov_b32 s{sCnt}, 0")
        A.label(L(lab + 'l'))
        if dbg == 2: A(f"s_add_u32 s89, s89, 1")
        A(f"""buffer_load_dwordx4 v[{buf}:{buf+3}], v{vL16}, {WS}, s{so} offen offset:{off} sc1
s_add_u32 s{sCnt}, s{sCnt}, 1
v_cmp_eq_u32 s[{sT2+1}:{sT2+2}], s{sPz}, v{buf}
v_cmp_eq_u32 vcc, s{sPz}, v{buf+2}
s_or_b64 vcc, vcc, s[{sT2+1}:{sT2+2}]
s_cmp_gt_u32 s{sCnt}, {POLL_MAX}
s_cbranch_scc1 {L(lab + 'r')} ;exit
s_cbranch_vccnz {L(lab + 'l')} ;nofence
s_branch {L(lab + 'r')} ;exit""")
    if flags:
        A.label(L('kvw'))
        A("s_nop 3")
        kv_wait(A, L('kvl'), VX)
        A(f"s_branch {L('kvr')}")
    A.label(L('slow'))
    A("s_nop 15")
    A(f"""v_max3_f32 v30, v{sv[0]}, v{sv[1]}, v{sv[2]}
v_max3_f32 v31, v{sv[3]}, v{sv[4]}, v{sv[5]}
v_max3_f32 v30, v30, v{sv[6]}, v{sv[7]}
v_max3_f32 v31, v31, v{sv[8]}, v{sv[9]}
v_max_f32 v30, v30, v31
v_mov_b32 v31, v30
v_permlane32_swap_b32 v30, v31
v_max_f32 v30, v30, v31
v_mov_b32 v31, v30
v_permlane16_swap_b32 v30, v31
v_max_f32 v30, v30, v31""")
    for r in sv:
        A(f"v_sub_f32 v{r}, v{r}, v30")
    for r in sv:
        A(f"v_exp_f32 v{r}, v{r}")
    for n in range(4):
        A(f"v_cvt_pk_bf16_f32 v{PX+n}, v{sv[2*n]}, v{sv[2*n+1]}")
    A(f"""v_cvt_pk_bf16_f32 v20, v{SM}, v{SM+1}
v_mov_b32 v21, 0
v_mov_b32 v18, 0
v_mov_b32 v19, v20
v_mfma_f32_16x16x32_bf16 v[{O1}:{O1+3}], v[{VX+4}:{VX+7}], v[{PX}:{PX+3}], 0
v_mfma_f32_16x16x32_bf16 v[{O0}:{O0+3}], v[{VX}:{VX+3}], v[{PX}:{PX+3}], 0
v_mfma_f32_16x16x32_bf16 v[{LSUM}:{LSUM+3}], v[{ONE}:{ONE+3}], v[{PX}:{PX+3}], 0
v_mfma_f32_16x16x16_bf16 v[{O1}:{O1+3}], v[{VMr}:{VMr+1}], v[18:19], v[{O1}:{O1+3}]
v_mfma_f32_16x16x16_bf16 v[{O0}:{O0+3}], v[{VMr}:{VMr+1}], v[20:21], v[{O0}:{O0+3}]
v_mfma_f32_16x16x16_bf16 v[{LSUM}:{LSUM+3}], v[{ONE}:{ONE+1}], v[20:21], v[{LSUM}:{LSUM+3}]
v_rcp_f32 v31, v30""")
    norm()
    A(f"""s_mov_b64 exec, s[{sEx}:{sEx+1}]
ds_write_b128 v{vOw}, v[{PX}:{PX+3}]
s_mov_b64 exec, -1
s_waitcnt lgkmcnt(0)
s_branch {L('slowret')}""")
```

```python
import sys
sys.path.insert(0, "gen"); sys.path.insert(0, "scratch")
from bench import *
from asmlib import Asm
from layout import *
import chain

def build_kernel(dbg=1):
    name = "chain_kernel"
    A = Asm()
    A("""s_and_b32 s3, s2, 7
s_cmp_lg_u32 s3, 0
s_cbranch_scc1 L_exit
s_cmp_ge_u32 s2, 256
s_cbranch_scc1 L_exit""")
    chain.gen_chain(A, dbg=dbg)
    A.label("L_exit")
    A("s_endpgm")
    asm = head(name, 256, 256, LDS_BYTES) + A.finalize() + desc(name, 512, 102, accum=256)
    return asm, name

def bf16r(x):
    u = np.ascontiguousarray(x, np.float32).view(np.uint32)
    r = ((u + 0x7FFF + ((u >> 16) & 1)) >> 16).astype(np.uint32) << 16
    return r.view(np.float32)
def tobits(x):
    return (bf16r(x).view(np.uint32) >> 16).astype(np.uint16)
def frombits(b):
    return (b.astype(np.uint32) << 16).view(np.float32)

def make_inputs(seed=0):
    rng = np.random.default_rng(seed)
    g = lambda *s: rng.standard_normal(s).astype(np.float32)
    x = bf16r(g(2048, 576) * 0.05); mem0 = bf16r(g(8, 576) * 0.8)
    Wq = bf16r(g(576, 32, 128) * 1.6 / 24); Wk = bf16r(g(576, 32, 128) * 1.6 / 24); Wv = bf16r(g(576, 32, 128) * 0.8 / 24)
    Wo = bf16r(g(32, 128, 576) * 0.8 / 64)
    return x, mem0, Wq, Wk, Wv, Wo

def kx_image(K):
    lane = np.arange(64); g = lane >> 4; i = lane & 15
    j = np.arange(8)
    K = K.reshape(64, 32, 32, 128)
    out = np.zeros((64, 32, 2, 4, 64, 8), np.float32)
    for kt in range(2):
        for u in range(4):
            e = 32 * u + 16 * (j[None, :] >> 2) + 4 * g[:, None] + (j[None, :] & 3)
            key = (16 * kt + i)[:, None] + 0 * e
            out[:, :, kt, u] = K[:, key, :, e].transpose(2, 3, 0, 1)
    return out
def vx_image(V):
    lane = np.arange(64); g = lane >> 4; i = lane & 15
    j = np.arange(8)
    V = V.reshape(64, 32, 32, 128)
    out = np.zeros((64, 32, 8, 64, 8), np.float32)
    for et in range(8):
        key = 16 * (j[None, :] >> 2) + 4 * g[:, None] + (j[None, :] & 3)
        e = (16 * et + i)[:, None] + 0 * key
        out[:, :, et] = V[:, key, :, e].transpose(2, 3, 0, 1)
    return out
def m_from_image(img):
    m = np.zeros((8, 576), np.float32)
    for l in range(64):
        gA, i = l >> 4, l & 15
        tok = 2 * (i >> 2) + (i & 1); sg = (i >> 1) & 1
        for e in range(8):
            d = 16 * (e & 3) + 2 * (2 * gA + sg) + (e >> 2)
            m[tok, np.array([4, 0, 5, 1, 6, 2, 7, 3]) * 64 + d] = img[:8, l, e]
            m[tok, 512 + 16 * gA + 8 * sg + e] = img[8, l, e]
    return m

def ref_chain(x, mem0, Wq, Wk, Wv, Wo, Kx, Vx):
    mem = mem0; mems = []; kms = []; vms = []
    Wq2, Wk2, Wv2, Wo2 = Wq.reshape(576, -1), Wk.reshape(576, -1), Wv.reshape(576, -1), Wo.reshape(-1, 576)
    for s in range(64):
        q = bf16r(mem @ Wq2).reshape(8, 32, 128); k = bf16r(mem @ Wk2).reshape(8, 32, 128); v = bf16r(mem @ Wv2).reshape(8, 32, 128)
        kms.append(k); vms.append(v)
        K = np.concatenate([k, Kx[32*s:32*s+32]], 0); V = np.concatenate([v, Vx[32*s:32*s+32]], 0)
        sc = np.einsum('qhe,khe->hqk', q, K) * (128 ** -0.5)
        p = np.exp(sc - sc.max(-1, keepdims=True)); l = p.sum(-1, keepdims=True)
        o = np.einsum('hqk,khe->qhe', bf16r(p), V) / l.transpose(1, 0, 2)
        mem = bf16r(bf16r(o).reshape(8, -1) @ Wo2)
        mems.append(mem)
    return mems, kms, vms

if __name__ == "__main__":
    asm, name = build_kernel(int(sys.argv[2]) if len(sys.argv) > 2 else 1)
    co = build(asm, name, 13, "chain")
    print("instr lines", asm.count("\n"))
    if len(sys.argv) < 2:
        p = cl.address_register_problem(co, name); print("check:", p)
        sys.exit(0)
    x, mem0, Wq, Wk, Wv, Wo = make_inputs()
    Kx = bf16r(x @ Wk.reshape(576, -1)).reshape(2048, 32, 128)
    Vx = bf16r(x @ Wv.reshape(576, -1)).reshape(2048, 32, 128)
    mems, kms, vms = ref_chain(x, mem0, Wq, Wk, Wv, Wo, Kx, Vx)
    ws = np.random.default_rng(1).integers(0, 2**16, size=0x3600000 // 2, dtype=np.uint16)
    Kxs = bf16r((x @ Wk.reshape(576, -1)) * np.float32(chain.C_SCALE)).reshape(2048, 32, 128)
    kv = np.stack([tobits(kx_image(Kxs)).reshape(64, 32, 4096), tobits(vx_image(Vx)).reshape(64, 32, 4096)], 2)
    ws[:64*32*8192] = kv.transpose(1, 0, 2, 3).ravel()
    dws = cl.DeviceBuffer(WS_BYTES)
    cl.hip_check(cl._hip.hipMemcpy(dws._ptr, ws.ctypes.data_as(ctypes.c_void_p), ws.nbytes, 1))
    dummy = cl.DeviceBuffer(1 << 22)
    bufs = [cl.DeviceBuffer.from_numpy(tobits(a)) for a in (mem0, Wq, Wk, Wv, Wo)]
    k = cl.AsmKernel(co, name)
    for rep in range(3):
        dbg = cl.DeviceBuffer.from_numpy(np.zeros(64, np.uint32))
        args = [dummy.ptr]*4 + [b.ptr for b in bufs] + [dummy.ptr, dummy.ptr, dbg.ptr, dws.ptr]
        e0, e1 = ctypes.c_void_p(), ctypes.c_void_p()
        cl._hip.hipEventCreate(ctypes.byref(e0)); cl._hip.hipEventCreate(ctypes.byref(e1))
        cl._hip.hipEventRecord(e0, None)
        k.launch((256,1,1), (256,1,1), cl.pack_ptr_kernargs(args), LDS_BYTES)
        cl._hip.hipEventRecord(e1, None)
        sync()
        ms = ctypes.c_float(); cl._hip.hipEventElapsedTime(ctypes.byref(ms), e0, e1)
        out = dws.to_numpy(np.uint16, (0x3600000 // 2,))
        t = out[(DBG_OFF + 0x200000)//2:][:32*128].view(np.uint32).reshape(32, 4, 16)
        print(f"rep {rep}: event {ms.value*1000:.1f} us; loop cycles (h0,w0) {t[0,0,0]} -> per step {t[0,0,0]/63.4:.0f}; fast={t[0,0,1]} dbg={hex(dbg.to_numpy(np.uint32,(64,))[32])}")
    print("startup cycles", t[0,0,2], t[31,3,2])
    for h, w in ((0,0),(0,1),(0,2),(0,3),(17,0),(31,2)):
        print("stamps/step h,w", h, w, (t[h,w,4:16]/63).round(1).tolist())
    if len(sys.argv) > 2 and sys.argv[2] == '5':
        a = t[:, :, 4:12].astype(np.int64); base = a[:, :, 0].min()
        names = ["B1", "scores", "B2", "WoEnd", "red", "B3", "gath", "bar0"]
        for n in range(8):
            v = (a[:, :, n] - base) * 22.4
            v = v[a[:, :, n] > 0]
            print(names[n], "min %.0f mean %.0f max %.0f" % (v.min(), v.mean(), v.max()))
        for n in (3, 4, 6, 7):
            print(names[n], ((a[:, :, n] - base) * 22.4).astype(int).clip(-1, 99999).T.tolist())
    errs = []
    for s in range(63):
        img = frombits(out[(DBG_OFF + (s+1)*16384)//2:][:4608]).reshape(9, 64, 8)
        m = m_from_image(img)
        errs.append((np.abs(m - mems[s]).max(), np.abs(mems[s]).max()))
    print("m err/max:", [(f"{a:.2e}", f"{b:.2e}") for a, b in errs[:6]], "...", [(f"{a:.2e}", f"{b:.2e}") for a, b in errs[-3:]])
    mm = frombits(out[MEM_OFF//2:][:64*32*4096]).reshape(32, 64, 4096).transpose(1, 0, 2)
    km = mm[:, :, :1024].reshape(64, 32, 2, 64, 4, 2)
    vm = mm[:, :, 2048:3072].reshape(64, 32, 4, 64, 2, 2)
    lane = np.arange(64); g = lane >> 4; i = lane & 15; j = np.arange(8)
    ek = ev = 0
    for s in (0, 1, 5, 63):
        for w in range(2):
            for tt in range(4):
                for p in range(2):
                    ref = kms[s][2 * g + p, :, 64 * w + 16 * tt + i].T
                    ek = max(ek, np.abs(km[s, :, w, :, tt, p] - ref).max() / np.abs(ref).max())
        for w in range(4):
            for tt in range(2):
                for p in range(2):
                    ref = vms[s][2 * g + p, :, 32 * w + 16 * tt + i].T
                    ev = max(ev, np.abs(vm[s, :, w, :, tt, p] - ref).max() / np.abs(ref).max())
        print("seg", s, "km relerr", ek, "vm relerr", ev)
```

```python
import sys, re, os
sys.path.insert(0, "scratch"); sys.path.insert(0, "gen")
from bench import *
import test_chain
asm0, _ = test_chain.build_kernel(4)
lines = asm0.split("\n")
i0 = lines.index("C_F_top:")
bars = [i for i in range(i0, len(lines)) if lines[i].strip() == "s_barrier"]
iend = [i for i in range(i0, len(lines)) if "s_add_u32 s32, s32, 1" in lines[i]][0]
def seg(a, b): return [l for l in lines[a:b] if not l.endswith(":") and "cbranch" not in l]
segs = {"QK": seg(i0 + 1, bars[2] + 1), "SC+SM": seg(bars[2] + 1, bars[3] + 1), "WO": seg(bars[3] + 1, iend), "ALL": seg(i0 + 1, iend)}
def gen(body, nrep=50):
    name = "rate_kernel"
    a = head(name, 1, 256, 163840)
    a += f"""
    s_load_dwordx2 s[4:5], s[0:1], 0  ; out
    s_load_dwordx2 s[6:7], s[0:1], 8  ; ws
    s_waitcnt lgkmcnt(0)
    s_mov_b32 s24, s6
    s_and_b32 s25, s7, 0xffff
    s_mov_b32 s26, 0x100000
    s_mov_b32 s27, 0x20000
    v_mov_b32 v255, v0
    s_mov_b32 s12, s6
    s_and_b32 s13, s7, 0xffff
    s_mov_b32 s14, 0
    s_mov_b32 s15, 0x20000
"""
    for r in range(30, 80): a += f"    s_mov_b32 s{r}, 0\n"
    a += "    s_mov_b64 s[48:49], -1\n    s_mov_b32 m0, 16384\n"
    for r in range(0, 255): a += f"    v_mov_b32 v{r}, 0\n"
    for r in range(0, 256): a += f"    v_accvgpr_write_b32 a{r}, 0\n"
    a += f"""
    v_and_b32 v1, 63, v255
    v_lshlrev_b32 v2, 3, v1
    v_lshlrev_b32 v1, 4, v1
    v_mov_b32 v3, 0x4444
    v_lshlrev_b32 v4, 3, v255
    v_add_u32 v4, 8192, v4
    v_lshrrev_b32 v5, 1, v1
    v_and_b32 v5, 0x1f0, v5
    v_add_u32 v5, 12288, v5
    v_mov_b32 v6, v1
    v_lshrrev_b32 v8, 6, v255
    v_mul_u32_u24 v8, 34816, v8
    v_add_u32 v8, v8, v1
    v_add_u32 v8, 24576, v8
    v_lshrrev_b32 v9, 2, v1
    s_mov_b32 s90, 0
    s_barrier
    s_memtime s[92:93]
    s_waitcnt lgkmcnt(0)
L_loop:
    v_lshrrev_b32 v63, 6, v255
    v_lshlrev_b32 v63, 11, v63
    v_add_u32 v63, v63, v1
    v_mov_b32 v62, v1
    v_mov_b32 v0, v1
    s_nop 4
{body}
    s_waitcnt lgkmcnt(0) vmcnt(8)
    s_add_u32 s90, s90, 1
    s_cmp_lt_u32 s90, {nrep}
    s_cbranch_scc1 L_loop
    s_nop 15
    s_memtime s[16:17]
    s_waitcnt lgkmcnt(0) vmcnt(0)
    s_sub_u32 s16, s16, s92
    v_mov_b32 v1, s16
    v_lshlrev_b32 v2, 2, v255
    global_store_dword v2, v1, s[4:5]
    s_endpgm
"""
    a += desc(name, 512, 96, accum=256)
    return a, name
variants = {}
for k, sg in segs.items():
    variants[k] = sg
    variants[k + " only mfma"] = [l for l in sg if "mfma" in l]
    variants[k + " no vmem"] = [l for l in sg if "buffer_" not in l]
    variants[k + " no vmem no dsw"] = [l for l in sg if "buffer_" not in l and "ds_write" not in l]
    variants[k + " no vmem no barrier"] = [l for l in sg if "buffer_" not in l and "barrier" not in l]
    variants[k + " no vmem no waits"] = [l for l in sg if "buffer_" not in l and "waitcnt" not in l]
    variants[k + " no vmem no ds"] = [l for l in sg if "buffer_" not in l and "ds_" not in l and "waitcnt" not in l]
variants["empty"] = []
if __name__ == "__main__":
    run = len(sys.argv) > 1
    for key, sg in variants.items():
        asm, name = gen("\n".join(sg))
        co = build(asm, name, 2, "rate")
        if not run: continue
        k = cl.AsmKernel(co, name)
        out = cl.DeviceBuffer.from_numpy(np.zeros(1024, np.uint32))
        ws = cl.DeviceBuffer.from_numpy(np.zeros(1 << 18, np.uint32))
        for rep_ in range(2):
            k.launch((1,1,1), (256,1,1), cl.pack_ptr_kernargs([out.ptr, ws.ptr]), 163840)
            sync()
        o = out.to_numpy(np.uint32, (1024,))
        print(f"{key}: n={len(sg)} mfma={sum('mfma' in l for l in sg)}: {o[0]/50:.0f} cyc/iter")
        k.unload()
```

```python
import re, os
CONSERVATIVE = bool(os.environ.get('CONS'))
HOIST = not os.environ.get('NOHOIST')

REG_RE = re.compile(r'^(-|abs\()?([vas])(\d+)\)?$')
RNG_RE = re.compile(r'^(-|abs\()?([vas])\[(\d+):(\d+)\]\)?$')

def regs_of(tok):
    tok = tok.strip()
    m = REG_RE.match(tok)
    if m:
        return {(m.group(2), int(m.group(3)))}
    m = RNG_RE.match(tok)
    if m:
        return {(m.group(2), r) for r in range(int(m.group(3)), int(m.group(4)) + 1)}
    if tok == 'vcc':
        return {('s', 106), ('s', 107)}
    if tok == 'vcc_lo':
        return {('s', 106)}
    if tok == 'vcc_hi':
        return {('s', 107)}
    if tok == 'exec':
        return {('s', 126), ('s', 127)}
    if tok == 'm0':
        return {('s', 124)}
    return set()

def split_ops(s):
    out, depth, cur = [], 0, ''
    for ch in s:
        if ch in '[(':
            depth += 1
        elif ch in '])':
            depth -= 1
        if ch == ',' and depth == 0:
            out.append(cur.strip()); cur = ''
        else:
            cur += ch
    if cur.strip():
        out.append(cur.strip())
    return out

TRANS = ('v_exp_f32', 'v_log_f32', 'v_rcp_f32', 'v_rsq_f32', 'v_sqrt_f32', 'v_sin_f32', 'v_cos_f32', 'v_rcp_iflag_f32')

class Ins:
    __slots__ = ('text', 'mn', 'kind', 'rd', 'wr', 'mf_a', 'mf_b', 'mf_c', 'passes', 'is_dpp', 'st_data', 'wide',
                 'manual', 'lanesel', 'sgpr_rd', 'cond', 'soft')
    def __init__(self, text, manual=False):
        self.text = text
        self.manual = manual
        self.cond = False
        self.soft = False
        self.rd, self.wr = set(), set()
        self.mf_a = self.mf_b = self.mf_c = set()
        self.passes = 0
        self.is_dpp = False
        self.st_data = set()
        self.wide = False
        self.lanesel = set()
        t = text.split(';')[0].strip()
        if not t or t.endswith(':') or t.startswith('.'):
            self.mn = ''
            self.kind = 'label' if t.endswith(':') else 'none'
            return
        parts = t.split(None, 1)
        mn = parts[0]
        self.mn = mn
        rest = parts[1] if len(parts) > 1 else ''
        ops = split_ops(rest)
        mods = ''
        if ops:
            lp = ops[-1].split(None, 1)
            ops[-1] = lp[0]
            mods = lp[1] if len(lp) > 1 else ''
        R = [regs_of(o) for o in ops]
        U = lambda xs: set().union(*xs) if xs else set()
        if mn.startswith('v_mfma') or mn.startswith('v_smfmac'):
            self.kind = 'mfma'
            self.passes = 8 if '32x32' in mn else 4
            self.wr = R[0]
            self.mf_a, self.mf_b = R[1], R[2]
            if mn.startswith('v_smfmac'):
                self.mf_c = R[0]
                self.mf_b = R[2] | R[3]
            else:
                self.mf_c = R[3]
            self.rd = self.mf_a | self.mf_b | self.mf_c
        elif mn.startswith('v_'):
            self.kind = 'valu'
            self.is_dpp = mn.endswith('_dpp') or 'row_' in mods or 'quad_perm' in mods
            if mn.startswith('v_cmp'):
                self.wr = R[0]; self.rd = U(R[1:])
            elif 'permlane' in mn and 'swap' in mn:
                self.wr = R[0] | R[1]; self.rd = R[0] | R[1]
            elif mn.startswith(('v_add_co', 'v_sub_co', 'v_addc_co', 'v_subb_co', 'v_mad_u64')):
                self.wr = R[0] | R[1]; self.rd = U(R[2:])
            elif mn.startswith(('v_fmac', 'v_dot2c', 'v_pk_fmac')):
                self.wr = R[0]; self.rd = U(R)
            elif mn.startswith(('v_readlane', 'v_writelane')):
                self.wr = R[0]; self.rd = U(R[1:]); self.lanesel = R[2]
                if mn.startswith('v_writelane'):
                    self.rd |= R[0]
            elif mn == 'v_nop':
                pass
            else:
                self.wr = R[0]; self.rd = U(R[1:])
                if self.is_dpp:
                    self.rd |= R[0]
                if mn.startswith('v_cndmask') and len(ops) == 3:
                    self.rd |= regs_of('vcc')
        elif mn.startswith('ds_'):
            self.kind = 'ds'
            if mn.startswith(('ds_read', 'ds_bpermute', 'ds_permute', 'ds_swizzle')):
                self.wr = R[0]; self.rd = U(R[1:])
            else:
                self.rd = U(R)
        elif mn.startswith(('global_', 'buffer_')):
            self.kind = 'vm'
            if mn in ('buffer_wbl2', 'buffer_inv'):
                self.kind = 'vmx'
            elif 'load_lds' in mn or re.search(r'\blds\b', mods):
                self.rd = U(R) | regs_of('m0')
                self.kind = 'dma'
            elif '_load_' in mn:
                self.wr = R[0]; self.rd = U(R[1:])
                if 'd16' in mn:
                    self.rd |= R[0]
            elif '_store_' in mn:
                self.rd = U(R)
                self.st_data = R[1] if mn.startswith('global_') else R[0]
                self.wide = mn.endswith(('x3', 'x4'))
            elif 'atomic' in mn:
                if 'sc0' in mods.split():
                    if mn.startswith('global_'):
                        self.wr = R[0]; self.rd = U(R[1:])
                    else:
                        self.wr = R[0]; self.rd = U(R)
                else:
                    self.rd = U(R)
            else:
                raise ValueError('unknown vmem ' + text)
        elif mn.startswith('s_'):
            self.kind = 'salu'
            if mn.startswith(('s_load', 's_memtime', 's_memrealtime', 's_buffer_load')):
                self.kind = 'smem'
                self.wr = R[0]; self.rd = U(R[1:])
            elif mn.startswith(('s_cmp', 's_bitcmp')):
                self.rd = U(R)
            elif mn.startswith(('s_cbranch', 's_branch')):
                self.kind = 'branch'
            elif mn in ('s_waitcnt', 's_nop', 's_barrier', 's_sleep', 's_endpgm', 's_setprio'):
                self.kind = mn
            elif 'saveexec' in mn:
                self.wr = R[0] | regs_of('exec'); self.rd = U(R[1:]) | regs_of('exec')
            else:
                self.wr = R[0] if R else set(); self.rd = U(R[1:])
        else:
            raise ValueError('unknown instr ' + text)

    def states(self):
        if self.kind in ('label', 'none') or self.cond:
            return 0
        if self.mn == 's_nop':
            return int(self.text.split(';')[0].split()[1], 0) + 1
        return 1


def need_states(p, c):
    n = 0
    pv = {r for r in p.wr if r[0] in 'va'}
    ps = {r for r in p.wr if r[0] == 's'}
    if p.kind == 'valu':
        if c.kind == 'mfma' and pv & c.rd:
            n = max(n, 2)
        if c.kind == 'valu':
            if p.mn.startswith(TRANS) and not c.mn.startswith(TRANS) and pv & c.rd:
                n = max(n, 1)
            if p.mn.startswith(TRANS) and c.mn.startswith(TRANS) and pv & c.rd:
                n = max(n, 1)
            if ('permlane' in c.mn or c.is_dpp) and pv & c.rd:
                n = max(n, 2)
            if c.mn.startswith(('v_readlane', 'v_readfirstlane')) and pv & c.rd:
                n = max(n, 1)
            if ps & c.lanesel:
                n = max(n, 4)
            if ps & c.rd:
                n = max(n, 2)
        if p.mn.startswith(TRANS) and c.kind in ('vm', 'ds') and pv & c.rd:
            n = max(n, 1)
        if c.kind in ('vm', 'dma') and ps & c.rd:
            n = max(n, 5)
        if c.kind in ('salu', 'branch', 'smem') and ps & c.rd:
            n = max(n, 1)
    if p.kind == 'mfma':
        big = p.passes == 8
        if c.kind == 'mfma':
            if pv & (c.mf_a | c.mf_b):
                n = max(n, 12 if big else 8)
            if pv & c.mf_c:
                if c.mf_c == p.wr and c.mn == p.mn:
                    pass
                else:
                    n = max(n, 10 if big else 6)
            elif pv & c.wr:
                n = max(n, 10 if big else 6)
        elif c.kind in ('valu', 'vm', 'ds', 'dma'):
            if pv & (c.rd | c.wr):
                n = max(n, 12 if big else 8)
            if c.kind == 'valu' and p.mf_c & c.wr:
                n = max(n, 7 if big else 3)
            if c.kind == 'valu' and p.mn.startswith('v_smfmac') and (p.mf_a | p.mf_b) & c.wr:
                n = max(n, 4)
    if p.kind == 'vm' and p.wide and p.st_data & c.wr and c.kind in ('valu', 'mfma'):
        n = max(n, 2)
    if p.kind == 'vm' and p.wide and p.st_data & c.wr and c.kind in ('vm', 'ds'):
        n = max(n, 1)
    if p.kind == 'salu' and c.kind == 'dma' and ('s', 124) in p.wr:
        n = max(n, 1)
    return n


class Asm:
    def __init__(self):
        self.items = []
    def __call__(self, text, manual=False):
        for line in text.split('\n'):
            if line.strip():
                self.items.append(Ins(line.strip(), manual))
    def label(self, name):
        soft = name.endswith(' ;soft')
        if soft:
            name = name[:-6]
        i = Ins(name + ':')
        i.soft = soft
        self.items.append(i)
    def extend(self, other):
        self.items.extend(other.items)

    def finalize(self):
        out = []
        hist = []
        lg = []
        vm = []
        opened = set()
        softs = {x.text[:-1] for x in self.items if x.kind == 'label' and x.soft}
        seen = set()
        def emit(i):
            if opened:
                i.cond = True
            out.append(i)
            if i.kind not in ('none',):
                hist.append(i)
                if len(hist) > 24:
                    hist.pop(0)
        def gap(k, nxt):
            t = 0
            pipe = hist[k].passes if hist[k].kind == 'mfma' and not hist[k].cond else 0
            t = 1
            for q in hist[k + 1:]:
                if q.cond:
                    continue
                if q.kind == 'mfma' and not CONSERVATIVE:
                    t = max(t, pipe)
                    pipe = t + q.passes
                t += q.states()
            if nxt.kind == 'mfma' and not CONSERVATIVE:
                t = max(t, pipe)
            return t - 1
        def fence_states(n):
            dist = 0
            need = 0
            for p in reversed(hist):
                if p.kind == 'mfma':
                    need = max(need, (12 if p.passes == 8 else 8) - dist)
                elif p.kind == 'valu':
                    ps = any(r[0] == 's' for r in p.wr)
                    need = max(need, (5 if ps else 2) - dist)
                elif p.kind == 'vm' and p.wide:
                    need = max(need, 2 - dist)
                elif p.kind == 'salu' and ('s', 124) in p.wr:
                    need = max(need, 1 - dist)
                dist += p.states()
            while need > 0:
                k = min(need, 16)
                emit(Ins('s_nop %d' % (k - 1)))
                need -= k
        for i in self.items:
            if i.kind == 'none':
                out.append(i); continue
            if i.kind == 'label':
                seen.add(i.text[:-1])
                if i.soft:
                    opened.discard(i.text[:-1])
                    out.append(i)
                    continue
                pend = [x for x in lg if x[0]] + [x for x in vm if x[0]]
                if pend:
                    raise ValueError('tracked loads pending at label %s: %s' % (i.text, pend[:3]))
                out.append(i)
                lg, vm = [], []
                continue
            if i.kind == 'branch' and ';exit' in i.text:
                emit(i)
                continue
            if i.kind == 'branch' and ';nofence' in i.text:
                tgt = i.text.split(';')[0].split()[1]
                if tgt in seen:
                    pend = [x for x in lg if x[0]] + [x for x in vm if x[0]]
                    if pend:
                        raise ValueError('tracked loads pending at back branch %s' % i.text)
                    emit(i)
                else:
                    assert tgt in softs, tgt
                    emit(i)
                    opened.add(tgt)
                continue
            if i.kind == 'branch':
                pend = [x for x in lg if x[0]] + [x for x in vm if x[0]]
                if pend:
                    raise ValueError('tracked loads pending at branch %s: %s' % (i.text, pend[:3]))
                fence_states(0)
                emit(i)
                continue
            if i.kind == 's_waitcnt':
                if 'lgkmcnt(W)' in i.text:
                    n = 0
                    for q in reversed(out):
                        if q.kind == 'label' and not q.soft:
                            n = 0; break
                        if q.kind == 'smem':
                            n = 0; break
                        if q.kind == 'ds':
                            if q.mn.startswith('ds_write'):
                                break
                            n += 1
                    i = Ins(i.text.replace('lgkmcnt(W)', 'lgkmcnt(%d)' % min(n, 15)))
                m = re.search(r'lgkmcnt\((\d+)\)', i.text)
                if m:
                    n = int(m.group(1))
                    if n == 0 or not any(x[1] for x in lg):
                        lg = lg[len(lg) - n:] if n else []
                m = re.search(r'vmcnt\((\d+)\)', i.text)
                if m:
                    n = int(m.group(1))
                    vm = vm[len(vm) - n:] if n and n < len(vm) else ([] if n == 0 else vm)
                emit(i)
                continue
            touched = i.rd | i.wr
            w = []
            idx = max((k for k, x in enumerate(lg) if x[0] & touched), default=None)
            if idx is not None:
                n = len(lg) - 1 - idx
                if any(x[1] for x in lg):
                    n = 0
                n = min(n, 15)
                w.append('lgkmcnt(%d)' % n)
                lg = lg[len(lg) - n:] if n else []
            idx = max((k for k, x in enumerate(vm) if x[0] & touched), default=None)
            if idx is not None:
                n = min(len(vm) - 1 - idx, 63)
                w.append('vmcnt(%d)' % n)
                vm = vm[len(vm) - n:] if n else []
            if w:
                wi = Ins('s_waitcnt ' + ' '.join(w))
                moved = False
                if HOIST and i.kind == 'mfma' and not opened and len(w) == 1 and w[0].startswith('lgkm'):
                    n = int(w[0][8:-1]); k = len(out); skipped = 0; ok = False
                    while k > 0 and len(out) - k <= 4:
                        q = out[k - 1]
                        if q.kind == 'mfma':
                            ok = True; break
                        if q.kind == 'ds':
                            skipped += 1
                        elif q.kind not in ('valu', 'salu', 'vm', 'dma'):
                            break
                        k -= 1
                    if ok and k < len(out) and skipped <= n:
                        wi = Ins('s_waitcnt lgkmcnt(%d)' % (n - skipped))
                        out.insert(k, wi)
                        hist.insert(len(hist) - (len(out) - 1 - k), wi)
                        moved = True
                if not moved:
                    emit(wi)
            added = 0
            while True:
                if added:
                    hist.append(Ins('s_nop %d' % (added - 1)))
                ok = all(need_states(hist[k], i) <= gap(k, i) for k in range(len(hist)))
                if added:
                    hist.pop()
                if ok:
                    break
                added += 1
                assert added <= 16
            if added:
                was = set(opened)
                nop = Ins('s_nop %d' % (added - 1))
                emit(nop)
            emit(i)
            if opened:
                if i.kind in ('ds', 'smem', 'vm') and i.wr and not i.manual:
                    raise ValueError('tracked load inside conditional region: ' + i.text)
                continue
            if i.kind == 'ds':
                lg.append((set() if i.manual else set(i.wr), False))
            elif i.kind == 'smem':
                lg.append((set() if i.manual else set(i.wr), True))
            elif i.kind in ('vm', 'dma'):
                vm.append((set() if i.manual else set(i.wr), False))
        return '\n'.join(('' if x.kind == 'label' else '    ') + x.text for x in out) + '\n'
```

```python
from asmlib import Asm
from layout import *
import struct, math, os
from prof import ts

NSTEPS = 64
C_SCALE = (128 ** -0.5) * math.log2(math.e)
def fbits(x): return struct.unpack('<I', struct.pack('<f', x))[0]
EXP = os.environ.get('EXP', 'E')

LDS_CHUNKS = [('q', 0), ('k', 0), ('q', 2), ('k', 2), ('o', (0, 0)), ('o', (1, 0)), ('v', 6), ('v', 7)]
REG_CHUNKS = [(m, j) for j in range(9) for m in 'qk' if (m, j) not in LDS_CHUNKS] + \
             [('v', j) for j in (0, 2, 1, 3, 8, 4, 5)] + \
             [('o', (0, 1)), ('o', (1, 1)), ('o', (2, 0)), ('o', (3, 0)), ('o', (2, 1)), ('o', (3, 1))]
assert len(REG_CHUNKS) == 27
def lds_off(ch, tt, k5):
    if ch == ('o', 8):
        return 32768 + k5 * 1024
    i = LDS_CHUNKS.index(ch)
    if i < 6:
        return ((i >> 1) * 2 + k5) * 4096 + ((i & 1) * 2 + tt) * 1024
    return i * 4096 + k5 * 2048 + tt * 1024
_blk = {}
def _regblock(n):
    return ('a', 8 * n) if n < 32 else ('v', 72 + 8 * (n - 32))
n = 0
for ch in REG_CHUNKS:
    for tt in range(2):
        _blk[(ch, tt)] = _regblock(n); n += 1
_blk[(('o', 8), 1)] = _regblock(n); n += 1
assert n == 55
def rng(f, b, n): return '%s[%d:%d]' % (f, b, b + n - 1)
def blk_regs(ch, tt):
    f, b = _blk[(ch, tt)]
    return rng(f, b, 8)

vDummy, vL16, vL8, vIdx, vQKw, vOw, vPst, vMst, vW, vPc = 0, 1, 2, 3, 4, 5, 6, 7, 8, 9
VX = 64
sH, sW = 3, 4
SRD_Q, SRD_K, SRD_V, SRD_O, SRD_WS = 8, 12, 16, 20, 24
sDBG, sMEM0 = 28, 30
sStep, sTag, sMw, sMp, sRa, sReady, sRole, sFast, sC = 32, 33, 34, 35, 36, 37, 38, 39, 40
sT0, sT1, sT2, sT3 = 41, 42, 43, 44
sSeg, sNeed, sCnt = 101, 46, 47
sEx = 48
sPz = 50
sTm = 52
sKMa, sTa, sVMa, sVXa, sKXa, sP0, sP1, sP2, sGa, sGb, sLate = 60, 61, 62, 63, 64, 65, 66, 67, 69, 70, 71
sKF, sW10 = 68, 100
sOnes, sBig, sRep = 72, 74, 75
sXcc, sW11, sTouch, sTagM = 76, 77, 78, 79
SRD_R = 96
sQP = 96
POLL_MAX = 20000
NREP = int(os.environ.get('NREP', '4'))
WS = f"s[{SRD_WS}:{SRD_WS+3}]"

def srd(A, d, ptr, nbytes):
    A(f"""s_mov_b32 s{d}, s{ptr}
s_and_b32 s{d+1}, s{ptr+1}, 0xffff
s_mov_b32 s{d+2}, {nbytes}
s_mov_b32 s{d+3}, 0x20000""")

def kv_eval(A, v):
    A(f"""v_cmp_eq_u32 vcc, 0x01010101, v{v}
s_ff0_i32_b64 s{sReady}, vcc
s_min_u32 s{sReady}, s{sReady}, 64""")

def kv_wait(A, lab, vt):
    A(f"""v_lshrrev_b32 v{vt+1}, 2, v{vL16}
s_mov_b32 s{sCnt}, 0""")
    A.label(lab)
    A(f"""buffer_load_dword v{vt}, v{vt+1}, {WS}, s{sKF} offen sc1
s_add_u32 s{sCnt}, s{sCnt}, 1""")
    kv_eval(A, vt)
    A(f"""s_cmp_gt_u32 s{sCnt}, {POLL_MAX * 8}
s_cbranch_scc1 {lab}_d
s_cmp_gt_u32 s{sReady}, s{sNeed}
s_cbranch_scc1 {lab}_d
s_sleep 4
s_branch {lab}""")
    A.label(lab + '_d')

def bits(A, dst, terms, tmp, first=True):
    for (b, wd, sh) in terms:
        A(f"v_bfe_u32 v{tmp}, v0, {b}, {wd}")
        if first:
            A(f"v_lshlrev_b32 v{dst}, {sh}, v{tmp}"); first = False
        else:
            A(f"v_lshl_add_u32 v{dst}, v{tmp}, {sh}, v{dst}")

def gen_chain(A, dbg=0, tag='C', flags=False):
    L = lambda x: f'{tag}_{x}'
    NST = 12
    R0, R1, R2 = 34, 38, 58
    if dbg:
        A(f"s_memtime s[{sTm+6}:{sTm+7}]")
    A(f"""s_lshr_b32 s{sH}, s2, 3
s_load_dwordx4 s[60:63], s[0:1], 32
s_load_dwordx4 s[64:67], s[0:1], 48
s_load_dwordx2 s[68:69], s[0:1], 64
s_load_dwordx4 s[72:75], s[0:1], 88
v_lshrrev_b32 v10, 6, v0
v_and_b32 v0, 63, v0
v_readfirstlane_b32 s{sW}, v10
s_getreg_b32 s{sXcc}, hwreg(HW_REG_XCC_ID)
v_lshlrev_b32 v{vL16}, 4, v0
v_lshlrev_b32 v{vL8}, 3, v0
s_waitcnt lgkmcnt(0)""")
    srd(A, SRD_Q, 62, 576 * 4096 * 2)
    srd(A, SRD_K, 64, 576 * 4096 * 2)
    srd(A, SRD_V, 66, 576 * 4096 * 2)
    srd(A, SRD_O, 68, 576 * 4096 * 2)
    srd(A, SRD_WS, 74, WS_BYTES)
    A(f"""s_mov_b32 s{sDBG}, s72
s_mov_b32 s{sDBG+1}, s73
s_mov_b32 s{sMEM0}, s60
s_mov_b32 s{sMEM0+1}, s61
s_mov_b32 s{sC}, {fbits(C_SCALE):#x}
s_lshl_b32 s{sW11}, s{sW}, 11
s_and_b32 s{sXcc}, s{sXcc}, 15
s_mov_b32 s{sPz}, {POISON:#x}
s_mov_b32 s{sPz+1}, {POISON:#x}""")
    ts(A, 0, SRD_WS, 10)
    A(f"""s_add_u32 s{sT0}, s{sH}, 32
s_cmp_eq_u32 s{sW}, 1
s_cselect_b32 s{sT0}, s{sH}, s{sT0}
s_cselect_b32 s{sRole}, 1, 0
s_add_u32 s{sT1}, s{sH}, 64
s_min_u32 s{sT1}, s{sT1}, 71
s_cmp_ge_u32 s{sW}, 2
s_cselect_b32 s{sT0}, s{sT1}, s{sT0}
s_lshl_b32 s{sRa}, s{sT0}, 12
s_add_u32 s{sRa}, s{sRa}, {PART_OFF}
s_cmp_lt_u32 s{sH}, 8
s_cselect_b32 s{sT1}, 0, 2
s_cmp_eq_u32 s{sW}, 2
s_cselect_b32 s{sRole}, s{sT1}, s{sRole}
s_cmp_eq_u32 s{sW}, 3
s_cselect_b32 s{sRole}, 2, s{sRole}""")
    A(f"""s_bfe_u32 s{sT1}, s{sT0}, 0x20003
s_lshl_b32 s{sT1}, s{sT1}, 11
s_cmp_lt_u32 s{sT0}, 32
s_cselect_b32 s{sT3}, 1024, 0
s_add_u32 s{sT1}, s{sT1}, s{sT3}
s_and_b32 s{sT3}, s{sT0}, 1
s_lshl_b32 s{sT3}, s{sT3}, 9
s_add_u32 s{sT1}, s{sT1}, s{sT3}
s_bfe_u32 s{sT3}, s{sT0}, 0x20001
s_lshl_b32 s{sT3}, s{sT3}, 6
s_add_u32 s{sT1}, s{sT1}, s{sT3}
s_lshl_b32 s{sT2}, s{sT0}, 7
s_cmp_ge_u32 s{sT0}, 64
s_cselect_b32 s{sT1}, s{sT2}, s{sT1}
s_cselect_b32 s{sT2}, 6, 8
v_bfe_u32 v10, v0, 2, 1
v_lshlrev_b32 v10, s{sT2}, v10""")
    bits(A, 10, [(1, 1, 5), (4, 1, 4), (0, 1, 3)], 11, False)
    A(f"""v_lshrrev_b32 v11, 5, v0
v_bfe_u32 v12, v0, 3, 1
v_lshl_add_u32 v11, v11, 1, v12
v_and_b32 v11, {NREP - 1}, v11
v_mul_u32_u24 v11, {MREP}, v11
v_add3_u32 v{vMst}, v10, v11, s{sT1}""")
    A(f"""v_mov_b64 v[12:13], 0
v_mov_b64 v[14:15], 0
v_mov_b64 v[16:17], 1
v_mov_b64 v[18:19], 1
v_mov_b64 v[20:21], s[{sPz}:{sPz+1}]""")
    if flags:
        A(f"""s_lshl_b32 s{sT0}, s{sH}, 12
s_lshl_b32 s{sT1}, s{sW}, 10
s_add_u32 s{sT0}, s{sT0}, s{sT1}
s_add_u32 s{sT0}, s{sT0}, {FLG_OFF}
buffer_store_dwordx4 v[12:15], v{vL16}, {WS}, s{sT0} offen sc1""")
    A(f"""s_cmp_eq_u32 s{sRole}, 2
s_cbranch_scc1 {L('noinit')}""")
    for i in range(4):
        A(f"buffer_store_dwordx4 v[16:19], v{vL16}, {WS}, s{sRa} offen offset:{i*1024} sc1")
    for slot in range(3):
        A(f"s_mov_b32 s{sT0}, {MIMG_OFF + slot * MIMG_SLOT}")
        A(f"buffer_store_dwordx2 v[20:21], v{vMst}, {WS}, s{sT0} offen sc1")
    A.label(L('noinit'))
    bits(A, 10, [(2, 2, 1), (0, 1, 0)], 11)
    A("v_mul_u32_u24 v10, 1152, v10")
    A("v_mov_b32 v22, v10")
    bits(A, 10, [(4, 2, 3), (1, 1, 2)], 11, False)
    bits(A, 22, [(4, 2, 5), (1, 1, 4)], 11, False)
    A(f"""s_lshl_b32 s{sT0}, s{sW}, 7
v_add_u32 v10, s{sT0}, v10""")
    for b in range(2):
        for t in range(4):
            A(f"global_load_dword v{24+4*b+t}, v10, s[{sMEM0}:{sMEM0+1}] offset:{512*(1-b) + 32*t}", manual=True)
    A(f"global_load_dwordx4 v[{R2}:{R2+3}], v22, s[{sMEM0}:{sMEM0+1}] offset:1024", manual=True)
    A(f"""v_bfe_u32 v11, v0, 4, 1
v_lshlrev_b32 v11, 1, v11
v_xor_b32 v11, v11, v0
v_and_b32 v12, 3, v11
v_lshlrev_b32 v13, 4, v12""")
    bits(A, 66, [(5, 1, 18), (2, 1, 17), (3, 1, 14), (4, 1, 13)], 11)
    A("v_add_u32 v66, v66, v13")
    bits(A, 67, [(3, 1, 16), (4, 1, 15), (5, 1, 14), (2, 1, 13)], 11)
    A("v_add_u32 v67, v67, v13")
    bits(A, 14, [(4, 1, 4), (3, 1, 2), (5, 1, 1), (2, 1, 0)], 11)
    A(f"""v_mul_u32_u24 v15, 1152, v14
v_lshrrev_b32 v11, 1, v12
v_mul_u32_u24 v11, {64 * 1152}, v11
v_and_b32 v12, 1, v12
v_lshl_add_u32 v12, v12, 4, v15
v_add_u32 v69, v12, v11
v_lshrrev_b32 v11, 4, v0
v_lshlrev_b32 v11, 1, v11
v_xor_b32 v11, v11, v0
v_and_b32 v11, 7, v11
v_lshlrev_b32 v13, 4, v11""")
    bits(A, 68, [(3, 1, 17), (4, 1, 14), (5, 1, 13)], 11)
    A("v_add_u32 v68, v68, v13")
    bits(A, 70, [(3, 1, 13), (4, 1, 16), (5, 1, 15)], 11)
    A("v_add_u32 v70, v70, v13")
    bits(A, 14, [(3, 1, 0), (4, 1, 2), (5, 1, 4)], 11)
    A("""v_mul_u32_u24 v14, 1152, v14
v_add_u32 v71, v14, v13""")
    sCV, sCO, sCO8, sLds, sCX = sT1, sT2, sT3, sSeg, sNeed
    A(f"""s_lshl_b32 s{sCV}, s{sH}, 8
s_and_b32 s{sT0}, s{sW}, 1
s_lshl_b32 s{sT0}, s{sT0}, 7
s_add_u32 s{sCX}, s{sCV}, s{sT0}
s_lshl_b32 s{sT0}, s{sW}, 6
s_add_u32 s{sCV}, s{sCV}, s{sT0}
s_mul_i32 s{sCO}, s{sH}, {128 * 1152}
s_lshl_b32 s{sT0}, s{sW}, 5
s_add_u32 s{sCO8}, s{sCO}, s{sT0}
s_add_u32 s{sCO8}, s{sCO8}, 1024
s_lshl_b32 s{sT0}, s{sW}, 7
s_add_u32 s{sCO}, s{sCO}, s{sT0}
s_mul_i32 s{sLds}, s{sW}, {L_WSZ}
s_add_u32 s{sLds}, s{sLds}, {L_W}
s_lshl_b32 s{sKXa}, s{sW}, 12
s_cmp_lt_u32 s{sW}, 2
s_cselect_b32 s{SRD_Q}, s{SRD_Q}, s{SRD_K}
s_cselect_b32 s{SRD_Q+1}, s{SRD_Q+1}, s{SRD_K+1}""")
    for p in range(4):
        A(f"""s_xor_b32 s{sT0}, s{sW}, {p}
s_lshl_b32 s{sQP+p}, s{sT0}, 19""")
    items = [('x', j, k5) for j in (1, 3, 4, 5, 6, 7, 8) for k5 in range(2)] + \
            [('o', rp, jj, k5) for rp, jj in ((0, 1), (1, 0), (1, 1)) for k5 in range(2)] + [('v', j) for j in (0, 2, 1, 3, 8, 4, 5)] + \
            [('x', 0, 0), ('x', 0, 1), ('x', 2, 0), ('x', 2, 1), ('o', 0, 0, 0), ('o', 0, 0, 1), ('v', 6), ('v', 7), ('o8',)]
    assert len(items) == 36
    NU_ = 9
    def issue(k):
        it = items[k]; un = k % NU_
        for i in range(4):
            rot = None
            if it[0] == 'x':
                s_, sb = SRD_Q, sCX
                if it[1] == 8:
                    so, vo = (512 + 32 * it[2] + 16 * (i >> 1) + 2 * (i & 1)) * 8192, 70
                else:
                    so, vo, rot = (256 * (1 - (it[1] & 1)) + 8 * it[2] + 4 * (i >> 1) + 32 * (i & 1)) * 8192, 68, it[1] >> 1
            elif it[0] == 'o':
                s_, sb, vo = SRD_O, sCO, 71
                so = (64 * it[2] + 32 * it[3] + 8 * (i >> 1) + 2 * (i & 1)) * 1152 + it[1] * 512
            elif it[0] == 'v':
                s_, sb = SRD_V, sCV
                if it[1] == 8:
                    so, vo = (512 + 32 * (i >> 1) + 16 * (i & 1)) * 8192, 67
                else:
                    so, vo, rot = (256 * (1 - (it[1] & 1)) + 8 * (i >> 1) + 4 * (i & 1)) * 8192, 66, it[1] >> 1
            else:
                s_, sb, vo = SRD_O, sCO8, 69
                so = (32 * (i >> 1) + 8 * (i & 1)) * 1152
            A(f"s_add_u32 m0, s{sLds if un < 8 else sKXa}, {(un * 4096 if un < 8 else 0) + i * 1024}")
            A(f"s_add_u32 s{sT0}, s{sb}, {so}")
            if rot is not None:
                A(f"s_add_u32 s{sT0}, s{sT0}, s{sQP + rot}")
            A(f"buffer_load_dwordx4 v{vo}, s[{s_}:{s_+3}], s{sT0} offen lds")
    ts(A, 4, SRD_WS, 10)
    for k in range(NU_):
        issue(k)
    ts(A, 5, SRD_WS, 10)
    A(f"""s_mul_i32 s{sT0}, s{sXcc}, s{sXcc}
s_lshl_b32 s{sT0}, s{sT0}, 10
s_add_u32 s{sT0}, s{sT0}, s{sXcc}
s_lshl_b32 s{sT0}, s{sT0}, 8
s_add_u32 s{sXcc}, s{sT0}, 1
v_mov_b32 v12, 128
v_mov_b32 v13, s{sXcc}
s_waitcnt vmcnt(36)
s_barrier
s_cmp_lg_u32 s{sW}, 0
s_cbranch_scc1 {L('arr')}
s_mov_b64 exec, 1
global_atomic_add v12, v13, s[{sDBG}:{sDBG+1}]
s_mov_b64 exec, -1""")
    A.label(L('arr'))
    A(f"""s_mov_b32 s{sKMa}, 0x05040100
s_mov_b32 s{sTa}, 0x07060302""")
    for b, R in ((0, R0), (1, R1)):
        x = 24 + 4 * b
        A(f"""v_perm_b32 v{R}, v{x+1}, v{x}, s{sKMa}
v_perm_b32 v{R+1}, v{x+3}, v{x+2}, s{sKMa}
v_perm_b32 v{R+2}, v{x+1}, v{x}, s{sTa}
v_perm_b32 v{R+3}, v{x+3}, v{x+2}, s{sTa}""")
    A(f"""v_and_b32 v10, 2, v0
v_cmp_eq_u32 vcc, 0, v10
v_mov_b32 v11, 0xeeee
v_mov_b32 v12, 0x4444
v_cndmask_b32 v{vIdx}, v11, v12, vcc""")
    bits(A, 10, [(0, 4, 5), (4, 2, 3)], 11)
    A(f"""s_and_b32 s{sT0}, s{sW}, 1
s_lshl_b32 s{sT0}, s{sT0}, 11
s_add_u32 s{sT0}, s{sT0}, {L_QK}
v_add_u32 v10, s{sT0}, v10
s_cmp_lt_u32 s{sW}, 2
s_cselect_b32 s{sT0}, 4, 0
v_add_u32 v{vQKw}, s{sT0}, v10""")
    bits(A, 10, [(0, 1, 4), (2, 2, 6), (4, 1, 5), (5, 1, 8)], 11)
    A(f"""s_lshl_b32 s{sT0}, s{sW}, 9
s_add_u32 s{sT0}, s{sT0}, {L_O}
v_add_u32 v{vOw}, s{sT0}, v10""")
    bits(A, 10, [(3, 3, 12), (0, 3, 4)], 11)
    bits(A, 12, [(5, 1, 12), (0, 5, 2)], 11)
    A(f"""s_lshl_b32 s{sT0}, s{sH}, 7
v_add_u32 v{vPst}, s{sT0}, v10
v_add_u32 v{vPc}, s{sT0}, v12
s_lshl_b32 s{sT0}, s{sW}, 15
s_add_u32 s{sP0}, s{sT0}, {PART_OFF}
s_add_u32 s{sP1}, s{sP0}, {4 * 32768}
s_lshl_b32 s{sT0}, s{sW}, 13
s_add_u32 s{sP2}, s{sT0}, {PART_OFF + 8 * 32768}
v_add_u32 v{vW}, s{sLds}, v{vL16}
s_mov_b32 s{sEx}, 0xcccccccc
s_mov_b32 s{sEx+1}, 0xcccccccc
s_add_u32 s{sT0}, s{sH}, s{sW}
s_and_b32 s{sT0}, s{sT0}, {NREP - 1}
s_mul_i32 s{sRep}, s{sT0}, {MREP}
s_lshl_b32 s{sTouch}, s{sW}, 12
s_mov_b32 s{sOnes}, 0x3f803f80
s_mov_b32 s{sOnes+1}, 0x3f803f80
s_mov_b32 s{sBig}, {fbits(2.0**60):#x}""")
    A(f"""v_and_b32 v10, 4, v0
v_cmp_eq_u32 vcc, 0, v10
v_mov_b32 v11, 0x3f800000
v_mov_b32 v12, 0x3f80
v_cndmask_b32 v11, v11, v12, vcc
v_and_b32 v10, 3, v0""")
    for d in range(4):
        A(f"""v_cmp_eq_u32 vcc, {d}, v10
v_cndmask_b32 v{20+d}, 0, v11, vcc""")
    A("v_mov_b64 v[42:43], v[20:21]")
    A("v_mov_b64 v[44:45], v[22:23]")
    bits(A, 64, [(5, 1, 10), (4, 1, 8), (4, 1, 5), (2, 2, 6), (0, 2, 3)], 11)
    bits(A, 65, [(5, 1, 11), (4, 1, 9), (2, 2, 7), (3, 2, 5), (0, 2, 3)], 11)
    ts(A, 6, SRD_WS, 10)
    for k in range(36):
        issued = min(k + NU_, 36)
        it = items[k]; un = k % NU_
        A(f"s_waitcnt vmcnt({4 * (issued - (k + 1))})")
        sbase = sLds if un < 8 else sKXa
        ub = un * 4096 if un < 8 else 0
        wide = it[0] in 'xo' and it[0] != 'o8'
        wb = []
        for n in range(4):
            if wide:
                k5 = it[-1]; tt = n & 1
                ch = (('q', 'k')[n >> 1], it[1]) if it[0] == 'x' else ('o', (2 * it[1] + (n >> 1), it[2]))
                A(f"v_xor_b32 v46, {32 * n}, v65")
                o0, o1 = ub, ub + 1024
            else:
                k5 = n >> 1; tt = n & 1
                ch = ('v', it[1]) if it[0] == 'v' else ('o', 8)
                A(f"v_xor_b32 v46, {32 * tt}, v64")
                o0, o1 = ub + k5 * 2048, ub + k5 * 2048 + 512
            A(f"v_add_u32 v46, s{sbase}, v46")
            if (ch, tt) in _blk:
                f, b = _blk[(ch, tt)]; b += 4 * k5
            else:
                f, b = 'v', 10 + 4 * n
                wb.append((b, lds_off(ch, tt, k5)))
            A(f"ds_read_b64_tr_b16 {rng(f, b, 2)}, v46 offset:{o0}")
            A(f"ds_read_b64_tr_b16 {rng(f, b + 2, 2)}, v46 offset:{o1}")
        A("s_waitcnt lgkmcnt(0)")
        if k + NU_ < 36:
            issue(k + NU_)
        for b, off in wb:
            A(f"ds_write_b128 v{vW}, v[{b}:{b+3}] offset:{off}")
    A("s_barrier")
    A(f"ds_write_b128 v{vL16}, v[42:45] offset:{L_SEL}")
    ts(A, 1, SRD_WS, 10)
    A(f"""v_mov_b32 v10, 128
s_mov_b32 s{sCnt}, 0""")
    A.label(L('rdv_loop'))
    A(f"""global_load_dword v12, v10, s[{sDBG}:{sDBG+1}] sc1
s_add_u32 s{sCnt}, s{sCnt}, 1
v_readfirstlane_b32 s{sT0}, v12
s_cmp_gt_u32 s{sCnt}, {POLL_MAX}
s_cbranch_scc1 {L('rdv_done')}
s_and_b32 s{sT1}, s{sT0}, 0xff
s_cmp_ge_u32 s{sT1}, 32
s_cbranch_scc1 {L('rdv_done')}
s_sleep 4
s_branch {L('rdv_loop')}""")
    A.label(L('rdv_done'))
    A(f"""s_lshl_b32 s{sT1}, s{sXcc}, 5
s_cmp_eq_u32 s{sT0}, s{sT1}
s_cselect_b32 s{sFast}, 1, 0
s_mov_b32 s{sStep}, 0
s_lshl_b32 s{sSeg}, s{sH}, 20
s_mov_b32 s{sMp}, {MIMG_OFF}
s_mov_b32 s{sMw}, {MIMG_OFF + MIMG_SLOT}
s_mov_b32 s{sReady}, 64
s_lshl_b32 s{sKF}, s{sH}, 12
s_add_u32 s{sKF}, s{sKF}, {FLG_OFF}
s_lshl_b32 s{sW10}, s{sW}, 10
s_sub_u32 s{sW10}, s{sW10}, 2048
s_mov_b32 s{SRD_K}, s{SRD_WS}
s_mov_b32 s{SRD_K+1}, s{SRD_WS+1}
s_cmp_ge_u32 s{sW}, 2
s_cselect_b32 s{SRD_K+2}, {WS_BYTES}, 0
s_mov_b32 s{SRD_R}, s{SRD_WS}
s_mov_b32 s{SRD_R+1}, s{SRD_WS+1}
s_cmp_eq_u32 s{sRole}, 1
s_cselect_b32 s{SRD_R+2}, {WS_BYTES}, 0
s_mov_b32 s{SRD_R+3}, 0x20000
s_add_u32 m0, s{sW11}, {L_KX}""")
    if flags:
        A(f"s_mov_b32 s{sNeed}, 0")
        kv_wait(A, L('kv0'), 16)
    if dbg:
        A(f"s_memtime s[{sTm}:{sTm+1}]")
        A("s_waitcnt lgkmcnt(0)")
        A(f"s_mov_b32 s{sTm+5}, s{sTm}")
        for n in range(NST): A(f"s_mov_b32 s{80+n}, 0")
    ts(A, 2, SRD_WS, 12)
    A(f"s_cmp_eq_u32 s{sFast}, 0")
    A(f"s_cbranch_scc1 {L('S_pre')}")
    gen_loop(A, dbg, tag + '_F', '', L('end'), flags)
    gen_loop(A, dbg, tag + '_S', ' sc1', L('end'), flags)
    A.label(L('end'))
    ts(A, 3, SRD_WS, 10)
    if dbg:
        A(f"""s_memtime s[{sTm+2}:{sTm+3}]
s_waitcnt lgkmcnt(0)
s_sub_u32 s{sT0}, s{sTm+2}, s{sTm}
v_mov_b32 v10, s{sT0}
v_mov_b32 v11, s{sFast}
s_lshl_b32 s{sT1}, s{sH}, 8
s_lshl_b32 s{sT2}, s{sW}, 6
s_add_u32 s{sT1}, s{sT1}, s{sT2}
s_add_u32 s{sT1}, s{sT1}, {DBG_OFF + 0x200000}
v_mov_b32 v12, 0
s_sub_u32 s{sT0}, s{sTm}, s{sTm+6}
v_mov_b32 v13, s{sT0}
s_mov_b64 exec, 1
buffer_store_dwordx2 v[10:11], v12, {WS}, s{sT1} offen
buffer_store_dword v13, v12, {WS}, s{sT1} offen offset:8""")
        for n in range(NST):
            A(f"v_mov_b32 v13, s{80+n}")
            A(f"buffer_store_dword v13, v12, {WS}, s{sT1} offen offset:{16+4*n}")
    A("s_endpgm")


def gen_loop(A, dbg, tag, SC, endlab, flags):
    L = lambda x: f'{tag}_{x}'
    def stamp(n):
        if dbg == 5:
            A(f"""s_memrealtime s[{sTm+2}:{sTm+3}]
s_cmp_eq_u32 s{sStep}, {41 if n in (4, 5, 6, 7) else 40}
s_waitcnt lgkmcnt(0)
s_cselect_b32 s{80+n}, s{sTm+2}, s{80+n}""")
            return
        if dbg not in (2, 3): return
        A(f"""s_memtime s[{sTm+2}:{sTm+3}]
s_waitcnt lgkmcnt(0)
s_sub_u32 s{sTm+4}, s{sTm+2}, s{sTm+5}
s_add_u32 s{80+n}, s{80+n}, s{sTm+4}
s_mov_b32 s{sTm+5}, s{sTm+2}""")
    aQ, aK, aV = 10, 18, 26
    R0, R1, R2 = 34, 38, 58
    SB = 42
    def lds_half(ch, tt, k5, dst, manual=False):
        A(f"ds_read_b128 v[{dst+4*k5}:{dst+4*k5+3}], v{vW} offset:{lds_off(ch, tt, k5)}", manual)
    def lds_blk(ch, tt, dst, manual=False):
        lds_half(ch, tt, 0, dst, manual); lds_half(ch, tt, 1, dst, manual)
    def sched(mf, side):
        side = sorted(enumerate(side), key=lambda x: (x[1][1], x[0]))
        for g, m in enumerate(mf):
            m()
            n = 0
            for e in list(side):
                rel, dl, fn = e[1]
                if rel <= g and (n == 0 or dl <= g):
                    fn(); side.remove(e); n += 1
        assert not side, side
    def zero(b, n):
        for r in range(b, b + n, 2):
            A(f"v_mov_b64 v[{r}:{r+1}], 0")
    def smf(acc, a, b):
        A(f"v_smfmac_f32_16x16x64_bf16 v[{acc}:{acc+3}], v[{a}:{a+3}], {b}, v{vIdx}")
    cur_p = [None]
    def xr(p):
        A(f"v_xor_b32 v62, {p * 2048}, v63")
        cur_p[0] = p
    def rdA(slot, buf, manual=False):
        p = slot >> 1
        if p == 0:
            base = 63
        else:
            if cur_p[0] != p:
                xr(p)
            base = 62
        A(f"ds_read_b128 v[{buf}:{buf+3}], v{base} offset:{L_M + (slot & 1) * 1024}", manual)
    def ps(a, dst, part):
        if part == 0: A(f"v_add_f32 v{a}, v{a}, v{a+2}")
        elif part == 1: A(f"v_add_f32 v{a+1}, v{a+1}, v{a+3}")
        else: A(f"v_cvt_pk_bf16_f32 v{dst}, v{a}, v{a+1}")
    def psum(a, dst):
        for part in range(3): ps(a, dst, part)
    def tagit(r):
        A(f"v_bfi_b32 v{r}, 1, s{sTag}, v{r}")
    def rdX(u, x):
        A(f"ds_read_b64_tr_b16 v[{x}:{x+1}], v{vL8} offset:{L_QK + u*1024}")
        A(f"ds_read_b64_tr_b16 v[{x+2}:{x+3}], v{vL8} offset:{L_QK + u*1024 + 512}")
    def pre_a():
        lds_blk(('q', 0), 0, SB, True); lds_blk(('q', 0), 1, SB + 8, True)
        A(f"""s_lshr_b32 s{sKMa}, s{sSeg}, 1
s_add_u32 s{sKMa}, s{sKMa}, {MEM_OFF}
s_lshr_b32 s{sT1}, s{sW11}, 2
s_add_u32 s{sVMa}, s{sKMa}, s{sT1}
s_add_u32 s{sVMa}, s{sVMa}, 4096
s_add_u32 s{sKMa}, s{sKMa}, s{sW10}
s_add_u32 s{sKXa}, s{sSeg}, s{sW11}
s_add_u32 s{sVXa}, s{sKXa}, 8192
s_cmp_lt_u32 s{sStep}, 63
s_cselect_b32 s{sT0}, {0 if 'a' in EXP else 16384}, 0
s_add_u32 s{sSeg}, s{sSeg}, s{sT0}
s_add_u32 s{sTa}, s{sSeg}, s{sTouch}
s_add_u32 s{sNeed}, s{sStep}, 1
s_min_u32 s{sNeed}, s{sNeed}, 63
s_add_u32 s{sGb}, s{sMw}, s{sRep}
s_add_u32 s{sGa}, s{sGb}, s{sW11}
s_add_u32 s{sGb}, s{sGb}, 8192""")
    def pre_b():
        zero(10, 24)
        A(f"""v_add_u32 v63, s{sW11}, v{vL16}
v_xor_b32 v62, 2048, v63
s_and_b32 s{sTag}, s{sStep}, 1
s_sub_u32 s{sTagM}, 0, s{sTag}""")
    A.label(L('pre'))
    pre_a(); pre_b()
    A("s_waitcnt vmcnt(0) lgkmcnt(0)")
    A(f"s_branch {L('top')}")
    A.label(L('gather'))
    GS = [(R0, R2), (R1, VX)]
    def gpoll(k, srd_=SRD_WS):
        a, b = GS[k]
        A(f"""buffer_load_dwordx4 v[{a}:{a+3}], v{vL16}, s[{srd_}:{srd_+3}], s{sGa} offen sc1
buffer_load_dwordx4 v[{b}:{b+3}], v{vL16}, s[{srd_}:{srd_+3}], s{sGb} offen sc1""", manual=True)
    def gchk(k, n):
        a, b = GS[k]
        A(f"""s_waitcnt vmcnt({n})
v_max3_u32 v{vDummy}, v{a}, v{a+2}, v{b}
v_max_u32 v{vDummy}, v{vDummy}, v{b+2}
v_cmp_eq_u32 vcc, s{sPz}, v{vDummy}""")
        if dbg in (2, 3): A(f"s_add_u32 s91, s91, 1")
        A(f"s_cbranch_vccz {L('topb' if k else 'top')} ;exit")
    A.label(L('gather2'))
    stamp(5)
    if flags: kv_eval(A, vDummy)
    pre_b()
    A(f"""s_mov_b32 s{sCnt}, 0
s_mov_b32 s{sMp}, s{sMw}
s_add_u32 s{sMw}, s{sMw}, {MIMG_SLOT}
s_cmp_eq_u32 s{sMw}, {MIMG_OFF + 3 * MIMG_SLOT}
s_cselect_b32 s{sMw}, {MIMG_OFF}, s{sMw}
s_cmp_lg_u32 s{sRole}, 1
s_cbranch_scc1 {L('g_poll')} ;exit""")
    gchk(0, 2)
    A.label(L('g_poll'))
    for n in range(3):
        gpoll(0)
        gchk(0, 0)
    A(f"""s_add_u32 s{sCnt}, s{sCnt}, 1
s_cmp_lt_u32 s{sCnt}, {POLL_MAX}
s_cbranch_scc1 {L('g_poll')} ;nofence""")
    A.label(L('top'))
    stamp(6)
    groups = [('q', 0), ('v', 0), ('q', 8), ('k', 0), ('k', 8), ('v', 8), ('q', 2), ('v', 2), ('q', 4), ('k', 2), ('k', 4), ('v', 4),
              ('q', 6), ('k', 6), ('v', 6), ('q', 1), ('k', 1), ('q', 3), ('q', 5), ('q', 7), ('k', 3), ('k', 5), ('k', 7)]
    abuf = {0: R0, 8: R2, 2: R0, 4: R2, 6: R0, 1: R1, 3: R2, 5: R0, 7: R1}
    KB = [SB, SB + 8]
    def rdK(u, t=None):
        k = KB[u & 1]
        if t in (None, 0): A(f"ds_read_b128 v[{k}:{k+3}], v{vL16} offset:{L_KX + u*1024}")
        if t in (None, 1): A(f"ds_read_b128 v[{k+4}:{k+7}], v{vL16} offset:{L_KX + 4096 + u*1024}")
    def bar(n, st=False):
        A("s_waitcnt lgkmcnt(W)")
        A("s_barrier")
        if dbg == 5 and st: stamp(7)
    def chk(buf, lab, part):
        if part == 0:
            A(f"v_cmp_eq_u32 s[{sT2+1}:{sT2+2}], s{sPz}, v{buf}")
        elif part == 1:
            A(f"v_cmp_eq_u32 vcc, s{sPz}, v{buf+2}")
        else:
            A(f"s_or_b64 vcc, vcc, s[{sT2+1}:{sT2+2}]")
            A(f"s_cbranch_scc1 {L(lab)} ;exit")
            A.label(L(lab + 'r') + ' ;soft')
    def kvchk():
        if flags:
            A(f"""s_cmp_le_u32 s{sReady}, s{sNeed}
s_cbranch_scc1 {L('kvw')} ;exit""")
            A.label(L('kvr') + ' ;soft')
    def dump(which):
        A(f"""s_mul_i32 s{sT0}, s{sStep}, 16384
s_add_u32 s{sT0}, s{sT0}, {DBG_OFF}
s_cmp_eq_u32 s{sH}, 0
s_cselect_b32 s{sT0}, s{sT0}, {DBG_OFF + 0x100000}
s_add_u32 s{sT1}, s{sT0}, 8192""")
        if which == 0:
            A(f"""buffer_store_dwordx4 v[{R0}:{R0+3}], v63, {WS}, s{sT0} offen
buffer_store_dwordx4 v[{R2}:{R2+3}], v{vL16}, {WS}, s{sT1} offen""")
        else:
            A(f"buffer_store_dwordx4 v[{R1}:{R1+3}], v63, {WS}, s{sT0} offen offset:1024")
    def wq(t, r):
        A(f"ds_write_b32 v{vQKw}, v{r} offset:{t * 512}")
    mf = []
    for ch in groups:
        acc = {'q': aQ, 'k': aK, 'v': aV}[ch[0]]
        for tt in range(2):
            b = blk_regs(ch, tt) if (ch, tt) in _blk else rng('v', SB + 8 * tt, 8)
            mf.append(lambda acc=acc, tt=tt, ch=ch, b=b: smf(acc + 4 * tt, abuf[ch[1]], b))
    def stream(ch, rel):
        return [(rel, rel + 1, lambda: lds_half(ch, 0, 0, SB)), (rel, rel + 2, lambda: lds_half(ch, 0, 1, SB)),
                (rel + 1, rel + 2, lambda: lds_half(ch, 1, 0, SB + 8)), (rel + 1, rel + 3, lambda: lds_half(ch, 1, 1, SB + 8))]
    cur_p[0] = 1
    TG = int(os.environ.get('TG', '15'))
    G1G = int(os.environ.get('G1G', '4'))
    BA = int(os.environ.get('BA', '8'))
    def g1():
        A(f"""s_cmp_lg_u32 s{sStep}, 0
s_cselect_b64 exec, -1, 0""")
        A(f"buffer_load_dwordx4 v[{R1}:{R1+3}], v{vL16}, {WS}, s{sGa} offen offset:1024 sc1", manual=True)
        A("s_mov_b64 exec, -1")
    side = [(0, 0, lambda: lds_blk(('k', 0), 0, SB)), (1, 1, lambda: lds_blk(('k', 0), 1, SB + 8)),
        (2, 2, lambda: (A(f"ds_write_b128 v63, v[{R0}:{R0+3}] offset:{L_M}"), dump(0) if dbg == 1 else None)),
        (5, 5, lambda: A(f"buffer_load_dwordx4 v{vL16}, {WS}, s{sKXa} offen sc1 lds")),
        (BA, BA, lambda: (bar('w', True), rdA(2, R0))),
        (BA + 1, 10, lambda: xr(2)),
        (9, 9, lambda: A(f"buffer_load_dwordx4 v{vL16}, {WS}, s{sKXa} offen offset:1024 sc1 lds")),
        (10, 10, lambda: A(f"buffer_load_dwordx4 v[{VX}:{VX+3}], v{vL16}, {WS}, s{sVXa} offen sc1", manual=True)),
        (11, 11, lambda: rdA(4, R2)),
        (11, 11, lambda: A(f"buffer_load_dwordx4 v[{VX+4}:{VX+7}], v{vL16}, {WS}, s{sVXa} offen offset:1024 sc1", manual=True)),
        (G1G, G1G, g1),
        (16, 17, lambda: xr(3)),
        (19, 19, lambda: rdA(6, R0)),
        (20, 20, lambda: (A("s_waitcnt vmcnt(%d)" % (6 if flags else 5)), chk(R1, 'late1', 0))),
        (21, 21, lambda: chk(R1, 'late1', 1)),
        (22, 22, lambda: (chk(R1, 'late1', 2), A(f"ds_write_b128 v63, v[{R1}:{R1+3}] offset:{L_M + 1024}"), dump(1) if dbg == 1 else None)),
        (23, 23, lambda: xr(1)),
        (4, 6, lambda: A(f"v_lshrrev_b32 v{vDummy}, 5, v{vL16}")),
        (7, TG - 1, lambda: A(f"v_lshlrev_b32 v{vDummy}, 7, v{vDummy}")),
        (28, 28, lambda: (bar('w'), rdA(3, R2))),
        (29, 29, lambda: xr(2)),
        (30, 30, lambda: rdA(5, R0)),
        (31, 32, lambda: xr(3)),
        (33, 33, lambda: rdA(7, R1)),
        (TG, TG, lambda: A(f"buffer_load_dword v{vDummy}, v{vDummy}, {WS}, s{sTa} offen sc1", manual=True)),
        (40, 40, lambda: ps(aQ, aQ + 2, 0)), (41, 41, lambda: ps(aQ, aQ + 2, 1)), (42, 42, lambda: ps(aQ, aQ + 2, 2)),
        (43, 43, lambda: (ps(aQ + 4, aQ + 3, 0), wq(0, aQ + 2))), (44, 44, lambda: ps(aQ + 4, aQ + 3, 1)),
        (45, 45, lambda: ps(aQ + 4, aQ + 3, 2)),
    ] + stream(('q', 2), 6) + stream(('k', 2), 12) + stream(('v', 6), 18)
    NBB = 0
    side += [(34, 36, lambda: lds_half(('v', 7), 0, 0, SB)), (34, 37, lambda: lds_half(('v', 7), 0, 1, SB)),
             (34, 38, lambda: lds_half(('v', 7), 1, 0, SB + 8)), (34, 39, lambda: lds_half(('v', 7), 1, 1, SB + 8))]
    if flags:
        side.append((3, 3, kvchk))
        side.append((TG + 1, TG + 2, lambda: A(f"v_lshrrev_b32 v{vDummy}, 2, v{vL16}")))
        side.append((TG + 3, TG + 3, lambda: A(f"buffer_load_dword v{vDummy}, v{vDummy}, {WS}, s{sKF} offen sc1", manual=True)))
    sched(mf, side)
    def vs(slot, buf, tts=(0, 1)):
        for tt in tts:
            b = blk_regs(('v', slot), tt) if (('v', slot), tt) in _blk else rng('v', SB + 8 * tt, 8)
            smf(aV + 4 * tt, buf, b)
    vs(3, R2, (0,))
    wq(1, aQ + 3)
    psum(aK, aQ + 4)
    wq(2, aQ + 4)
    psum(aK + 4, aQ + 5)
    wq(3, aQ + 5)
    vs(3, R2, (1,))
    A(f"buffer_store_dwordx4 v[{aQ+2}:{aQ+5}], v{vL16}, s[{SRD_K}:{SRD_K+3}], s{sKMa} offen sc1")
    vs(7, R1); rdA(1, R1)
    vs(5, R0, (0,))
    A("s_waitcnt lgkmcnt(W) vmcnt(%d)" % (3 if flags else 2))
    A("s_barrier")
    stamp(0)
    S0, S1, SM = 10, 14, 18
    XB = [22, R2]
    VMr = 28
    def pubk(u):
        if 'k' in EXP: return
        x = XB[u & 1]
        A(f"""s_cmp_eq_u32 s{sW}, {u}
s_cselect_b64 exec, -1, 0
buffer_store_dwordx4 v[{x}:{x+3}], v{vL16}, {WS}, s{sKMa} offen offset:{u*1024} sc1
s_mov_b64 exec, -1""")
    def sc(u, ex=()):
        x, k = XB[u & 1], KB[u & 1]
        c = lambda r: '0' if u == 0 else f'v[{r}:{r+3}]'
        ops = [f"v_mfma_f32_16x16x32_bf16 v[{SM}:{SM+3}], v[{x}:{x+3}], v[{x}:{x+3}], {c(SM)}",
               f"v_mfma_f32_16x16x32_bf16 v[{S0}:{S0+3}], v[{k}:{k+3}], v[{x}:{x+3}], {c(S0)}",
               f"v_mfma_f32_16x16x32_bf16 v[{S1}:{S1+3}], v[{k+4}:{k+7}], v[{x}:{x+3}], {c(S1)}"]
        for n, o in enumerate(ops):
            A(o)
            if n < len(ex) and ex[n]: ex[n]()
    rdX(0, XB[0]); rdK(0); rdX(1, XB[1]); rdK(1)
    vs(5, R0, (1,))
    rdX(2, R0)
    vs(1, R1)
    rdX(3, R1)
    sc(0, (None, lambda: rdK(2, 0), lambda: rdK(2, 1)))
    XB[0] = R0
    A(f"v_mov_b64 v[22:23], s[{sOnes}:{sOnes+1}]")
    sc(1, (lambda: ps(aV, VMr, 0), lambda: (rdK(3, 0), ps(aV, VMr, 1)), lambda: rdK(3, 1)))
    XB[1] = R1
    A(f"v_mov_b64 v[24:25], s[{sOnes}:{sOnes+1}]")
    sc(2, (lambda: ps(aV + 4, VMr + 1, 0), lambda: ps(aV + 4, VMr + 1, 1), lambda: lds_blk(('o', (0, 0)), 0, 42)))
    sc(3, (lambda: ps(aV, VMr, 2), lambda: ps(aV + 4, VMr + 1, 2), lambda: lds_blk(('o', (0, 0)), 1, 50)))
    stamp(1)
    sv = [S0, S0+1, S0+2, S0+3, S1, S1+1, S1+2, S1+3, SM, SM+1]
    PX, VMr = 58, 28
    O0, O1, LSUM, ONE = 34, 38, 30, 22
    A(f"""v_mul_f32 v{SM}, s{sC}, v{SM}
v_mul_f32 v{SM+1}, s{sC}, v{SM+1}
buffer_store_dwordx2 v[{VMr}:{VMr+1}], v{vL8}, {WS}, s{sVMa} offen sc1
s_cmp_eq_u32 s{sStep}, {NSTEPS - 1}
v_exp_f32 v62, v{SM}
v_exp_f32 v63, v{SM+1}
s_cbranch_scc1 {endlab} ;exit
v_exp_f32 v26, v{sv[0]}
v_exp_f32 v27, v{sv[1]}
v_cvt_pk_bf16_f32 v20, v62, v63
v_mov_b32 v21, 0
v_exp_f32 v32, v{sv[2]}
v_exp_f32 v33, v{sv[3]}
v_mfma_f32_16x16x16_bf16 v[{O0}:{O0+3}], v[{VMr}:{VMr+1}], v[20:21], 0
v_cvt_pk_bf16_f32 v63, v62, v63
v_mov_b32 v62, 0
v_cvt_pk_bf16_f32 v{PX}, v26, v27
v_exp_f32 v26, v{sv[4]}
v_mfma_f32_16x16x16_bf16 v[{O1}:{O1+3}], v[{VMr}:{VMr+1}], v[62:63], 0
v_exp_f32 v27, v{sv[5]}
v_cvt_pk_bf16_f32 v{PX+1}, v32, v33
v_exp_f32 v62, v{sv[6]}
v_mfma_f32_16x16x16_bf16 v[{LSUM}:{LSUM+3}], v[{ONE}:{ONE+1}], v[20:21], 0
v_exp_f32 v63, v{sv[7]}
v_cvt_pk_bf16_f32 v{PX+2}, v26, v27
v_cvt_pk_bf16_f32 v{PX+3}, v62, v63
v_mfma_f32_16x16x32_bf16 v[{LSUM}:{LSUM+3}], v[{ONE}:{ONE+3}], v[{PX}:{PX+3}], v[{LSUM}:{LSUM+3}]
v_mfma_f32_16x16x32_bf16 v[{O0}:{O0+3}], v[{VX}:{VX+3}], v[{PX}:{PX+3}], v[{O0}:{O0+3}]
v_mfma_f32_16x16x32_bf16 v[{O1}:{O1+3}], v[{VX+4}:{VX+7}], v[{PX}:{PX+3}], v[{O1}:{O1+3}]
v_rcp_f32 v31, v30""")
    def norm():
        A(f"s_mov_b64 exec, s[{sEx}:{sEx+1}]")
        for t, o in enumerate((O0, O1)):
            A(f"v_pk_mul_f32 v[{o}:{o+1}], v[{o}:{o+1}], v[30:31] op_sel:[0,1] op_sel_hi:[1,1]")
            A(f"v_pk_mul_f32 v[{o+2}:{o+3}], v[{o+2}:{o+3}], v[30:31] op_sel:[0,1] op_sel_hi:[1,1]")
            A(f"v_cvt_pk_bf16_f32 v{PX + 2*t}, v{o}, v{o+1}")
            A(f"v_cvt_pk_bf16_f32 v{PX + 2*t + 1}, v{o+2}, v{o+3}")
            A(f"ds_write_b64 v{vOw}, v[{PX+2*t}:{PX+2*t+1}] offset:{8*t}")
    norm()
    A(f"""v_max_f32 v32, v30, v31
v_cmp_nlt_f32 vcc, v32, s{sBig}
s_mov_b64 exec, -1
s_cbranch_vccnz {L('slow')} ;exit""")
    A.label(L('slowret') + ' ;soft')
    lds_blk(('o', 8), 0, 34)
    zero(18, 8); zero(VX, 8)
    A("s_waitcnt lgkmcnt(W)")
    A("s_barrier")
    stamp(2)
    OA = [10, 14]
    A(f"ds_read_b128 v[{OA[0]}:{OA[0]+3}], v{vL16} offset:{L_O}")
    A(f"ds_read_b128 v[{OA[1]}:{OA[1]+3}], v{vL16} offset:{L_O + 1024}")
    zero(26, 8)
    ACT = {(2, 0): 18, (2, 1): 22, (3, 0): VX, (3, 1): VX + 4, (0, 0): 30, (0, 1): 18, (1, 0): 22, (1, 1): 34}
    RES = 58
    mf = []
    for r in (2, 3, 0, 1):
        if r == 0:
            mf.append(lambda: smf(26, OA[0], 'v[34:41]'))
            mf.append(lambda: smf(26, OA[1], blk_regs(('o', 8), 1)))
        for jj in ((0, 1) if r != 1 else (1, 0)):
            for tt in range(2):
                ch = ('o', (r, jj))
                b = blk_regs(ch, tt) if (ch, tt) in _blk else rng('v', SB + 8 * tt, 8)
                mf.append(lambda r=r, jj=jj, tt=tt, b=b: smf(ACT[(r, tt)], OA[jj], b))
    def P(a, dst, g0):
        return [(g0, g0, lambda: ps(a, dst, 0)), (g0, g0 + 1, lambda: ps(a, dst, 1)), (g0 + 1, g0 + 1, lambda: ps(a, dst, 2))]
    side = P(18, RES, 4) + [(6, 6, lambda: tagit(RES))] + P(22, RES + 1, 6) + P(VX, RES + 2, 8) + P(VX + 4, RES + 3, 9)
    side += [(8, 9, lambda: zero(18, 2)), (8, 9, lambda: zero(20, 2))]
    side += [(10, 10, lambda: A(f"buffer_store_dwordx4 v[{RES}:{RES+3}], v{vPst}, {WS}, s{sP1} offen{SC}"))]
    side += [(10, 11, lambda: lds_half(('o', (1, 0)), 0, 0, SB)), (10, 12, lambda: lds_half(('o', (1, 0)), 0, 1, SB)),
             (11, 12, lambda: lds_half(('o', (1, 0)), 1, 0, SB + 8)), (11, 13, lambda: lds_half(('o', (1, 0)), 1, 1, SB + 8))]
    side += P(26, 62, 11) + [(12, 12, lambda: tagit(62)), (12, 12, lambda: A(f"buffer_store_dword v62, v{vPc}, {WS}, s{sP2} offen{SC}"))]
    side += [(8, 11, lambda: zero(22, 2)), (8, 12, lambda: zero(24, 2)), (13, 13, lambda: zero(34, 2)), (13, 13, lambda: zero(36, 2))]
    side += P(30, RES, 15) + [(16, 16, lambda: tagit(RES))] + P(18, RES + 1, 16)
    side += [(15, 17, lambda: A(f"ds_read_b128 v[{VX}:{VX+3}], v{vL16} offset:{L_SEL}", manual=True))]
    sched(mf, side)
    psum(22, RES + 2)
    psum(34, RES + 3)
    A(f"buffer_store_dwordx4 v[{RES}:{RES+3}], v{vPst}, {WS}, s{sP0} offen{SC}")
    D = VX + 4
    def rpoll(srd_):
        for i in range(4):
            A(f"buffer_load_dwordx4 v[{10+4*i}:{13+4*i}], v{vL16}, s[{srd_}:{srd_+3}], s{sRa} offen offset:{i*1024} sc1", manual=True)
    stamp(3)
    A(f"s_add_u32 s{sStep}, s{sStep}, 1")
    ts(A, 8, SRD_WS, 62, sStep)
    pre_a()
    A(f"""s_mov_b32 s{sCnt}, 0
s_cmp_eq_u32 s{sRole}, 0
s_waitcnt lgkmcnt(0) vmcnt({os.environ.get('WE', '3')})
s_cbranch_scc1 {L('r_poll')} ;exit
s_cmp_eq_u32 s{sRole}, 2
s_waitcnt vmcnt({os.environ.get('W0', '0')})
s_cbranch_scc1 {L('gather')} ;exit""")
    A.label(L('r_poll'))
    for n in range(3):
        rpoll(SRD_WS)
        if n == 0: A.label(L('r_chk'))
        for i in range(4):
            A(f"s_waitcnt vmcnt({3 - i})")
            A(f"v_mfma_f32_16x16x32_bf16 v[{D}:{D+3}], v[{VX}:{VX+3}], v[{10+4*i}:{13+4*i}], {'0' if i == 0 else rng('v', D, 4)}")
            if i == 1:
                A(f"v_bitop3_b32 v62, v10, v14, s{sTagM} bitop3:0x7e")
        A(f"""buffer_load_dwordx4 v[{R0}:{R0+3}], v{vL16}, s[{SRD_R}:{SRD_R+3}], s{sGa} offen sc1
buffer_load_dwordx4 v[{R2}:{R2+3}], v{vL16}, s[{SRD_R}:{SRD_R+3}], s{sGb} offen sc1""", manual=True)
        A(f"""v_bitop3_b32 v63, v18, v22, s{sTagM} bitop3:0x7e
v_bitop3_b32 v62, v62, v63, 1 bitop3:0xa8
v_cmp_ne_u32 vcc, 0, v62""")
        for r in range(D, D + 4):
            A(f"v_add_f32_dpp v{r}, v{r}, v{r} row_ror:8 row_mask:0xf bank_mask:0xf")
        A(f"""v_cvt_pk_bf16_f32 v{D}, v{D}, v{D+1}
v_cvt_pk_bf16_f32 v{D+1}, v{D+2}, v{D+3}""")
        if dbg == 2: A(f"s_add_u32 s90, s90, 1")
        A(f"s_cbranch_vccz {L('r_go')} ;exit")
    A(f"""s_add_u32 s{sCnt}, s{sCnt}, 1
s_cmp_lt_u32 s{sCnt}, {POLL_MAX}
s_cbranch_scc1 {L('r_poll')} ;nofence""")
    A.label(L('r_go'))
    A(f"buffer_store_dwordx2 v[{D}:{D+1}], v{vMst}, {WS}, s{sMw} offen{SC}")
    stamp(4)
    A(f"""v_mov_b64 v[62:63], s[{sPz}:{sPz+1}]
buffer_store_dwordx2 v[62:63], v{vMst}, {WS}, s{sMp} offen{SC}
s_cmp_eq_u32 s{sRole}, 1
s_cbranch_scc1 {L('gather2')} ;exit
s_branch {L('gather')} ;exit""")
    for lab, buf, so, off in (('late1', R1, sGa, 1024),):
        A.label(L(lab))
        A(f"s_mov_b32 s{sCnt}, 0")
        A.label(L(lab + 'l'))
        if dbg == 2: A(f"s_add_u32 s89, s89, 1")
        A(f"""buffer_load_dwordx4 v[{buf}:{buf+3}], v{vL16}, {WS}, s{so} offen offset:{off} sc1
s_add_u32 s{sCnt}, s{sCnt}, 1
v_cmp_eq_u32 s[{sT2+1}:{sT2+2}], s{sPz}, v{buf}
v_cmp_eq_u32 vcc, s{sPz}, v{buf+2}
s_or_b64 vcc, vcc, s[{sT2+1}:{sT2+2}]
s_cmp_gt_u32 s{sCnt}, {POLL_MAX}
s_cbranch_scc1 {L(lab + 'r')} ;exit
s_cbranch_vccnz {L(lab + 'l')} ;nofence
s_branch {L(lab + 'r')} ;exit""")
    if flags:
        A.label(L('kvw'))
        A("s_nop 3")
        kv_wait(A, L('kvl'), VX)
        A(f"s_branch {L('kvr')}")
    A.label(L('slow'))
    A("s_nop 15")
    A(f"""v_max3_f32 v30, v{sv[0]}, v{sv[1]}, v{sv[2]}
v_max3_f32 v31, v{sv[3]}, v{sv[4]}, v{sv[5]}
v_max3_f32 v30, v30, v{sv[6]}, v{sv[7]}
v_max3_f32 v31, v31, v{sv[8]}, v{sv[9]}
v_max_f32 v30, v30, v31
v_mov_b32 v31, v30
v_permlane32_swap_b32 v30, v31
v_max_f32 v30, v30, v31
v_mov_b32 v31, v30
v_permlane16_swap_b32 v30, v31
v_max_f32 v30, v30, v31""")
    for r in sv:
        A(f"v_sub_f32 v{r}, v{r}, v30")
    for r in sv:
        A(f"v_exp_f32 v{r}, v{r}")
    for n in range(4):
        A(f"v_cvt_pk_bf16_f32 v{PX+n}, v{sv[2*n]}, v{sv[2*n+1]}")
    A(f"""v_cvt_pk_bf16_f32 v20, v{SM}, v{SM+1}
v_mov_b32 v21, 0
v_mov_b32 v18, 0
v_mov_b32 v19, v20
v_mfma_f32_16x16x32_bf16 v[{O1}:{O1+3}], v[{VX+4}:{VX+7}], v[{PX}:{PX+3}], 0
v_mfma_f32_16x16x32_bf16 v[{O0}:{O0+3}], v[{VX}:{VX+3}], v[{PX}:{PX+3}], 0
v_mfma_f32_16x16x32_bf16 v[{LSUM}:{LSUM+3}], v[{ONE}:{ONE+3}], v[{PX}:{PX+3}], 0
v_mfma_f32_16x16x16_bf16 v[{O1}:{O1+3}], v[{VMr}:{VMr+1}], v[18:19], v[{O1}:{O1+3}]
v_mfma_f32_16x16x16_bf16 v[{O0}:{O0+3}], v[{VMr}:{VMr+1}], v[20:21], v[{O0}:{O0+3}]
v_mfma_f32_16x16x16_bf16 v[{LSUM}:{LSUM+3}], v[{ONE}:{ONE+1}], v[20:21], v[{LSUM}:{LSUM+3}]
v_rcp_f32 v31, v30""")
    norm()
    A(f"""s_mov_b64 exec, -1
s_waitcnt lgkmcnt(0)
s_branch {L('slowret')}""")
```

```python
from asmlib import Asm
from layout import *
from gemm import *
from chain import fbits, srd
import math
from prof import ts, PROF
POLL_MAX = 400000
CA = (18 ** -0.5) * math.log2(math.e)

sA, sW = 3, 4
SXA, SWQ, SWO, SWOB, SWS, SOUT = 8, 12, 16, 20, 24, 76
sDBG = 28
sT0, sT1, sT2, sLds, sCol, sSeg, sPair, sBuf, sXw, sLw, sSc, sOut, sCnt, sNext, sBufN, sFirst = range(32, 48)
WS = f"s[{SWS}:{SWS+3}]"
OUT = f"s[{SOUT}:{SOUT+3}]"
vL16, vTr, vTr1, vWo, vXo, vX, vTr0 = 1, 2, 3, 4, 5, 6, 7
XB = [8, 12, 16, 20]
ACC = 24
DEPTH = 12

def a_setup(A, pretouch=False):
    A(f"""s_load_dwordx4 s[60:63], s[0:1], 0
s_load_dwordx2 s[64:65], s[0:1], 16
s_load_dwordx2 s[66:67], s[0:1], 64
s_load_dwordx2 s[68:69], s[0:1], 80
s_load_dwordx4 s[72:75], s[0:1], 88
v_lshrrev_b32 v10, 6, v0
v_and_b32 v0, 63, v0
v_readfirstlane_b32 s{sW}, v10
s_waitcnt lgkmcnt(0)""")
    srd(A, SXA, 60, 2048 * 1152)
    srd(A, SWQ, 62, 576 * 3456)
    srd(A, SWO, 64, 576 * 1152)
    srd(A, SWOB, 66, 4096 * 1152)
    srd(A, SWS, 74, WS_BYTES)
    srd(A, SOUT, 68, 2048 * 2304)
    A(f"""s_mov_b32 s{sDBG}, s72
s_mov_b32 s{sDBG+1}, s73""")
    ts(A, 0, SWS, 10)
    emit_lane_consts(A, vL16, vTr0, 10, 11)
    if pretouch:
        A(f"""s_load_dwordx4 s[80:83], s[0:1], 40
s_load_dwordx2 s[84:85], s[0:1], 56
s_lshl_b32 s{sT0}, s{sA}, 2
s_add_u32 s{sT0}, s{sT0}, s{sW}
s_mul_i32 s{sT0}, s{sT0}, 9216
v_add_u32 v10, s{sT0}, v{vL16}
v_add_u32 v11, 4096, v10
v_add_u32 v12, 8192, v10
s_waitcnt lgkmcnt(0)""")
        n = 0
        for base in (80, 82, 84, 66):
            for k in range(9):
                A(f"global_load_dwordx4 v[{100+4*n}:{103+4*n}], v{10 + k // 4}, s[{base}:{base+1}] offset:{(k % 4) * 1024}", manual=True)
                n += 1
    emit_xdma_off(A, vXo, 1152, 10)
    A(f"""s_lshr_b32 s{sT0}, s{sW}, 1
s_mul_i32 s{sXw}, s{sT0}, {16 * 1152}
s_and_b32 s{sT0}, s{sW}, 1
s_mul_i32 s{sT0}, s{sT0}, 576
s_add_u32 s{sXw}, s{sXw}, s{sT0}
s_mul_i32 s{sLw}, s{sW}, 9216""")

def divmod_const(A, sq, sr, sx, d, st):
    m = (1 << 16) // d + 1
    A(f"""s_mul_i32 s{sq}, s{sx}, {m}
s_lshr_b32 s{sq}, s{sq}, 16
s_mul_i32 s{st}, s{sq}, {d}
s_sub_u32 s{sr}, s{sx}, s{st}""")

def wait_flags(A, lab, soff, nlanes=64, slp=8):
    A(f"""s_cmp_lg_u32 s{sW}, 0
s_cbranch_scc1 {lab}_d
v_lshrrev_b32 v10, 1, v{vL16}
v_min_u32 v10, {8 * (nlanes - 1)}, v10
s_mov_b32 s{sCnt}, 0""")
    A.label(lab)
    A(f"""buffer_load_dwordx2 v[20:21], v10, {WS}, s{soff} offen sc1
s_add_u32 s{sCnt}, s{sCnt}, 1
v_and_b32 v20, v20, v21
v_cmp_ne_u32 vcc, 1, v20
s_cmp_gt_u32 s{sCnt}, {POLL_MAX}
s_cbranch_scc1 {lab}_d
s_cbranch_vccz {lab}_d
s_sleep {slp}
s_branch {lab}""")
    A.label(lab + '_d')
    A("s_barrier")

def signal_wg(A, lab, base):
    A(f"""s_waitcnt vmcnt(0)
s_barrier
s_cmp_lg_u32 s{sW}, 0
s_cbranch_scc1 {lab}
s_lshl_b32 s{sT0}, s{sA}, 2
s_add_u32 s{sT0}, s{sT0}, {base}
v_mov_b32 v11, 1
s_mov_b64 exec, 1
buffer_store_dword v11, v{vL16}, {WS}, s{sT0} offen sc1
s_mov_b64 exec, -1""")
    A.label(lab)

def gemm_phase(A, tag, SX, xbase, xmods, SWt, ldw, stride, orient, epi, pre_x=None):
    L = lambda x: f'{tag}_{x}'
    d1 = emit_wdma_off(A, vWo, ldw, 10, 11)
    A(f"""s_mul_i32 s{sLds}, s{sW}, {DEPTH * 2048}
v_add_u32 v{vTr}, s{sLds}, v{vTr0}
v_xor_b32 v{vTr1}, 32, v{vTr}
s_lshl_b32 s{sCol}, s{sPair}, 6""")
    items = [(SWt, vWo, sCol, u * 32 * ldw, d1 * ldw, u, 18 + u) for u in range(18)]
    def xdma(sseg, sbuf):
        A(f"""s_min_u32 s{sT1}, s{sseg}, 63
s_mul_i32 s{sT1}, s{sT1}, {32 * 1152}
s_add_u32 s{sT1}, s{sT1}, s{sXw}
s_add_u32 s{sT1}, s{sT1}, {xbase}
s_add_u32 s{sT2}, s{sbuf}, s{sLw}""")
        emit_xdma(A, SX, vXo, sT1, None, sT2, sT0, None, 1152, xmods)
    A(f"""s_mov_b32 s{sSeg}, s{sFirst}
s_mov_b32 s{sBuf}, {3 * 36864}
s_add_u32 s{sNext}, s{sFirst}, {stride}
s_mov_b32 s{sBufN}, 0""")
    if pre_x is None:
        xdma(sSeg, sBuf)
    emit_wload(A, items, vTr, vTr1, sLds, sT0, DEPTH)
    if pre_x is not None:
        pre_x()
        xdma(sSeg, sBuf)
    A("s_barrier")
    xdma(sNext, sBufN)
    A("s_waitcnt vmcnt(9)")
    A.label(L('loop'))
    A("s_barrier")
    A(f"""s_add_u32 s{sNext}, s{sNext}, {stride}
s_add_u32 s{sBufN}, s{sBufN}, 36864
s_cmp_eq_u32 s{sBufN}, {4 * 36864}
s_cselect_b32 s{sBufN}, 0, s{sBufN}""")
    xdma(sNext, sBufN)
    A(f"v_add_u32 v{vX}, s{sBuf}, v{vL16}")
    emit_group_mma(A, [(0, orient), (18, orient)], vX, XB, ACC)
    A("s_waitcnt vmcnt(9)")
    epi()
    A(f"""s_add_u32 s{sSeg}, s{sSeg}, {stride}
s_add_u32 s{sBuf}, s{sBuf}, 36864
s_cmp_eq_u32 s{sBuf}, {4 * 36864}
s_cselect_b32 s{sBuf}, 0, s{sBuf}
s_cmp_lt_u32 s{sSeg}, 64
s_cbranch_scc1 {L('loop')}""")
    A("s_waitcnt vmcnt(0)")

def gen_a1(A, flags, tag='A1'):
    L = lambda x: f'{tag}_{x}'
    A(f"s_cmp_ge_u32 s{sA}, 126")
    A(f"s_cbranch_scc1 {L('skip')}")
    divmod_const(A, sT1, sFirst, sA, 9, sT0)
    A(f"""s_lshl_b32 s{sPair}, s{sT1}, 2
s_add_u32 s{sPair}, s{sPair}, s{sW}
s_min_u32 s{sPair}, s{sPair}, 53
s_cmp_lt_u32 s{sPair}, 18
s_cselect_b32 s{sSc}, {fbits(CA):#x}, 1.0
s_cmp_ge_u32 s{sT1}, 9
s_cbranch_scc1 {L('v')}""")
    A(f"""v_and_b32 v10, 15, v0
v_mul_u32_u24 v10, 2304, v10
v_lshrrev_b32 v11, 4, v0
v_lshl_add_u32 v56, v11, 3, v10""")
    def epi_qk():
        A(f"""s_mul_i32 s{sOut}, s{sSeg}, {32 * 2304}
s_add_u32 s{sOut}, s{sOut}, s{sCol}
s_add_u32 s{sOut}, s{sOut}, {QKA_OFF}
s_add_u32 s{sT0}, s{sOut}, {16 * 2304}""")
        for t in range(2):
            for tt in range(2):
                a = ACC + (2 * t + tt) * 4; d = 58 + 2 * (2 * t + tt)
                for r in range(4):
                    A(f"v_mul_f32 v{a+r}, s{sSc}, v{a+r}")
                A(f"v_cvt_pk_bf16_f32 v{d}, v{a}, v{a+1}")
                A(f"v_cvt_pk_bf16_f32 v{d+1}, v{a+2}, v{a+3}")
                A(f"buffer_store_dwordx2 v[{d}:{d+1}], v56, {WS}, s{sT0 if tt else sOut} offen offset:{32*t} sc1")
    gemm_phase(A, tag + 'q', SXA, 0, '', SWQ, 3456, 9, 'F', epi_qk)
    A(f"s_branch {L('done')}")
    A.label(L('v'))
    A(f"""v_and_b32 v10, 15, v0
v_lshlrev_b32 v10, 12, v10
v_bfe_u32 v11, v0, 4, 1
v_lshl_add_u32 v10, v11, 4, v10
v_lshrrev_b32 v11, 5, v0
v_lshl_add_u32 v56, v11, 3, v10""")
    def epi_v():
        A(f"""s_sub_u32 s{sOut}, s{sPair}, 36
s_lshl_b32 s{sOut}, s{sOut}, 17
s_lshl_b32 s{sT0}, s{sSeg}, 6
s_add_u32 s{sOut}, s{sOut}, s{sT0}
s_add_u32 s{sOut}, s{sOut}, {VTA_OFF}
s_add_u32 s{sT0}, s{sOut}, 65536""")
        for t in range(2):
            for tt in range(2):
                a = ACC + (2 * t + tt) * 4; d = 58 + 2 * (2 * t + tt)
                A(f"v_cvt_pk_bf16_f32 v{d}, v{a}, v{a+1}")
                A(f"v_cvt_pk_bf16_f32 v{d+1}, v{a+2}, v{a+3}")
                A(f"buffer_store_dwordx2 v[{d}:{d+1}], v56, {WS}, s{sT0 if t else sOut} offen offset:{32*tt} sc1")
    gemm_phase(A, tag + 'v', SXA, 0, '', SWQ, 3456, 9, 'T', epi_v)
    A.label(L('done'))
    if flags:
        emit_init_wait(A, L('iw'), sDBG, sW, sT0, sCnt, 10, POLL_MAX)
        signal_wg(A, L('sg'), FLG_OFF + 2048)
    A.label(L('skip'))
    A("s_barrier")

def gen_a3(A, flags, tag='A3'):
    L = lambda x: f'{tag}_{x}'
    A(f"s_cmp_ge_u32 s{sA}, 125")
    A(f"s_cbranch_scc1 {L('skip')}")
    divmod_const(A, sT1, sFirst, sA, 25, sT0)
    A(f"""s_lshl_b32 s{sPair}, s{sT1}, 2
s_add_u32 s{sPair}, s{sPair}, s{sW}
s_min_u32 s{sPair}, s{sPair}, 17
v_and_b32 v10, 15, v0
v_mul_u32_u24 v10, 2304, v10
v_lshrrev_b32 v11, 4, v0
v_lshl_add_u32 v56, v11, 3, v10""")
    def epi():
        A(f"""s_mul_i32 s{sOut}, s{sSeg}, {32 * 2304}
s_add_u32 s{sOut}, s{sOut}, s{sCol}
s_add_u32 s{sT0}, s{sOut}, {16 * 2304}""")
        for t in range(2):
            for tt in range(2):
                a = ACC + (2 * t + tt) * 4; d = 58 + 2 * (2 * t + tt)
                A(f"v_cvt_pk_bf16_f32 v{d}, v{a}, v{a+1}")
                A(f"v_cvt_pk_bf16_f32 v{d+1}, v{a+2}, v{a+3}")
                A(f"buffer_store_dwordx2 v[{d}:{d+1}], v56, {OUT}, s{sT0 if tt else sOut} offen offset:{32*t}")
    def pre():
        if flags:
            A(f"s_mov_b32 s{sT1}, {FLG_OFF + 4096 + 2048}")
            wait_flags(A, L('w'), sT1)
    gemm_phase(A, tag, SWS, OA_OFF, ' sc1', SWO, 1152, 25, 'F', epi, pre_x=pre)
    A.label(L('skip'))
    A("s_barrier")

def gen_a4(A, flags, tag='A4'):
    L = lambda x: f'{tag}_{x}'
    ts(A, 5, SWS, 10)
    A(f"s_cmp_ge_u32 s{sA}, 120")
    A(f"s_cbranch_scc1 {L('skip')}")
    divmod_const(A, sSeg, sPair, sA, 12, sT0)
    d1 = emit_wdma_off(A, vWo, 1152, 10, 11, 'perm')
    D4 = 16
    A(f"""s_mul_i32 s{sLds}, s{sW}, {D4 * 2048}
v_add_u32 v{vTr}, s{sLds}, v{vTr0}
v_xor_b32 v{vTr1}, 32, v{vTr}
s_mul_i32 s{sCol}, s{sPair}, 96
s_mul_i32 s{sT0}, s{sW}, {1024 * 1152}
s_add_u32 s{sT2}, s{sCol}, s{sT0}""")
    items = []
    for ks in range(32):
        items.append((SWOB, vWo, sT2, ks * 32 * 1152, d1 * 1152, ks, 32 + ks))
        items.append((SWOB, vWo, sT2, ks * 32 * 1152 + 64, d1 * 1152, 64 + ks, 96))
    emit_wload(A, items, vTr, vTr1, sLds, sT0, D4)
    A("s_barrier")
    ts(A, 6, SWS, 10)
    NBUF = 24
    bufs = [8 + 4 * i for i in range(13)] + [208 + 4 * i for i in range(11)]
    AC = 60
    A(f"""s_mul_i32 s{sT0}, s{sW}, 3072
v_add_u32 v72, s{sT0}, v{vL16}
s_lshl_b32 s{sT0}, s{sW}, 10
v_add_u32 v73, s{sT0}, v{vL16}
v_and_b32 v10, 15, v0
v_mul_u32_u24 v10, 2304, v10
v_lshrrev_b32 v11, 4, v0
v_lshl_add_u32 v74, v11, 3, v10""")
    A.label(L('loop'))
    if flags:
        A(f"""s_lshr_b32 s{sT1}, s{sSeg}, 2
s_lshl_b32 s{sT1}, s{sT1}, 12
s_and_b32 s{sT2}, s{sSeg}, 3
s_lshl_b32 s{sT2}, s{sT2}, 8
s_add_u32 s{sT1}, s{sT1}, s{sT2}
s_add_u32 s{sT1}, s{sT1}, {FLG_OFF + 1024}""")
        wait_flags(A, L('w'), sT1, 32, 2)
    A(f"""s_lshl_b32 s{sT0}, s{sSeg}, 17
s_lshl_b32 s{sT1}, s{sW}, 15
s_add_u32 s{sT0}, s{sT0}, s{sT1}
s_add_u32 s{sT0}, s{sT0}, {OB_OFF}""")
    def ld(ks):
        if ks and ks % 4 == 0:
            A(f"s_add_u32 s{sT0}, s{sT0}, 4096")
        b = bufs[ks % NBUF]
        A(f"buffer_load_dwordx4 v[{b}:{b+3}], v{vL16}, {WS}, s{sT0} offen offset:{(ks % 4) * 1024} sc1")
    for n in range(NBUF):
        ld(n)
    for ks in range(32):
        b = bufs[ks % NBUF]
        for t in range(3):
            f, wb = wreg(t * 32 + ks)
            a = AC + t * 4
            A(f"v_mfma_f32_16x16x32_bf16 v[{a}:{a+3}], {rng(f, wb, 4)}, v[{b}:{b+3}], {'0' if ks == 0 else rng('v', a, 4)}")
        if ks + NBUF < 32:
            ld(ks + NBUF)
    for i in range(3):
        A(f"ds_write_b128 v72, v[{AC+4*i}:{AC+4*i+3}] offset:{i*1024}")
    A("s_waitcnt lgkmcnt(0)")
    A("s_barrier")
    A(f"s_cmp_eq_u32 s{sW}, 3")
    A(f"s_cbranch_scc1 {L('nored')}")
    b = 8
    for p in range(4):
        A(f"ds_read_b128 v[{b+4*p}:{b+4*p+3}], v73 offset:{p * 3072}")
    A(f"""s_mul_i32 s{sOut}, s{sSeg}, {16 * 2304}
s_add_u32 s{sOut}, s{sOut}, s{sCol}
s_lshl_b32 s{sT0}, s{sW}, 5
s_add_u32 s{sOut}, s{sOut}, s{sT0}
s_add_u32 s{sOut}, s{sOut}, 1152""")
    for h in range(2):
        A(f"v_pk_add_f32 v[{b+2*h}:{b+2*h+1}], v[{b+2*h}:{b+2*h+1}], v[{b+4+2*h}:{b+5+2*h}]")
        A(f"v_pk_add_f32 v[{b+8+2*h}:{b+9+2*h}], v[{b+8+2*h}:{b+9+2*h}], v[{b+12+2*h}:{b+13+2*h}]")
        A(f"v_pk_add_f32 v[{b+2*h}:{b+2*h+1}], v[{b+2*h}:{b+2*h+1}], v[{b+8+2*h}:{b+9+2*h}]")
        A(f"v_cvt_pk_bf16_f32 v{b+4+h}, v{b+2*h}, v{b+2*h+1}")
    A(f"buffer_store_dwordx2 v[{b+4}:{b+5}], v74, {OUT}, s{sOut} offen")
    A.label(L('nored'))
    if PROF:
        A(f"s_lshr_b32 s{sT2}, s{sSeg}, 1")
        ts(A, 8, SWS, 76, sT2)
    A(f"""s_barrier
s_add_u32 s{sSeg}, s{sSeg}, 10
s_cmp_lt_u32 s{sSeg}, 128
s_cbranch_scc1 {L('loop')}""")
    A.label(L('skip'))

def gen_a2(A, flags, tag='A2'):
    L = lambda x: f'{tag}_{x}'
    LK, LT, LV = 0, 65536, 73728
    sHd, sQ0, sIt, sPass, sBig = sSeg, sFirst, sNext, sBufN, sSc
    A(f"""s_lshr_b32 s{sHd}, s{sA}, 2
s_and_b32 s{sQ0}, s{sA}, 3
s_lshl_b32 s{sQ0}, s{sQ0}, 2
s_add_u32 s{sQ0}, s{sQ0}, s{sW}
s_lshl_b32 s{sQ0}, s{sQ0}, 7
s_mul_i32 s{sCol}, s{sHd}, 36
s_mov_b32 s{sBig}, {fbits(2.0**60):#x}""")
    A(f"""v_and_b32 v10, 31, v0
v_mul_u32_u24 v10, 2304, v10
v_lshrrev_b32 v11, 5, v0
v_lshl_add_u32 v12, v11, 4, v10
v_mul_u32_u24 v13, 2304, v0""")
    for p in range(5):
        A(f"""v_add_u32 v10, {64 * p}, v0
v_mul_u32_u24 v11, 3277, v10
v_lshrrev_b32 v11, 16, v11
v_mul_u32_u24 v19, 20, v11
v_sub_u32 v10, v10, v19
v_min_u32 v10, 17, v10
v_lshlrev_b32 v10, 12, v10
v_lshl_add_u32 v{14+p}, v11, 4, v10""")
    ts(A, 1, SWS, 10)
    if flags:
        emit_init_wait(A, L('iw'), sDBG, sW, sT0, sCnt, 10, POLL_MAX)
        A(f"s_mov_b32 s{sT1}, {FLG_OFF + 2048}")
        wait_flags(A, L('w'), sT1, 63)
    ts(A, 2, SWS, 10)
    A(f"""s_mul_i32 s{sT1}, s{sW}, {512 * 2304}
s_add_u32 s{sT1}, s{sT1}, s{sCol}
s_add_u32 s{sT1}, s{sT1}, {QKA_OFF + 1152}
s_lshl_b32 s{sT2}, s{sW}, 14""")
    for i in range(16):
        A(f"""s_add_u32 m0, s{sT2}, {LK + i * 1024}
s_add_u32 s{sT0}, s{sT1}, {i * 32 * 2304}
buffer_load_dwordx4 v12, {WS}, s{sT0} offen sc1 lds""")
    A(f"s_lshl_b32 s{sT2}, s{sW}, 11")
    for i in range(8):
        A(f"""s_add_u32 m0, s{sT2}, {LT + i * 256}
s_add_u32 s{sT0}, s{sT1}, {i * 64 * 2304 + 32}
buffer_load_dword v13, {WS}, s{sT0} offen sc1 lds""")
    A(f"""s_mul_i32 s{sT1}, s{sHd}, {18 * 4096}
s_lshl_b32 s{sT0}, s{sW}, 10
s_add_u32 s{sT1}, s{sT1}, s{sT0}
s_add_u32 s{sT1}, s{sT1}, {VTA_OFF}
s_mul_i32 s{sT2}, s{sW}, 20480""")
    for b in range(4):
        for p in range(5):
            A(f"""s_add_u32 m0, s{sT2}, {LV + b * 5120 + p * 1024}
s_add_u32 s{sT0}, s{sT1}, {b * 256}
buffer_load_dwordx4 v{14+p}, {WS}, s{sT0} offen sc1 lds""")
    QM = lambda i: 32 + 8 * i
    QT = lambda i: 36 + 8 * i
    A(f"""s_mul_i32 s{sT1}, s{sQ0}, 2304
s_add_u32 s{sT1}, s{sT1}, s{sCol}
s_add_u32 s{sT1}, s{sT1}, {QKA_OFF}""")
    for i in range(4):
        A(f"""s_add_u32 s{sT0}, s{sT1}, {i * 32 * 2304}
buffer_load_dwordx4 v[{QM(i)}:{QM(i)+3}], v12, {WS}, s{sT0} offen sc1
buffer_load_dword v{QT(i)}, v12, {WS}, s{sT0} offen offset:32 sc1
v_mov_b32 v{QT(i)+1}, 0
v_mov_b64 v[{QT(i)+2}:{QT(i)+3}], 0""")
    A("v_cmp_gt_u32 vcc, 32, v0")
    for i in range(4):
        A(f"v_cndmask_b32 v{QT(i)}, 0, v{QT(i)}, vcc")
    A(f"""v_mul_u32_u24 v10, 320, v0
s_add_u32 s{sT2}, s{sT2}, {LV + 18 * 16}
v_add_u32 v10, s{sT2}, v10
v_mov_b32 v20, 0x3f803f80
v_mov_b32 v21, 0x3f803f80
v_mov_b32 v22, 0x3f803f80
v_mov_b32 v23, 0x3f803f80
s_waitcnt vmcnt(0)
ds_write_b128 v10, v[20:23]""")
    KM = [64, 80]; KT = [68, 84]; VF = [72, 88]
    S = [96, 112]; P0, P1 = 128, 132
    O = lambda i: 16 * i
    NM = lambda i: 136 + 16 * i
    aK, aT, aV_ = 24, 25, 26
    for par in range(2):
        A(f"v_mov_b32 v{KT[par]+1}, 0")
        A(f"v_mov_b64 v[{KT[par]+2}:{KT[par]+3}], 0")
    for r in range(NM(0), NM(4), 2):
        A(f"v_mov_b64 v[{r}:{r+1}], 0")
    A(f"s_mov_b32 s{sPass}, 0")
    A("s_waitcnt lgkmcnt(0)")
    A("s_barrier")
    ts(A, 3, SWS, 10)
    def addr_init():
        A(f"""v_mov_b32 v{aK}, v{vL16}
v_and_b32 v10, 31, v0
v_lshlrev_b32 v{aT}, 2, v10
v_add_u32 v{aT}, {LT}, v{aT}
v_min_u32 v10, 19, v10
v_lshlrev_b32 v10, 4, v10
v_lshrrev_b32 v11, 5, v0
v_mul_u32_u24 v11, 320, v11
v_add3_u32 v{aV_}, v10, v11, s{sT0}""")
    def rdK(par, off, manual=False):
        A(f"ds_read_b128 v[{KM[par]}:{KM[par]+3}], v{aK} offset:{off * 1024}", manual)
        A(f"ds_read_b32 v{KT[par]}, v{aT} offset:{off * 128}", manual)
    def rdV(par, off, manual=False):
        A(f"ds_read_b128 v[{VF[par]}:{VF[par]+3}], v{aV_} offset:{off * 1280}", manual)
        A(f"ds_read_b128 v[{VF[par]+4}:{VF[par]+7}], v{aV_} offset:{off * 1280 + 640}", manual)
    def qk(par, i, sb, part):
        if part == 0:
            A(f"v_mfma_f32_32x32x16_bf16 v[{sb}:{sb+15}], v[{KM[par]}:{KM[par]+3}], v[{QM(i)}:{QM(i)+3}], v[{NM(i)}:{NM(i)+15}]")
        else:
            A(f"v_mfma_f32_32x32x16_bf16 v[{sb}:{sb+15}], v[{KT[par]}:{KT[par]+3}], v[{QT(i)}:{QT(i)+3}], v[{sb}:{sb+15}]")
    def pv(par, i, half):
        v = VF[par] + 4 * half; p = P1 if half else P0
        A(f"v_mfma_f32_32x32x16_bf16 a[{O(i)}:{O(i)+15}], v[{v}:{v+3}], v[{p}:{p+3}], a[{O(i)}:{O(i)+15}]")
    A.label(L('pass'))
    A(f"s_mov_b32 s{sT0}, {LV}")
    addr_init()
    rdK(0, 0); rdV(0, 0); rdV(1, 0)
    for r in range(64):
        A(f"v_accvgpr_write_b32 a{r}, 0")
    A(f"v_mov_b64 v[{P1}:{P1+1}], 0")
    A(f"v_mov_b64 v[{P1+2}:{P1+3}], 0")
    qk(0, 0, S[0], 0); qk(0, 0, S[0], 1)
    A(f"s_mov_b32 s{sIt}, 0")
    A("s_waitcnt lgkmcnt(0)")
    A("s_nop 7")
    A.label(L('loop'))
    for n in range(8):
        par, i = n >> 2, n & 3
        npar, ni = ((n + 1) >> 2) & 1, (n + 1) & 3
        ppar, pi = ((n - 1) >> 2) & 1, (n - 1) & 3
        sb, nsb = S[n & 1], S[(n + 1) & 1]
        def ex(q):
            for r in range(4 * q, 4 * q + 4):
                A(f"v_exp_f32 v{sb+r}, v{sb+r}")
        def cv(q):
            d = (P0, P0 + 2, P1, P1 + 2)[q]
            A(f"v_cvt_pk_bf16_f32 v{d}, v{sb+4*q}, v{sb+4*q+1}")
            A(f"v_cvt_pk_bf16_f32 v{d+1}, v{sb+4*q+2}, v{sb+4*q+3}")
        if i == 3:
            A("s_waitcnt lgkmcnt(0)")
        qk(npar, ni, nsb, 0)
        if i == 0:
            rdK(1 - par, par + 1, True)
        ex(0)
        qk(npar, ni, nsb, 1)
        cv(0); ex(1)
        pv(ppar, pi, 1)
        if i == 0:
            rdV(1 - par, par + 1, True)
        cv(1); ex(2)
        pv(par, i, 0)
        cv(2); ex(3)
        if n == 7:
            A(f"""v_add_u32 v{aK}, 2048, v{aK}
v_add_u32 v{aT}, 256, v{aT}
v_add_u32 v{aV_}, 2560, v{aV_}
s_add_u32 s{sIt}, s{sIt}, 1
s_cmp_lt_u32 s{sIt}, 32""")
        cv(3)
    A(f"s_cbranch_scc1 {L('loop')} ;nofence")
    pv(1, 3, 1)
    A("s_waitcnt lgkmcnt(0)")
    for i in range(4):
        A(f"""v_accvgpr_read_b32 v{100+2*i}, a{O(i)+10}
v_accvgpr_read_b32 v{101+2*i}, a{O(i)+10}
v_permlane32_swap_b32 v{100+2*i}, v{101+2*i}
v_rcp_f32 v{101+2*i}, v{100+2*i}""")
    A(f"""v_max3_f32 v108, v100, v101, v102
v_max3_f32 v109, v103, v104, v105
v_max3_f32 v108, v108, v106, v107
v_add_f32 v110, v100, v102
v_add_f32 v111, v104, v106
v_add_f32 v110, v110, v111
v_max_f32 v108, v108, v109
v_cmp_nlt_f32 vcc, v108, s{sBig}
v_cmp_u_f32 s[50:51], v110, v110
s_or_b64 vcc, vcc, s[50:51]
s_cmp_lg_u32 s{sPass}, 0
s_cbranch_scc1 {L('store')}
s_cbranch_vccz {L('store')}""")
    A(f"s_mov_b32 s{sT0}, {LV}")
    addr_init()
    for i in range(4):
        A(f"v_mov_b32 v{200+i}, 0xff800000")
    A(f"s_mov_b32 s{sIt}, 0")
    A.label(L('mx'))
    rdK(0, 0)
    for i in range(4):
        sb = S[i & 1]
        qk(0, i, sb, 0); qk(0, i, sb, 1)
        for r in range(0, 16, 2):
            A(f"v_max3_f32 v{200+i}, v{200+i}, v{sb+r}, v{sb+r+1}")
    A(f"""v_add_u32 v{aK}, 1024, v{aK}
v_add_u32 v{aT}, 128, v{aT}
s_add_u32 s{sIt}, s{sIt}, 1
s_cmp_lt_u32 s{sIt}, 64
s_cbranch_scc1 {L('mx')}""")
    for i in range(4):
        A(f"""v_mov_b32 v204, v{200+i}
v_permlane32_swap_b32 v{200+i}, v204
v_max_f32 v204, v204, v{200+i}
v_sub_f32 v204, 0, v204""")
        for r in range(16):
            A(f"v_mov_b32 v{NM(i)+r}, v204")
    A(f"s_mov_b32 s{sPass}, 1")
    A(f"s_branch {L('pass')}")
    A.label(L('store'))
    ts(A, 4, SWS, 10)
    A(f"""v_and_b32 v10, 31, v0
v_mul_u32_u24 v10, 1152, v10
v_lshrrev_b32 v11, 5, v0
v_lshl_add_u32 v12, v11, 3, v10
s_mul_i32 s{sT1}, s{sQ0}, 1152
s_add_u32 s{sT1}, s{sT1}, s{sCol}
s_add_u32 s{sT1}, s{sT1}, {OA_OFF}""")
    for i in range(4):
        o = NM(i)
        for r in range(10):
            A(f"v_accvgpr_read_b32 v{o+r}, a{O(i)+r}")
        for r in range(10):
            A(f"v_mul_f32 v{o+r}, v{o+r}, v{101+2*i}")
        for r in range(5):
            A(f"v_cvt_pk_bf16_f32 v{o+10+r}, v{o+2*r}, v{o+2*r+1}")
        A(f"""s_add_u32 s{sT0}, s{sT1}, {i * 32 * 1152}
buffer_store_dwordx2 v[{o+10}:{o+11}], v12, {WS}, s{sT0} offen sc1
buffer_store_dwordx2 v[{o+12}:{o+13}], v12, {WS}, s{sT0} offen offset:16 sc1
s_mov_b32 exec_hi, 0
buffer_store_dword v{o+14}, v12, {WS}, s{sT0} offen offset:32 sc1
s_mov_b64 exec, -1""")
    if flags:
        signal_wg(A, L('sg'), FLG_OFF + 4096 + 2048)
    A("s_waitcnt vmcnt(0)")
    A("s_barrier")
```

```python
from asmlib import Asm
from layout import *
from gemm import *
from chain import C_SCALE, fbits, srd
from prof import ts
POLL_MAX = 200000
NB = 3

def gen_b(A, do1=True, do2=True, flags=True, tag='B'):
    L = lambda x: f'{tag}_{x}'
    sH, sW, sJ = 3, 4, 5
    SQ, SK, SV, SX, SWS = 8, 12, 16, 20, 24
    sDBG = 28
    sT0, sT1, sT2, sLds, sCol, sSeg, sN, sBuf, sXw, sLw, sC, sOut, sCnt, sNext, sBufN, sPrev = range(32, 48)
    sKF, sOF = 48, 49
    WS = f"s[{SWS}:{SWS+3}]"
    vL16, vTr, vTr1, vWo, vXo, vX, vOne = 1, 2, 3, 4, 5, 6, 7
    XB = [8, 12, 16, 20]
    ACC = 24
    A(f"""s_load_dwordx2 s[60:61], s[0:1], 24
s_load_dwordx4 s[64:67], s[0:1], 40
s_load_dwordx2 s[68:69], s[0:1], 56
s_load_dwordx4 s[72:75], s[0:1], 88
v_lshrrev_b32 v10, 6, v0
v_and_b32 v0, 63, v0
v_readfirstlane_b32 s{sW}, v10
s_waitcnt lgkmcnt(0)""")
    srd(A, SX, 60, 2048 * 1152)
    srd(A, SQ, 64, 576 * 8192); srd(A, SK, 66, 576 * 8192); srd(A, SV, 68, 576 * 8192)
    srd(A, SWS, 74, WS_BYTES)
    A(f"""s_mov_b32 s{sDBG}, s72
s_mov_b32 s{sDBG+1}, s73
s_mov_b32 s{sC}, {fbits(C_SCALE):#x}
v_mov_b32 v{vOne}, 1""")
    emit_lane_consts(A, vL16, vTr, 10, 11)
    d1 = emit_wdma_off(A, vWo, 8192, 10, 11)
    emit_xdma_off(A, vXo, 1152, 10)
    DEPTH = 12
    A(f"""s_mul_i32 s{sLds}, s{sW}, {DEPTH * 2048}
s_add_u32 s{sLds}, s{sLds}, 36864
v_add_u32 v{vTr}, s{sLds}, v{vTr}
v_xor_b32 v{vTr1}, 32, v{vTr}
s_lshl_b32 s{sCol}, s{sH}, 8
s_lshl_b32 s{sT0}, s{sW}, 6
s_add_u32 s{sCol}, s{sCol}, s{sT0}
s_lshr_b32 s{sT0}, s{sW}, 1
s_mul_i32 s{sXw}, s{sT0}, {16 * 1152}
s_and_b32 s{sT0}, s{sW}, 1
s_mul_i32 s{sT0}, s{sT0}, 576
s_add_u32 s{sXw}, s{sXw}, s{sT0}
s_mul_i32 s{sLw}, s{sW}, 9216
s_lshl_b32 s{sKF}, s{sH}, 12
s_add_u32 s{sKF}, s{sKF}, s{sW}
s_add_u32 s{sKF}, s{sKF}, {FLG_OFF}
s_lshl_b32 s{sOF}, s{sH}, 3
s_lshr_b32 s{sT0}, s{sW}, 1
s_lshl_b32 s{sT0}, s{sT0}, 2
s_add_u32 s{sOF}, s{sOF}, s{sT0}
s_and_b32 s{sT0}, s{sW}, 1
s_lshl_b32 s{sT0}, s{sT0}, 8
s_add_u32 s{sOF}, s{sOF}, s{sT0}
s_add_u32 s{sOF}, s{sOF}, {FLG_OFF + 1024}""")
    def xdma(sseg, sbuf):
        A(f"""s_min_u32 s{sT1}, s{sseg}, 63
s_mul_i32 s{sT1}, s{sT1}, {32 * 1152}
s_add_u32 s{sT1}, s{sT1}, s{sXw}
s_add_u32 s{sT2}, s{sbuf}, s{sLw}""")
        emit_xdma(A, SX, vXo, sT1, None, sT2, sT0, None, 1152)
    def witems(mats):
        it = []
        for m, s_ in mats:
            for u in range(18):
                it.append((s_, vWo, sCol, u * 32 * 8192, d1 * 8192, (2 * m) * 18 + u, (2 * m + 1) * 18 + u))
        return it
    def flag(soff, kind='dword'):
        A(f"""s_mov_b64 exec, 1
buffer_store_{kind} v{vOne}, v{vL16}, {WS}, s{soff} offen sc1
s_mov_b64 exec, -1""")
    def kv_flag(sseg):
        A(f"""s_lshl_b32 s{sT1}, s{sseg}, 2
s_add_u32 s{sT1}, s{sT1}, s{sKF}""")
        flag(sT1, 'byte')
    def ring_start():
        A(f"""s_mov_b32 s{sSeg}, s{sJ}
s_mov_b32 s{sBuf}, 0
s_add_u32 s{sNext}, s{sJ}, {NB}
s_mov_b32 s{sBufN}, 36864""")
    def ring_adv():
        A(f"""s_mov_b32 s{sPrev}, s{sSeg}
s_add_u32 s{sSeg}, s{sSeg}, {NB}
s_add_u32 s{sBuf}, s{sBuf}, 36864
s_cmp_eq_u32 s{sBuf}, {3 * 36864}
s_cselect_b32 s{sBuf}, 0, s{sBuf}""")
    def next_dma():
        A(f"""s_add_u32 s{sNext}, s{sNext}, {NB}
s_add_u32 s{sBufN}, s{sBufN}, 36864
s_cmp_eq_u32 s{sBufN}, {3 * 36864}
s_cselect_b32 s{sBufN}, 0, s{sBufN}""")
        xdma(sNext, sBufN)

    ts(A, 0, SWS, 10)
    if do1:
        ring_start()
        xdma(sSeg, sBuf)
        if flags:
            A(f"""v_mov_b32 v12, {POISON:#x}
v_mov_b32 v13, {POISON:#x}
v_mov_b32 v14, {POISON:#x}
v_mov_b32 v15, {POISON:#x}
v_lshrrev_b32 v16, 1, v{vL16}
s_mov_b32 s{sN}, s{sJ}""")
            A.label(L('pz'))
            A(f"""s_lshl_b32 s{sT0}, s{sH}, 6
s_add_u32 s{sT0}, s{sT0}, s{sN}
s_lshl_b32 s{sT0}, s{sT0}, 13
s_add_u32 s{sT0}, s{sT0}, {MEM_OFF}
s_lshl_b32 s{sT1}, s{sW}, 10
s_add_u32 s{sT1}, s{sT1}, s{sT0}
s_lshl_b32 s{sT2}, s{sW}, 9
s_add_u32 s{sT2}, s{sT2}, s{sT0}
s_add_u32 s{sT2}, s{sT2}, 4096
buffer_store_dwordx4 v[12:15], v{vL16}, {WS}, s{sT1} offen sc1
buffer_store_dwordx2 v[12:13], v16, {WS}, s{sT2} offen sc1
s_add_u32 s{sN}, s{sN}, {NB}
s_cmp_lt_u32 s{sN}, 64
s_cbranch_scc1 {L('pz')}""")
        emit_wload(A, witems([(0, SK), (1, SV)]), vTr, vTr1, sLds, sT0, DEPTH)
        ts(A, 1, SWS, 10, dbg=(5, 'max'))
        if flags:
            emit_init_wait(A, L('iw'), sDBG, sW, sT0, sCnt, 10, POLL_MAX)
        A("s_barrier")
        xdma(sNext, sBufN)
        A(f"s_mov_b32 s{sPrev}, 192")
        A("s_waitcnt vmcnt(9)")
        A.label(L('kv'))
        A("s_barrier")
        next_dma()
        A(f"v_add_u32 v{vX}, s{sBuf}, v{vL16}")
        def sig_prev():
            A("s_waitcnt vmcnt(9)")
            if flags:
                kv_flag(sPrev)
        tiles = [(0, 'F'), (18, 'F'), (36, 'T'), (54, 'T')]
        emit_group_mma(A, tiles, vX, XB, ACC, side={6: sig_prev})
        A(f"""s_lshl_b32 s{sT0}, s{sH}, 6
s_add_u32 s{sT0}, s{sT0}, s{sSeg}
s_lshl_b32 s{sT0}, s{sT0}, 14
s_lshl_b32 s{sT1}, s{sW}, 10
s_add_u32 s{sOut}, s{sT0}, s{sT1}
s_add_u32 s{sT2}, s{sOut}, 4096
s_add_u32 s{sT1}, s{sOut}, s{sT1}
s_add_u32 s{sT1}, s{sT1}, 8192""")
        for tt in range(2):
            d = 56 + 4 * tt
            for t in range(2):
                a = ACC + (2 * t + tt) * 4
                for r in range(4):
                    A(f"v_mul_f32 v{a+r}, s{sC}, v{a+r}")
                A(f"v_cvt_pk_bf16_f32 v{d+2*t}, v{a}, v{a+1}")
                A(f"v_cvt_pk_bf16_f32 v{d+2*t+1}, v{a+2}, v{a+3}")
            A(f"buffer_store_dwordx4 v[{d}:{d+3}], v{vL16}, {WS}, s{sOut if tt == 0 else sT2} offen sc1")
        for t in range(2):
            d = 64 + 4 * t
            for tt in range(2):
                a = ACC + (2 * (2 + t) + tt) * 4
                A(f"v_cvt_pk_bf16_f32 v{d+2*tt}, v{a}, v{a+1}")
                A(f"v_cvt_pk_bf16_f32 v{d+2*tt+1}, v{a+2}, v{a+3}")
            A(f"buffer_store_dwordx4 v[{d}:{d+3}], v{vL16}, {WS}, s{sT1} offen offset:{t*1024} sc1")
        ring_adv()
        A(f"s_waitcnt vmcnt({14 if flags else 13})")
        A(f"s_cmp_lt_u32 s{sSeg}, 64")
        A(f"s_cbranch_scc1 {L('kv')}")
        A("s_waitcnt vmcnt(0)")
        if flags:
            kv_flag(sPrev)
        A("s_barrier")

    ts(A, 2, SWS, 10, dbg=(6, 'max'))
    if do2:
        LQ = 3 * 36864
        ring_start()
        xdma(sSeg, sBuf)
        emit_wload(A, witems([(2, SQ)]), vTr, vTr1, sLds, sT0, DEPTH)
        ts(A, 3, SWS, 10)
        A("s_barrier")
        xdma(sNext, sBufN)
        sTT, sEH, sKx, sVx, sKm, sVm = 50, 51, 52, 53, 54, 55
        A(f"""s_and_b32 s{sTT}, s{sW}, 1
s_lshr_b32 s{sEH}, s{sW}, 1
v_and_b32 v10, 15, v0
v_lshrrev_b32 v11, 4, v0
v_lshlrev_b32 v11, 2, v11
s_lshl_b32 s{sT0}, s{sTT}, 4
v_add_u32 v10, s{sT0}, v10
v_mov_b32 v12, 0xf149f2ca""")
        for kt in range(2):
            for r in range(4):
                A(f"""v_add_u32 v13, {16 * kt + r}, v11
v_cmp_le_u32 vcc, v13, v10
v_cndmask_b32 v{80 + 4*kt + r}, v12, 0, vcc""")
        A(f"""v_mov_b32 v88, 0x3f803f80
v_mov_b32 v89, 0x3f803f80
v_mov_b32 v90, 0x3f803f80
v_mov_b32 v91, 0x3f803f80
v_lshrrev_b32 v92, 1, v{vL16}
s_lshl_b32 s{sT0}, s{sW}, 10
s_add_u32 s{sT0}, s{sT0}, {LQ}
v_add_u32 v93, s{sT0}, v{vL16}
s_lshl_b32 s{sT0}, s{sTT}, 12
s_add_u32 s{sT0}, s{sT0}, {LQ}
v_add_u32 v94, s{sT0}, v{vL16}
s_lshl_b32 s{sT0}, s{sW}, 12
s_add_u32 s{sT0}, s{sT0}, {LQ + 8192}
v_add_u32 v96, s{sT0}, v92
v_and_b32 v10, 15, v0
v_lshlrev_b32 v10, 5, v10
v_lshrrev_b32 v11, 4, v0
v_lshl_add_u32 v10, v11, 3, v10
v_add_u32 v95, s{sT0}, v10
s_waitcnt vmcnt(9)""")
        A.label(L('at'))
        A("s_barrier")
        A(f"""s_lshl_b32 s{sT0}, s{sH}, 6
s_add_u32 s{sT0}, s{sT0}, s{sSeg}
s_lshl_b32 s{sKx}, s{sT0}, 14
s_add_u32 s{sT1}, s{sKx}, 4096
s_lshl_b32 s{sT2}, s{sEH}, 12
s_add_u32 s{sVx}, s{sKx}, s{sT2}
s_add_u32 s{sVx}, s{sVx}, 8192
s_lshl_b32 s{sKm}, s{sT0}, 13
s_add_u32 s{sKm}, s{sKm}, {MEM_OFF}
s_lshl_b32 s{sT2}, s{sEH}, 10
s_add_u32 s{sVm}, s{sKm}, s{sT2}
s_add_u32 s{sVm}, s{sVm}, 4096""")
        for kt in range(2):
            for u in range(4):
                b = 16 * kt + 4 * u
                A(f"buffer_load_dwordx4 a[{b}:{b+3}], v{vL16}, {WS}, s{sKx if kt == 0 else sT1} offen offset:{u*1024} sc1")
        for e in range(4):
            A(f"buffer_load_dwordx4 a[{32+4*e}:{35+4*e}], v{vL16}, {WS}, s{sVx} offen offset:{e*1024} sc1")
        next_dma()
        A(f"v_add_u32 v{vX}, s{sBuf}, v{vL16}")
        emit_group_mma(A, [(72, 'F'), (90, 'F')], vX, XB, ACC)
        for tt in range(2):
            d = 56 + 4 * tt
            for t in range(2):
                a = ACC + (2 * t + tt) * 4
                A(f"v_cvt_pk_bf16_f32 v{d+2*t}, v{a}, v{a+1}")
                A(f"v_cvt_pk_bf16_f32 v{d+2*t+1}, v{a+2}, v{a+3}")
            A(f"ds_write_b128 v93, v[{d}:{d+3}] offset:{tt * 4096}")
        A("s_waitcnt lgkmcnt(0)")
        A("s_barrier")
        Q = 8
        for u in range(4):
            A(f"ds_read_b128 v[{Q+4*u}:{Q+4*u+3}], v94 offset:{u*1024}")
        S0, S1, SM = 24, 28, 32
        for u in range(4):
            for kt, s_ in ((0, S0), (1, S1)):
                c = rng('v', 80 + 4 * kt, 4) if u == 0 else rng('v', s_, 4)
                A(f"v_mfma_f32_16x16x32_bf16 v[{s_}:{s_+3}], a[{16*kt+4*u}:{16*kt+4*u+3}], v[{Q+4*u}:{Q+4*u+3}], {c}")
        A(f"s_mov_b32 s{sCnt}, 0")
        A("s_waitcnt vmcnt(9)")
        A.label(L('mp'))
        for u in range(2):
            A(f"buffer_load_dwordx4 v[{64+4*u}:{67+4*u}], v{vL16}, {WS}, s{sKm} offen offset:{u*1024} sc1")
        if flags:
            A(f"""s_add_u32 s{sCnt}, s{sCnt}, 1
v_max3_u32 v60, v64, v67, v68
v_max_u32 v60, v60, v71
v_cmp_eq_u32 vcc, {POISON:#x}, v60
s_cmp_gt_u32 s{sCnt}, {POLL_MAX}
s_cbranch_scc1 {L('mg')} ;nofence
s_cbranch_vccz {L('mg')} ;nofence
s_sleep 3
s_branch {L('mp')} ;nofence""")
            A.label(L('mg') + ' ;soft')
        A(f"buffer_load_dwordx2 v[56:57], v92, {WS}, s{sVm} offen sc1")
        A(f"buffer_load_dwordx2 v[58:59], v92, {WS}, s{sVm} offen offset:512 sc1")
        for n in range(8):
            A(f"ds_write_b32 v95, v{64+n} offset:{n*512}")
        for u in range(4):
            A(f"ds_read_b64_tr_b16 v[{40+4*u}:{41+4*u}], v96 offset:{u*1024}")
            A(f"ds_read_b64_tr_b16 v[{42+4*u}:{43+4*u}], v96 offset:{u*1024+512}")
        for u in range(4):
            c = '0' if u == 0 else rng('v', SM, 4)
            A(f"v_mfma_f32_16x16x32_bf16 v[{SM}:{SM+3}], v[{40+4*u}:{43+4*u}], v[{Q+4*u}:{Q+4*u+3}], {c}")
        sv = list(range(S0, S0 + 10))
        A(f"""v_max3_f32 v60, v{sv[0]}, v{sv[1]}, v{sv[2]}
v_max3_f32 v61, v{sv[3]}, v{sv[4]}, v{sv[5]}
v_max3_f32 v60, v60, v{sv[6]}, v{sv[7]}
v_mul_f32 v{SM}, s{sC}, v{SM}
v_mul_f32 v{SM+1}, s{sC}, v{SM+1}
v_max3_f32 v61, v61, v{sv[8]}, v{sv[9]}
v_max_f32 v60, v60, v61
v_mov_b32 v61, v60
v_permlane32_swap_b32 v60, v61
v_max_f32 v60, v60, v61
v_mov_b32 v61, v60
v_permlane16_swap_b32 v60, v61
v_max_f32 v60, v60, v61""")
        for r in sv:
            A(f"v_sub_f32 v{r}, v{r}, v60")
        for r in sv:
            A(f"v_exp_f32 v{r}, v{r}")
        PX, PM = 64, 68
        for n in range(4):
            A(f"v_cvt_pk_bf16_f32 v{PX+n}, v{sv[2*n]}, v{sv[2*n+1]}")
        A(f"""v_cvt_pk_bf16_f32 v{PM}, v{SM}, v{SM+1}
v_mov_b32 v{PM+1}, 0
v_mov_b32 v{PM+2}, 0
v_cvt_pk_bf16_f32 v{PM+3}, v{SM}, v{SM+1}""")
        O, LS = 40, 36
        A(f"v_mfma_f32_16x16x32_bf16 v[{LS}:{LS+3}], v[88:91], v[{PX}:{PX+3}], 0")
        for e in range(4):
            A(f"v_mfma_f32_16x16x32_bf16 v[{O+4*e}:{O+4*e+3}], a[{32+4*e}:{35+4*e}], v[{PX}:{PX+3}], 0")
        A(f"v_mfma_f32_16x16x16_bf16 v[{LS}:{LS+3}], v[88:89], v[{PM}:{PM+1}], v[{LS}:{LS+3}]")
        if flags:
            A(f"""v_max_u32 v60, v56, v58
v_cmp_eq_u32 vcc, {POISON:#x}, v60
s_cbranch_vccz {L('vg')}
s_mov_b32 s{sCnt}, 0""")
            A.label(L('vp'))
            A(f"""buffer_load_dwordx2 v[56:57], v92, {WS}, s{sVm} offen sc1
buffer_load_dwordx2 v[58:59], v92, {WS}, s{sVm} offen offset:512 sc1
s_add_u32 s{sCnt}, s{sCnt}, 1
v_max_u32 v60, v56, v58
v_cmp_eq_u32 vcc, {POISON:#x}, v60
s_cmp_gt_u32 s{sCnt}, {POLL_MAX}
s_cbranch_scc1 {L('vg')}
s_cbranch_vccnz {L('vp')}""")
            A.label(L('vg'))
        for e in range(4):
            vm = 56 + 2 * (e >> 1); p = PM + 2 * (e & 1)
            A(f"v_mfma_f32_16x16x16_bf16 v[{O+4*e}:{O+4*e+3}], v[{vm}:{vm+1}], v[{p}:{p+1}], v[{O+4*e}:{O+4*e+3}]")
        A(f"""v_rcp_f32 v60, v{LS}
s_lshl_b32 s{sT0}, s{sSeg}, 1
s_add_u32 s{sT0}, s{sT0}, s{sTT}
s_lshl_b32 s{sT0}, s{sT0}, 17
s_lshl_b32 s{sT1}, s{sH}, 12
s_add_u32 s{sT0}, s{sT0}, s{sT1}
s_lshl_b32 s{sT1}, s{sEH}, 11
s_add_u32 s{sT0}, s{sT0}, s{sT1}
s_add_u32 s{sT0}, s{sT0}, {OB_OFF}""")
        for x in range(2):
            d = 24 + 4 * x
            for n in range(4):
                o = O + 8 * x + 2 * n
                A(f"v_mul_f32 v{o}, v{o}, v60")
                A(f"v_mul_f32 v{o+1}, v{o+1}, v60")
                A(f"v_cvt_pk_bf16_f32 v{d+n}, v{o}, v{o+1}")
            A(f"buffer_store_dwordx4 v[{d}:{d+3}], v{vL16}, {WS}, s{sT0} offen offset:{x*1024} sc1")
        A("s_waitcnt vmcnt(0)")
        if flags:
            A(f"""s_lshr_b32 s{sT1}, s{sSeg}, 1
s_lshl_b32 s{sT1}, s{sT1}, 12
s_and_b32 s{sT2}, s{sSeg}, 1
s_lshl_b32 s{sT2}, s{sT2}, 9
s_add_u32 s{sT1}, s{sT1}, s{sT2}
s_add_u32 s{sT1}, s{sT1}, s{sOF}""")
            flag(sT1)
        ts(A, 8, SWS, 72, sSeg)
        ring_adv()
        A(f"s_cmp_lt_u32 s{sSeg}, 64")
        A(f"s_cbranch_scc1 {L('at')}")
    ts(A, 7, SWS, 72, dbg=(7, 'max'))
    A("s_endpgm")
```

```python
from asmlib import Asm
from layout import *
import struct, math, os
from prof import ts

NSTEPS = 64
C_SCALE = (128 ** -0.5) * math.log2(math.e)
def fbits(x): return struct.unpack('<I', struct.pack('<f', x))[0]
EXP = os.environ.get('EXP', 'E')

LDS_CHUNKS = [('q', 0), ('k', 0), ('q', 2), ('k', 2), ('o', (0, 0)), ('o', (1, 0)), ('v', 6), ('v', 7)]
REG_CHUNKS = [(m, j) for j in range(9) for m in 'qk' if (m, j) not in LDS_CHUNKS] + \
             [('v', j) for j in (0, 2, 1, 3, 8, 4, 5)] + \
             [('o', (0, 1)), ('o', (1, 1)), ('o', (2, 0)), ('o', (3, 0)), ('o', (2, 1)), ('o', (3, 1))]
assert len(REG_CHUNKS) == 27
def lds_off(ch, tt, k5):
    if ch == ('o', 8):
        return 32768 + k5 * 1024
    i = LDS_CHUNKS.index(ch)
    if i < 6:
        return ((i >> 1) * 2 + k5) * 4096 + ((i & 1) * 2 + tt) * 1024
    return i * 4096 + k5 * 2048 + tt * 1024
_blk = {}
def _regblock(n):
    return ('a', 8 * n) if n < 32 else ('v', 72 + 8 * (n - 32))
n = 0
for ch in REG_CHUNKS:
    for tt in range(2):
        _blk[(ch, tt)] = _regblock(n); n += 1
_blk[(('o', 8), 1)] = _regblock(n); n += 1
assert n == 55
def rng(f, b, n): return '%s[%d:%d]' % (f, b, b + n - 1)
def blk_regs(ch, tt):
    f, b = _blk[(ch, tt)]
    return rng(f, b, 8)

vDummy, vL16, vL8, vIdx, vQKw, vOw, vPst, vMst, vW, vPc = 0, 1, 2, 3, 4, 5, 6, 7, 8, 9
VX = 64
sH, sW = 3, 4
SRD_Q, SRD_K, SRD_V, SRD_O, SRD_WS = 8, 12, 16, 20, 24
sDBG, sMEM0 = 28, 30
sStep, sTag, sMw, sMp, sRa, sReady, sRole, sFast, sC = 32, 33, 34, 35, 36, 37, 38, 39, 40
sT0, sT1, sT2, sT3 = 41, 42, 43, 44
sSeg, sNeed, sCnt = 101, 46, 47
sEx = 48
sPz = 50
sTm = 52
sKMa, sTa, sVMa, sVXa, sKXa, sP0, sP1, sP2, sGa, sGb, sLate = 60, 61, 62, 63, 64, 65, 66, 67, 69, 70, 71
sKF, sW10 = 68, 100
sOnes, sBig, sRep = 72, 74, 75
sXcc, sW11, sTouch, sTagM = 76, 77, 78, 79
SRD_R = 96
sQP = 96
POLL_MAX = 20000
NREP = int(os.environ.get('NREP', '4'))
WS = f"s[{SRD_WS}:{SRD_WS+3}]"

def srd(A, d, ptr, nbytes):
    A(f"""s_mov_b32 s{d}, s{ptr}
s_and_b32 s{d+1}, s{ptr+1}, 0xffff
s_mov_b32 s{d+2}, {nbytes}
s_mov_b32 s{d+3}, 0x20000""")

def kv_eval(A, v):
    A(f"""v_cmp_eq_u32 vcc, 0x01010101, v{v}
s_ff0_i32_b64 s{sReady}, vcc
s_min_u32 s{sReady}, s{sReady}, 64""")

def kv_wait(A, lab, vt):
    A(f"""v_lshrrev_b32 v{vt+1}, 2, v{vL16}
s_mov_b32 s{sCnt}, 0""")
    A.label(lab)
    A(f"""buffer_load_dword v{vt}, v{vt+1}, {WS}, s{sKF} offen sc1
s_add_u32 s{sCnt}, s{sCnt}, 1""")
    kv_eval(A, vt)
    A(f"""s_cmp_gt_u32 s{sCnt}, {POLL_MAX * 8}
s_cbranch_scc1 {lab}_d
s_cmp_gt_u32 s{sReady}, s{sNeed}
s_cbranch_scc1 {lab}_d
s_sleep 4
s_branch {lab}""")
    A.label(lab + '_d')

def bits(A, dst, terms, tmp, first=True):
    for (b, wd, sh) in terms:
        A(f"v_bfe_u32 v{tmp}, v0, {b}, {wd}")
        if first:
            A(f"v_lshlrev_b32 v{dst}, {sh}, v{tmp}"); first = False
        else:
            A(f"v_lshl_add_u32 v{dst}, v{tmp}, {sh}, v{dst}")

def gen_chain(A, dbg=0, tag='C', flags=False):
    L = lambda x: f'{tag}_{x}'
    NST = 12
    R0, R1, R2 = 34, 38, 58
    if dbg:
        A(f"s_memtime s[{sTm+6}:{sTm+7}]")
    A(f"""s_lshr_b32 s{sH}, s2, 3
s_load_dwordx4 s[60:63], s[0:1], 32
s_load_dwordx4 s[64:67], s[0:1], 48
s_load_dwordx2 s[68:69], s[0:1], 64
s_load_dwordx4 s[72:75], s[0:1], 88
v_lshrrev_b32 v10, 6, v0
v_and_b32 v0, 63, v0
v_readfirstlane_b32 s{sW}, v10
s_getreg_b32 s{sXcc}, hwreg(HW_REG_XCC_ID)
v_lshlrev_b32 v{vL16}, 4, v0
v_lshlrev_b32 v{vL8}, 3, v0
s_waitcnt lgkmcnt(0)""")
    srd(A, SRD_Q, 62, 576 * 4096 * 2)
    srd(A, SRD_K, 64, 576 * 4096 * 2)
    srd(A, SRD_V, 66, 576 * 4096 * 2)
    srd(A, SRD_O, 68, 576 * 4096 * 2)
    srd(A, SRD_WS, 74, WS_BYTES)
    A(f"""s_mov_b32 s{sDBG}, s72
s_mov_b32 s{sDBG+1}, s73
s_mov_b32 s{sMEM0}, s60
s_mov_b32 s{sMEM0+1}, s61
s_mov_b32 s{sC}, {fbits(C_SCALE):#x}
s_lshl_b32 s{sW11}, s{sW}, 11
s_and_b32 s{sXcc}, s{sXcc}, 15
s_mov_b32 s{sPz}, {POISON:#x}
s_mov_b32 s{sPz+1}, {POISON:#x}""")
    ts(A, 0, SRD_WS, 10, dbg=(0, 'min'))
    A(f"""s_add_u32 s{sT0}, s{sH}, 32
s_cmp_eq_u32 s{sW}, 1
s_cselect_b32 s{sT0}, s{sH}, s{sT0}
s_cselect_b32 s{sRole}, 1, 0
s_add_u32 s{sT1}, s{sH}, 64
s_min_u32 s{sT1}, s{sT1}, 71
s_cmp_ge_u32 s{sW}, 2
s_cselect_b32 s{sT0}, s{sT1}, s{sT0}
s_lshl_b32 s{sRa}, s{sT0}, 12
s_add_u32 s{sRa}, s{sRa}, {PART_OFF}
s_cmp_lt_u32 s{sH}, 8
s_cselect_b32 s{sT1}, 0, 2
s_cmp_eq_u32 s{sW}, 2
s_cselect_b32 s{sRole}, s{sT1}, s{sRole}
s_cmp_eq_u32 s{sW}, 3
s_cselect_b32 s{sRole}, 2, s{sRole}""")
    A(f"""s_bfe_u32 s{sT1}, s{sT0}, 0x20003
s_lshl_b32 s{sT1}, s{sT1}, 11
s_cmp_lt_u32 s{sT0}, 32
s_cselect_b32 s{sT3}, 1024, 0
s_add_u32 s{sT1}, s{sT1}, s{sT3}
s_and_b32 s{sT3}, s{sT0}, 1
s_lshl_b32 s{sT3}, s{sT3}, 9
s_add_u32 s{sT1}, s{sT1}, s{sT3}
s_bfe_u32 s{sT3}, s{sT0}, 0x20001
s_lshl_b32 s{sT3}, s{sT3}, 6
s_add_u32 s{sT1}, s{sT1}, s{sT3}
s_lshl_b32 s{sT2}, s{sT0}, 7
s_cmp_ge_u32 s{sT0}, 64
s_cselect_b32 s{sT1}, s{sT2}, s{sT1}
s_cselect_b32 s{sT2}, 6, 8
v_bfe_u32 v10, v0, 2, 1
v_lshlrev_b32 v10, s{sT2}, v10""")
    bits(A, 10, [(1, 1, 5), (4, 1, 4), (0, 1, 3)], 11, False)
    A(f"""v_lshrrev_b32 v11, 5, v0
v_bfe_u32 v12, v0, 3, 1
v_lshl_add_u32 v11, v11, 1, v12
v_and_b32 v11, {NREP - 1}, v11
v_mul_u32_u24 v11, {MREP}, v11
v_add3_u32 v{vMst}, v10, v11, s{sT1}""")
    A(f"""v_mov_b64 v[12:13], 0
v_mov_b64 v[14:15], 0
v_mov_b64 v[16:17], 1
v_mov_b64 v[18:19], 1
v_mov_b64 v[20:21], s[{sPz}:{sPz+1}]""")
    if flags:
        A(f"""s_lshl_b32 s{sT0}, s{sH}, 12
s_lshl_b32 s{sT1}, s{sW}, 10
s_add_u32 s{sT0}, s{sT0}, s{sT1}
s_add_u32 s{sT0}, s{sT0}, {FLG_OFF}
buffer_store_dwordx4 v[12:15], v{vL16}, {WS}, s{sT0} offen sc1""")
    A(f"""s_cmp_eq_u32 s{sRole}, 2
s_cbranch_scc1 {L('noinit')}""")
    for i in range(4):
        A(f"buffer_store_dwordx4 v[16:19], v{vL16}, {WS}, s{sRa} offen offset:{i*1024} sc1")
    for slot in range(3):
        A(f"s_mov_b32 s{sT0}, {MIMG_OFF + slot * MIMG_SLOT}")
        A(f"buffer_store_dwordx2 v[20:21], v{vMst}, {WS}, s{sT0} offen sc1")
    A.label(L('noinit'))
    bits(A, 10, [(2, 2, 1), (0, 1, 0)], 11)
    A("v_mul_u32_u24 v10, 1152, v10")
    A("v_mov_b32 v22, v10")
    bits(A, 10, [(4, 2, 3), (1, 1, 2)], 11, False)
    bits(A, 22, [(4, 2, 5), (1, 1, 4)], 11, False)
    A(f"""s_lshl_b32 s{sT0}, s{sW}, 7
v_add_u32 v10, s{sT0}, v10""")
    for b in range(2):
        for t in range(4):
            A(f"global_load_dword v{24+4*b+t}, v10, s[{sMEM0}:{sMEM0+1}] offset:{512*(1-b) + 32*t}", manual=True)
    A(f"global_load_dwordx4 v[{R2}:{R2+3}], v22, s[{sMEM0}:{sMEM0+1}] offset:1024", manual=True)
    A(f"""v_bfe_u32 v11, v0, 4, 1
v_lshlrev_b32 v11, 1, v11
v_xor_b32 v11, v11, v0
v_and_b32 v12, 3, v11
v_lshlrev_b32 v13, 4, v12""")
    bits(A, 66, [(5, 1, 18), (2, 1, 17), (3, 1, 14), (4, 1, 13)], 11)
    A("v_add_u32 v66, v66, v13")
    bits(A, 67, [(3, 1, 16), (4, 1, 15), (5, 1, 14), (2, 1, 13)], 11)
    A("v_add_u32 v67, v67, v13")
    bits(A, 14, [(4, 1, 4), (3, 1, 2), (5, 1, 1), (2, 1, 0)], 11)
    A(f"""v_mul_u32_u24 v15, 1152, v14
v_lshrrev_b32 v11, 1, v12
v_mul_u32_u24 v11, {64 * 1152}, v11
v_and_b32 v12, 1, v12
v_lshl_add_u32 v12, v12, 4, v15
v_add_u32 v69, v12, v11
v_lshrrev_b32 v11, 4, v0
v_lshlrev_b32 v11, 1, v11
v_xor_b32 v11, v11, v0
v_and_b32 v11, 7, v11
v_lshlrev_b32 v13, 4, v11""")
    bits(A, 68, [(3, 1, 17), (4, 1, 14), (5, 1, 13)], 11)
    A("v_add_u32 v68, v68, v13")
    bits(A, 70, [(3, 1, 13), (4, 1, 16), (5, 1, 15)], 11)
    A("v_add_u32 v70, v70, v13")
    bits(A, 14, [(3, 1, 0), (4, 1, 2), (5, 1, 4)], 11)
    A("""v_mul_u32_u24 v14, 1152, v14
v_add_u32 v71, v14, v13""")
    sCV, sCO, sCO8, sLds, sCX = sT1, sT2, sT3, sSeg, sNeed
    A(f"""s_lshl_b32 s{sCV}, s{sH}, 8
s_and_b32 s{sT0}, s{sW}, 1
s_lshl_b32 s{sT0}, s{sT0}, 7
s_add_u32 s{sCX}, s{sCV}, s{sT0}
s_lshl_b32 s{sT0}, s{sW}, 6
s_add_u32 s{sCV}, s{sCV}, s{sT0}
s_mul_i32 s{sCO}, s{sH}, {128 * 1152}
s_lshl_b32 s{sT0}, s{sW}, 5
s_add_u32 s{sCO8}, s{sCO}, s{sT0}
s_add_u32 s{sCO8}, s{sCO8}, 1024
s_lshl_b32 s{sT0}, s{sW}, 7
s_add_u32 s{sCO}, s{sCO}, s{sT0}
s_mul_i32 s{sLds}, s{sW}, {L_WSZ}
s_add_u32 s{sLds}, s{sLds}, {L_W}
s_lshl_b32 s{sKXa}, s{sW}, 12
s_cmp_lt_u32 s{sW}, 2
s_cselect_b32 s{SRD_Q}, s{SRD_Q}, s{SRD_K}
s_cselect_b32 s{SRD_Q+1}, s{SRD_Q+1}, s{SRD_K+1}""")
    for p in range(4):
        A(f"""s_xor_b32 s{sT0}, s{sW}, {p}
s_lshl_b32 s{sQP+p}, s{sT0}, 19""")
    items = [('x', j, k5) for j in (1, 3, 4, 5, 6, 7, 8) for k5 in range(2)] + \
            [('o', rp, jj, k5) for rp, jj in ((0, 1), (1, 0), (1, 1)) for k5 in range(2)] + [('v', j) for j in (0, 2, 1, 3, 8, 4, 5)] + \
            [('x', 0, 0), ('x', 0, 1), ('x', 2, 0), ('x', 2, 1), ('o', 0, 0, 0), ('o', 0, 0, 1), ('v', 6), ('v', 7), ('o8',)]
    assert len(items) == 36
    NU_ = 9
    def issue(k):
        it = items[k]; un = k % NU_
        for i in range(4):
            rot = None
            if it[0] == 'x':
                s_, sb = SRD_Q, sCX
                if it[1] == 8:
                    so, vo = (512 + 32 * it[2] + 16 * (i >> 1) + 2 * (i & 1)) * 8192, 70
                else:
                    so, vo, rot = (256 * (1 - (it[1] & 1)) + 8 * it[2] + 4 * (i >> 1) + 32 * (i & 1)) * 8192, 68, it[1] >> 1
            elif it[0] == 'o':
                s_, sb, vo = SRD_O, sCO, 71
                so = (64 * it[2] + 32 * it[3] + 8 * (i >> 1) + 2 * (i & 1)) * 1152 + it[1] * 512
            elif it[0] == 'v':
                s_, sb = SRD_V, sCV
                if it[1] == 8:
                    so, vo = (512 + 32 * (i >> 1) + 16 * (i & 1)) * 8192, 67
                else:
                    so, vo, rot = (256 * (1 - (it[1] & 1)) + 8 * (i >> 1) + 4 * (i & 1)) * 8192, 66, it[1] >> 1
            else:
                s_, sb, vo = SRD_O, sCO8, 69
                so = (32 * (i >> 1) + 8 * (i & 1)) * 1152
            A(f"s_add_u32 m0, s{sLds if un < 8 else sKXa}, {(un * 4096 if un < 8 else 0) + i * 1024}")
            A(f"s_add_u32 s{sT0}, s{sb}, {so}")
            if rot is not None:
                A(f"s_add_u32 s{sT0}, s{sT0}, s{sQP + rot}")
            A(f"buffer_load_dwordx4 v{vo}, s[{s_}:{s_+3}], s{sT0} offen lds")
    ts(A, 4, SRD_WS, 10, dbg=(4, 'max'))
    for k in range(NU_):
        issue(k)
    ts(A, 5, SRD_WS, 10)
    A(f"""s_mul_i32 s{sT0}, s{sXcc}, s{sXcc}
s_lshl_b32 s{sT0}, s{sT0}, 10
s_add_u32 s{sT0}, s{sT0}, s{sXcc}
s_lshl_b32 s{sT0}, s{sT0}, 8
s_add_u32 s{sXcc}, s{sT0}, 1
v_mov_b32 v12, 128
v_mov_b32 v13, s{sXcc}
s_waitcnt vmcnt(36)
s_barrier
s_cmp_lg_u32 s{sW}, 0
s_cbranch_scc1 {L('arr')}
s_mov_b64 exec, 1
global_atomic_add v12, v13, s[{sDBG}:{sDBG+1}]
s_mov_b64 exec, -1""")
    A.label(L('arr'))
    A(f"""s_mov_b32 s{sKMa}, 0x05040100
s_mov_b32 s{sTa}, 0x07060302""")
    for b, R in ((0, R0), (1, R1)):
        x = 24 + 4 * b
        A(f"""v_perm_b32 v{R}, v{x+1}, v{x}, s{sKMa}
v_perm_b32 v{R+1}, v{x+3}, v{x+2}, s{sKMa}
v_perm_b32 v{R+2}, v{x+1}, v{x}, s{sTa}
v_perm_b32 v{R+3}, v{x+3}, v{x+2}, s{sTa}""")
    A(f"""v_and_b32 v10, 2, v0
v_cmp_eq_u32 vcc, 0, v10
v_mov_b32 v11, 0xeeee
v_mov_b32 v12, 0x4444
v_cndmask_b32 v{vIdx}, v11, v12, vcc""")
    bits(A, 10, [(0, 4, 5), (4, 2, 3)], 11)
    A(f"""s_and_b32 s{sT0}, s{sW}, 1
s_lshl_b32 s{sT0}, s{sT0}, 11
s_add_u32 s{sT0}, s{sT0}, {L_QK}
v_add_u32 v10, s{sT0}, v10
s_cmp_lt_u32 s{sW}, 2
s_cselect_b32 s{sT0}, 4, 0
v_add_u32 v{vQKw}, s{sT0}, v10""")
    bits(A, 10, [(0, 1, 4), (2, 2, 6), (4, 1, 5), (5, 1, 8)], 11)
    A(f"""s_lshl_b32 s{sT0}, s{sW}, 9
s_add_u32 s{sT0}, s{sT0}, {L_O}
v_add_u32 v{vOw}, s{sT0}, v10""")
    bits(A, 10, [(3, 3, 12), (0, 3, 4)], 11)
    bits(A, 12, [(5, 1, 12), (0, 5, 2)], 11)
    A(f"""s_lshl_b32 s{sT0}, s{sH}, 7
v_add_u32 v{vPst}, s{sT0}, v10
v_add_u32 v{vPc}, s{sT0}, v12
s_lshl_b32 s{sT0}, s{sW}, 15
s_add_u32 s{sP0}, s{sT0}, {PART_OFF}
s_add_u32 s{sP1}, s{sP0}, {4 * 32768}
s_lshl_b32 s{sT0}, s{sW}, 13
s_add_u32 s{sP2}, s{sT0}, {PART_OFF + 8 * 32768}
v_add_u32 v{vW}, s{sLds}, v{vL16}
s_mov_b32 s{sEx}, 0xcccccccc
s_mov_b32 s{sEx+1}, 0xcccccccc
s_add_u32 s{sT0}, s{sH}, s{sW}
s_and_b32 s{sT0}, s{sT0}, {NREP - 1}
s_mul_i32 s{sRep}, s{sT0}, {MREP}
s_lshl_b32 s{sTouch}, s{sW}, 12
s_mov_b32 s{sOnes}, 0x3f803f80
s_mov_b32 s{sOnes+1}, 0x3f803f80
s_mov_b32 s{sBig}, {fbits(2.0**60):#x}""")
    A(f"""v_and_b32 v10, 4, v0
v_cmp_eq_u32 vcc, 0, v10
v_mov_b32 v11, 0x3f800000
v_mov_b32 v12, 0x3f80
v_cndmask_b32 v11, v11, v12, vcc
v_and_b32 v10, 3, v0""")
    for d in range(4):
        A(f"""v_cmp_eq_u32 vcc, {d}, v10
v_cndmask_b32 v{20+d}, 0, v11, vcc""")
    A("v_mov_b64 v[42:43], v[20:21]")
    A("v_mov_b64 v[44:45], v[22:23]")
    bits(A, 64, [(5, 1, 10), (4, 1, 8), (4, 1, 5), (2, 2, 6), (0, 2, 3)], 11)
    bits(A, 65, [(5, 1, 11), (4, 1, 9), (2, 2, 7), (3, 2, 5), (0, 2, 3)], 11)
    ts(A, 6, SRD_WS, 10)
    for k in range(36):
        issued = min(k + NU_, 36)
        it = items[k]; un = k % NU_
        A(f"s_waitcnt vmcnt({4 * (issued - (k + 1))})")
        sbase = sLds if un < 8 else sKXa
        ub = un * 4096 if un < 8 else 0
        wide = it[0] in 'xo' and it[0] != 'o8'
        wb = []
        for n in range(4):
            if wide:
                k5 = it[-1]; tt = n & 1
                ch = (('q', 'k')[n >> 1], it[1]) if it[0] == 'x' else ('o', (2 * it[1] + (n >> 1), it[2]))
                A(f"v_xor_b32 v46, {32 * n}, v65")
                o0, o1 = ub, ub + 1024
            else:
                k5 = n >> 1; tt = n & 1
                ch = ('v', it[1]) if it[0] == 'v' else ('o', 8)
                A(f"v_xor_b32 v46, {32 * tt}, v64")
                o0, o1 = ub + k5 * 2048, ub + k5 * 2048 + 512
            A(f"v_add_u32 v46, s{sbase}, v46")
            if (ch, tt) in _blk:
                f, b = _blk[(ch, tt)]; b += 4 * k5
            else:
                f, b = 'v', 10 + 4 * n
                wb.append((b, lds_off(ch, tt, k5)))
            A(f"ds_read_b64_tr_b16 {rng(f, b, 2)}, v46 offset:{o0}")
            A(f"ds_read_b64_tr_b16 {rng(f, b + 2, 2)}, v46 offset:{o1}")
        A("s_waitcnt lgkmcnt(0)")
        if k + NU_ < 36:
            issue(k + NU_)
        for b, off in wb:
            A(f"ds_write_b128 v{vW}, v[{b}:{b+3}] offset:{off}")
    A("s_barrier")
    A(f"ds_write_b128 v{vL16}, v[42:45] offset:{L_SEL}")
    ts(A, 1, SRD_WS, 10, dbg=(1, 'max'))
    A(f"""v_mov_b32 v10, 128
s_mov_b32 s{sCnt}, 0""")
    A.label(L('rdv_loop'))
    A(f"""global_load_dword v12, v10, s[{sDBG}:{sDBG+1}] sc1
s_add_u32 s{sCnt}, s{sCnt}, 1
v_readfirstlane_b32 s{sT0}, v12
s_cmp_gt_u32 s{sCnt}, {POLL_MAX}
s_cbranch_scc1 {L('rdv_done')}
s_and_b32 s{sT1}, s{sT0}, 0xff
s_cmp_ge_u32 s{sT1}, 32
s_cbranch_scc1 {L('rdv_done')}
s_sleep 4
s_branch {L('rdv_loop')}""")
    A.label(L('rdv_done'))
    A(f"""s_lshl_b32 s{sT1}, s{sXcc}, 5
s_cmp_eq_u32 s{sT0}, s{sT1}
s_cselect_b32 s{sFast}, 1, 0
s_mov_b32 s{sStep}, 0
s_lshl_b32 s{sSeg}, s{sH}, 20
s_mov_b32 s{sMp}, {MIMG_OFF}
s_mov_b32 s{sMw}, {MIMG_OFF + MIMG_SLOT}
s_mov_b32 s{sReady}, 64
s_lshl_b32 s{sKF}, s{sH}, 12
s_add_u32 s{sKF}, s{sKF}, {FLG_OFF}
s_lshl_b32 s{sW10}, s{sW}, 10
s_sub_u32 s{sW10}, s{sW10}, 2048
s_mov_b32 s{SRD_K}, s{SRD_WS}
s_mov_b32 s{SRD_K+1}, s{SRD_WS+1}
s_cmp_ge_u32 s{sW}, 2
s_cselect_b32 s{SRD_K+2}, {WS_BYTES}, 0
s_mov_b32 s{SRD_R}, s{SRD_WS}
s_mov_b32 s{SRD_R+1}, s{SRD_WS+1}
s_cmp_eq_u32 s{sRole}, 1
s_cselect_b32 s{SRD_R+2}, {WS_BYTES}, 0
s_mov_b32 s{SRD_R+3}, 0x20000
s_add_u32 m0, s{sW11}, {L_KX}""")
    if flags:
        A(f"s_mov_b32 s{sNeed}, 0")
        kv_wait(A, L('kv0'), 16)
    if dbg:
        A(f"s_memtime s[{sTm}:{sTm+1}]")
        A("s_waitcnt lgkmcnt(0)")
        A(f"s_mov_b32 s{sTm+5}, s{sTm}")
        for n in range(NST): A(f"s_mov_b32 s{80+n}, 0")
    ts(A, 2, SRD_WS, 12, dbg=(2, 'max'))
    A(f"s_cmp_eq_u32 s{sFast}, 0")
    A(f"s_cbranch_scc1 {L('S_pre')}")
    gen_loop(A, dbg, tag + '_F', '', L('end'), flags)
    gen_loop(A, dbg, tag + '_S', ' sc1', L('end'), flags)
    A.label(L('end'))
    ts(A, 3, SRD_WS, 10, dbg=(3, 'max'))
    if dbg:
        A(f"""s_memtime s[{sTm+2}:{sTm+3}]
s_waitcnt lgkmcnt(0)
s_sub_u32 s{sT0}, s{sTm+2}, s{sTm}
v_mov_b32 v10, s{sT0}
v_mov_b32 v11, s{sFast}
s_lshl_b32 s{sT1}, s{sH}, 8
s_lshl_b32 s{sT2}, s{sW}, 6
s_add_u32 s{sT1}, s{sT1}, s{sT2}
s_add_u32 s{sT1}, s{sT1}, {DBG_OFF + 0x200000}
v_mov_b32 v12, 0
s_sub_u32 s{sT0}, s{sTm}, s{sTm+6}
v_mov_b32 v13, s{sT0}
s_mov_b64 exec, 1
buffer_store_dwordx2 v[10:11], v12, {WS}, s{sT1} offen
buffer_store_dword v13, v12, {WS}, s{sT1} offen offset:8""")
        for n in range(NST):
            A(f"v_mov_b32 v13, s{80+n}")
            A(f"buffer_store_dword v13, v12, {WS}, s{sT1} offen offset:{16+4*n}")
    A("s_endpgm")


def gen_loop(A, dbg, tag, SC, endlab, flags):
    L = lambda x: f'{tag}_{x}'
    def stamp(n):
        if dbg == 5:
            A(f"""s_memrealtime s[{sTm+2}:{sTm+3}]
s_cmp_eq_u32 s{sStep}, {41 if n in (4, 5, 6, 7) else 40}
s_waitcnt lgkmcnt(0)
s_cselect_b32 s{80+n}, s{sTm+2}, s{80+n}""")
            return
        if dbg not in (2, 3): return
        A(f"""s_memtime s[{sTm+2}:{sTm+3}]
s_waitcnt lgkmcnt(0)
s_sub_u32 s{sTm+4}, s{sTm+2}, s{sTm+5}
s_add_u32 s{80+n}, s{80+n}, s{sTm+4}
s_mov_b32 s{sTm+5}, s{sTm+2}""")
    aQ, aK, aV = 10, 18, 26
    R0, R1, R2 = 34, 38, 58
    SB = 42
    def lds_half(ch, tt, k5, dst, manual=False):
        A(f"ds_read_b128 v[{dst+4*k5}:{dst+4*k5+3}], v{vW} offset:{lds_off(ch, tt, k5)}", manual)
    def lds_blk(ch, tt, dst, manual=False):
        lds_half(ch, tt, 0, dst, manual); lds_half(ch, tt, 1, dst, manual)
    def sched(mf, side):
        side = sorted(enumerate(side), key=lambda x: (x[1][1], x[0]))
        for g, m in enumerate(mf):
            m()
            n = 0
            for e in list(side):
                rel, dl, fn = e[1]
                if rel <= g and (n == 0 or dl <= g):
                    fn(); side.remove(e); n += 1
        assert not side, side
    def zero(b, n):
        for r in range(b, b + n, 2):
            A(f"v_mov_b64 v[{r}:{r+1}], 0")
    def smf(acc, a, b):
        A(f"v_smfmac_f32_16x16x64_bf16 v[{acc}:{acc+3}], v[{a}:{a+3}], {b}, v{vIdx}")
    cur_p = [None]
    def xr(p):
        A(f"v_xor_b32 v62, {p * 2048}, v63")
        cur_p[0] = p
    def rdA(slot, buf, manual=False):
        p = slot >> 1
        if p == 0:
            base = 63
        else:
            if cur_p[0] != p:
                xr(p)
            base = 62
        A(f"ds_read_b128 v[{buf}:{buf+3}], v{base} offset:{L_M + (slot & 1) * 1024}", manual)
    def ps(a, dst, part):
        if part == 0: A(f"v_add_f32 v{a}, v{a}, v{a+2}")
        elif part == 1: A(f"v_add_f32 v{a+1}, v{a+1}, v{a+3}")
        else: A(f"v_cvt_pk_bf16_f32 v{dst}, v{a}, v{a+1}")
    def psum(a, dst):
        for part in range(3): ps(a, dst, part)
    def tagit(r):
        A(f"v_bfi_b32 v{r}, 1, s{sTag}, v{r}")
    def rdX(u, x):
        A(f"ds_read_b64_tr_b16 v[{x}:{x+1}], v{vL8} offset:{L_QK + u*1024}")
        A(f"ds_read_b64_tr_b16 v[{x+2}:{x+3}], v{vL8} offset:{L_QK + u*1024 + 512}")
    def pre_a():
        lds_blk(('q', 0), 0, SB, True); lds_blk(('q', 0), 1, SB + 8, True)
        A(f"""s_lshr_b32 s{sKMa}, s{sSeg}, 1
s_add_u32 s{sKMa}, s{sKMa}, {MEM_OFF}
s_lshr_b32 s{sT1}, s{sW11}, 2
s_add_u32 s{sVMa}, s{sKMa}, s{sT1}
s_add_u32 s{sVMa}, s{sVMa}, 4096
s_add_u32 s{sKMa}, s{sKMa}, s{sW10}
s_add_u32 s{sKXa}, s{sSeg}, s{sW11}
s_add_u32 s{sVXa}, s{sKXa}, 8192
s_cmp_lt_u32 s{sStep}, 63
s_cselect_b32 s{sT0}, {0 if 'a' in EXP else 16384}, 0
s_add_u32 s{sSeg}, s{sSeg}, s{sT0}
s_add_u32 s{sTa}, s{sSeg}, s{sTouch}
s_add_u32 s{sNeed}, s{sStep}, 1
s_min_u32 s{sNeed}, s{sNeed}, 63
s_add_u32 s{sGb}, s{sMw}, s{sRep}
s_add_u32 s{sGa}, s{sGb}, s{sW11}
s_add_u32 s{sGb}, s{sGb}, 8192""")
    def pre_b():
        zero(10, 24)
        A(f"""v_add_u32 v63, s{sW11}, v{vL16}
v_xor_b32 v62, 2048, v63
s_and_b32 s{sTag}, s{sStep}, 1
s_sub_u32 s{sTagM}, 0, s{sTag}""")
    A.label(L('pre'))
    pre_a(); pre_b()
    A("s_waitcnt vmcnt(0) lgkmcnt(0)")
    A(f"s_branch {L('top')}")
    A.label(L('gather'))
    GS = [(R0, R2), (R1, VX)]
    def gpoll(k, srd_=SRD_WS):
        a, b = GS[k]
        A(f"""buffer_load_dwordx4 v[{a}:{a+3}], v{vL16}, s[{srd_}:{srd_+3}], s{sGa} offen sc1
buffer_load_dwordx4 v[{b}:{b+3}], v{vL16}, s[{srd_}:{srd_+3}], s{sGb} offen sc1""", manual=True)
    def gchk(k, n):
        a, b = GS[k]
        A(f"""s_waitcnt vmcnt({n})
v_max3_u32 v{vDummy}, v{a}, v{a+2}, v{b}
v_max_u32 v{vDummy}, v{vDummy}, v{b+2}
v_cmp_eq_u32 vcc, s{sPz}, v{vDummy}""")
        if dbg in (2, 3): A(f"s_add_u32 s91, s91, 1")
        A(f"s_cbranch_vccz {L('topb' if k else 'top')} ;exit")
    A.label(L('gather2'))
    stamp(5)
    if flags: kv_eval(A, vDummy)
    pre_b()
    A(f"""s_mov_b32 s{sCnt}, 0
s_mov_b32 s{sMp}, s{sMw}
s_add_u32 s{sMw}, s{sMw}, {MIMG_SLOT}
s_cmp_eq_u32 s{sMw}, {MIMG_OFF + 3 * MIMG_SLOT}
s_cselect_b32 s{sMw}, {MIMG_OFF}, s{sMw}
s_cmp_lg_u32 s{sRole}, 1
s_cbranch_scc1 {L('g_poll')} ;exit""")
    gchk(0, 2)
    A.label(L('g_poll'))
    for n in range(3):
        gpoll(0)
        gchk(0, 0)
    A(f"""s_add_u32 s{sCnt}, s{sCnt}, 1
s_cmp_lt_u32 s{sCnt}, {POLL_MAX}
s_cbranch_scc1 {L('g_poll')} ;nofence""")
    A.label(L('top'))
    stamp(6)
    groups = [('q', 0), ('v', 0), ('q', 8), ('k', 0), ('k', 8), ('v', 8), ('q', 2), ('v', 2), ('q', 4), ('k', 2), ('k', 4), ('v', 4),
              ('q', 6), ('k', 6), ('v', 6), ('q', 1), ('k', 1), ('q', 3), ('q', 5), ('q', 7), ('k', 3), ('k', 5), ('k', 7)]
    abuf = {0: R0, 8: R2, 2: R0, 4: R2, 6: R0, 1: R1, 3: R2, 5: R0, 7: R1}
    KB = [SB, SB + 8]
    def rdK(u, t=None):
        k = KB[u & 1]
        if t in (None, 0): A(f"ds_read_b128 v[{k}:{k+3}], v{vL16} offset:{L_KX + u*1024}")
        if t in (None, 1): A(f"ds_read_b128 v[{k+4}:{k+7}], v{vL16} offset:{L_KX + 4096 + u*1024}")
    def bar(n, st=False):
        A("s_waitcnt lgkmcnt(W)")
        A("s_barrier")
        if dbg == 5 and st: stamp(7)
    def chk(buf, lab, part):
        if part == 0:
            A(f"v_cmp_eq_u32 s[{sT2+1}:{sT2+2}], s{sPz}, v{buf}")
        elif part == 1:
            A(f"v_cmp_eq_u32 vcc, s{sPz}, v{buf+2}")
        else:
            A(f"s_or_b64 vcc, vcc, s[{sT2+1}:{sT2+2}]")
            A(f"s_cbranch_scc1 {L(lab)} ;exit")
            A.label(L(lab + 'r') + ' ;soft')
    def kvchk():
        if flags:
            A(f"""s_cmp_le_u32 s{sReady}, s{sNeed}
s_cbranch_scc1 {L('kvw')} ;exit""")
            A.label(L('kvr') + ' ;soft')
    def dump(which):
        A(f"""s_mul_i32 s{sT0}, s{sStep}, 16384
s_add_u32 s{sT0}, s{sT0}, {DBG_OFF}
s_cmp_eq_u32 s{sH}, 0
s_cselect_b32 s{sT0}, s{sT0}, {DBG_OFF + 0x100000}
s_add_u32 s{sT1}, s{sT0}, 8192""")
        if which == 0:
            A(f"""buffer_store_dwordx4 v[{R0}:{R0+3}], v63, {WS}, s{sT0} offen
buffer_store_dwordx4 v[{R2}:{R2+3}], v{vL16}, {WS}, s{sT1} offen""")
        else:
            A(f"buffer_store_dwordx4 v[{R1}:{R1+3}], v63, {WS}, s{sT0} offen offset:1024")
    def wq(t, r):
        A(f"ds_write_b32 v{vQKw}, v{r} offset:{t * 512}")
    mf = []
    for ch in groups:
        acc = {'q': aQ, 'k': aK, 'v': aV}[ch[0]]
        for tt in range(2):
            b = blk_regs(ch, tt) if (ch, tt) in _blk else rng('v', SB + 8 * tt, 8)
            mf.append(lambda acc=acc, tt=tt, ch=ch, b=b: smf(acc + 4 * tt, abuf[ch[1]], b))
    def stream(ch, rel):
        return [(rel, rel + 1, lambda: lds_half(ch, 0, 0, SB)), (rel, rel + 2, lambda: lds_half(ch, 0, 1, SB)),
                (rel + 1, rel + 2, lambda: lds_half(ch, 1, 0, SB + 8)), (rel + 1, rel + 3, lambda: lds_half(ch, 1, 1, SB + 8))]
    cur_p[0] = 1
    TG = int(os.environ.get('TG', '15'))
    G1G = int(os.environ.get('G1G', '4'))
    BA = int(os.environ.get('BA', '8'))
    def g1():
        A(f"""s_cmp_lg_u32 s{sStep}, 0
s_cselect_b64 exec, -1, 0""")
        A(f"buffer_load_dwordx4 v[{R1}:{R1+3}], v{vL16}, {WS}, s{sGa} offen offset:1024 sc1", manual=True)
        A("s_mov_b64 exec, -1")
    side = [(0, 0, lambda: lds_blk(('k', 0), 0, SB)), (1, 1, lambda: lds_blk(('k', 0), 1, SB + 8)),
        (2, 2, lambda: (A(f"ds_write_b128 v63, v[{R0}:{R0+3}] offset:{L_M}"), dump(0) if dbg == 1 else None)),
        (5, 5, lambda: A(f"buffer_load_dwordx4 v{vL16}, {WS}, s{sKXa} offen sc1 lds")),
        (BA, BA, lambda: (bar('w', True), rdA(2, R0))),
        (BA + 1, 10, lambda: xr(2)),
        (9, 9, lambda: A(f"buffer_load_dwordx4 v{vL16}, {WS}, s{sKXa} offen offset:1024 sc1 lds")),
        (10, 10, lambda: A(f"buffer_load_dwordx4 v[{VX}:{VX+3}], v{vL16}, {WS}, s{sVXa} offen sc1", manual=True)),
        (11, 11, lambda: rdA(4, R2)),
        (11, 11, lambda: A(f"buffer_load_dwordx4 v[{VX+4}:{VX+7}], v{vL16}, {WS}, s{sVXa} offen offset:1024 sc1", manual=True)),
        (G1G, G1G, g1),
        (16, 17, lambda: xr(3)),
        (19, 19, lambda: rdA(6, R0)),
        (20, 20, lambda: (A("s_waitcnt vmcnt(%d)" % (6 if flags else 5)), chk(R1, 'late1', 0))),
        (21, 21, lambda: chk(R1, 'late1', 1)),
        (22, 22, lambda: (chk(R1, 'late1', 2), A(f"ds_write_b128 v63, v[{R1}:{R1+3}] offset:{L_M + 1024}"), dump(1) if dbg == 1 else None)),
        (23, 23, lambda: xr(1)),
        (4, 6, lambda: A(f"v_lshrrev_b32 v{vDummy}, 5, v{vL16}")),
        (7, TG - 1, lambda: A(f"v_lshlrev_b32 v{vDummy}, 7, v{vDummy}")),
        (28, 28, lambda: (bar('w'), rdA(3, R2))),
        (29, 29, lambda: xr(2)),
        (30, 30, lambda: rdA(5, R0)),
        (31, 32, lambda: xr(3)),
        (33, 33, lambda: rdA(7, R1)),
        (TG, TG, lambda: A(f"buffer_load_dword v{vDummy}, v{vDummy}, {WS}, s{sTa} offen sc1", manual=True)),
        (40, 40, lambda: ps(aQ, aQ + 2, 0)), (41, 41, lambda: ps(aQ, aQ + 2, 1)), (42, 42, lambda: ps(aQ, aQ + 2, 2)),
        (43, 43, lambda: (ps(aQ + 4, aQ + 3, 0), wq(0, aQ + 2))), (44, 44, lambda: ps(aQ + 4, aQ + 3, 1)),
        (45, 45, lambda: ps(aQ + 4, aQ + 3, 2)),
    ] + stream(('q', 2), 6) + stream(('k', 2), 12) + stream(('v', 6), 18)
    NBB = 0
    side += [(34, 36, lambda: lds_half(('v', 7), 0, 0, SB)), (34, 37, lambda: lds_half(('v', 7), 0, 1, SB)),
             (34, 38, lambda: lds_half(('v', 7), 1, 0, SB + 8)), (34, 39, lambda: lds_half(('v', 7), 1, 1, SB + 8))]
    if flags:
        side.append((3, 3, kvchk))
        side.append((TG + 1, TG + 2, lambda: A(f"v_lshrrev_b32 v{vDummy}, 2, v{vL16}")))
        side.append((TG + 3, TG + 3, lambda: A(f"buffer_load_dword v{vDummy}, v{vDummy}, {WS}, s{sKF} offen sc1", manual=True)))
    sched(mf, side)
    def vs(slot, buf, tts=(0, 1)):
        for tt in tts:
            b = blk_regs(('v', slot), tt) if (('v', slot), tt) in _blk else rng('v', SB + 8 * tt, 8)
            smf(aV + 4 * tt, buf, b)
    vs(3, R2, (0,))
    wq(1, aQ + 3)
    psum(aK, aQ + 4)
    wq(2, aQ + 4)
    psum(aK + 4, aQ + 5)
    wq(3, aQ + 5)
    vs(3, R2, (1,))
    A(f"buffer_store_dwordx4 v[{aQ+2}:{aQ+5}], v{vL16}, s[{SRD_K}:{SRD_K+3}], s{sKMa} offen sc1")
    vs(7, R1); rdA(1, R1)
    vs(5, R0, (0,))
    A("s_waitcnt lgkmcnt(W) vmcnt(%d)" % (3 if flags else 2))
    A("s_barrier")
    stamp(0)
    S0, S1, SM = 10, 14, 18
    XB = [22, R2]
    VMr = 28
    def pubk(u):
        if 'k' in EXP: return
        x = XB[u & 1]
        A(f"""s_cmp_eq_u32 s{sW}, {u}
s_cselect_b64 exec, -1, 0
buffer_store_dwordx4 v[{x}:{x+3}], v{vL16}, {WS}, s{sKMa} offen offset:{u*1024} sc1
s_mov_b64 exec, -1""")
    def sc(u, ex=()):
        x, k = XB[u & 1], KB[u & 1]
        c = lambda r: '0' if u == 0 else f'v[{r}:{r+3}]'
        ops = [f"v_mfma_f32_16x16x32_bf16 v[{SM}:{SM+3}], v[{x}:{x+3}], v[{x}:{x+3}], {c(SM)}",
               f"v_mfma_f32_16x16x32_bf16 v[{S0}:{S0+3}], v[{k}:{k+3}], v[{x}:{x+3}], {c(S0)}",
               f"v_mfma_f32_16x16x32_bf16 v[{S1}:{S1+3}], v[{k+4}:{k+7}], v[{x}:{x+3}], {c(S1)}"]
        for n, o in enumerate(ops):
            A(o)
            if n < len(ex) and ex[n]: ex[n]()
    rdX(0, XB[0]); rdK(0); rdX(1, XB[1]); rdK(1)
    vs(5, R0, (1,))
    rdX(2, R0)
    vs(1, R1)
    rdX(3, R1)
    sc(0, (None, lambda: rdK(2, 0), lambda: rdK(2, 1)))
    XB[0] = R0
    A(f"v_mov_b64 v[22:23], s[{sOnes}:{sOnes+1}]")
    sc(1, (lambda: ps(aV, VMr, 0), lambda: (rdK(3, 0), ps(aV, VMr, 1)), lambda: rdK(3, 1)))
    XB[1] = R1
    A(f"v_mov_b64 v[24:25], s[{sOnes}:{sOnes+1}]")
    sc(2, (lambda: ps(aV + 4, VMr + 1, 0), lambda: ps(aV + 4, VMr + 1, 1), lambda: lds_blk(('o', (0, 0)), 0, 42)))
    sc(3, (lambda: ps(aV, VMr, 2), lambda: ps(aV + 4, VMr + 1, 2), lambda: lds_blk(('o', (0, 0)), 1, 50)))
    stamp(1)
    sv = [S0, S0+1, S0+2, S0+3, S1, S1+1, S1+2, S1+3, SM, SM+1]
    PX, VMr = 58, 28
    O0, O1, LSUM, ONE = 34, 38, 30, 22
    A(f"""v_mul_f32 v{SM}, s{sC}, v{SM}
v_mul_f32 v{SM+1}, s{sC}, v{SM+1}
buffer_store_dwordx2 v[{VMr}:{VMr+1}], v{vL8}, {WS}, s{sVMa} offen sc1
s_cmp_eq_u32 s{sStep}, {NSTEPS - 1}
v_exp_f32 v62, v{SM}
v_exp_f32 v63, v{SM+1}
s_cbranch_scc1 {endlab} ;exit
v_exp_f32 v26, v{sv[0]}
v_exp_f32 v27, v{sv[1]}
v_cvt_pk_bf16_f32 v20, v62, v63
v_mov_b32 v21, 0
v_exp_f32 v32, v{sv[2]}
v_exp_f32 v33, v{sv[3]}
v_mfma_f32_16x16x16_bf16 v[{O0}:{O0+3}], v[{VMr}:{VMr+1}], v[20:21], 0
v_cvt_pk_bf16_f32 v63, v62, v63
v_mov_b32 v62, 0
v_cvt_pk_bf16_f32 v{PX}, v26, v27
v_exp_f32 v26, v{sv[4]}
v_mfma_f32_16x16x16_bf16 v[{O1}:{O1+3}], v[{VMr}:{VMr+1}], v[62:63], 0
v_exp_f32 v27, v{sv[5]}
v_cvt_pk_bf16_f32 v{PX+1}, v32, v33
v_exp_f32 v62, v{sv[6]}
v_mfma_f32_16x16x16_bf16 v[{LSUM}:{LSUM+3}], v[{ONE}:{ONE+1}], v[20:21], 0
v_exp_f32 v63, v{sv[7]}
v_cvt_pk_bf16_f32 v{PX+2}, v26, v27
v_cvt_pk_bf16_f32 v{PX+3}, v62, v63
v_mfma_f32_16x16x32_bf16 v[{LSUM}:{LSUM+3}], v[{ONE}:{ONE+3}], v[{PX}:{PX+3}], v[{LSUM}:{LSUM+3}]
v_mfma_f32_16x16x32_bf16 v[{O0}:{O0+3}], v[{VX}:{VX+3}], v[{PX}:{PX+3}], v[{O0}:{O0+3}]
v_mfma_f32_16x16x32_bf16 v[{O1}:{O1+3}], v[{VX+4}:{VX+7}], v[{PX}:{PX+3}], v[{O1}:{O1+3}]
v_rcp_f32 v31, v30""")
    def norm():
        A(f"s_mov_b64 exec, s[{sEx}:{sEx+1}]")
        for t, o in enumerate((O0, O1)):
            A(f"v_pk_mul_f32 v[{o}:{o+1}], v[{o}:{o+1}], v[30:31] op_sel:[0,1] op_sel_hi:[1,1]")
            A(f"v_pk_mul_f32 v[{o+2}:{o+3}], v[{o+2}:{o+3}], v[30:31] op_sel:[0,1] op_sel_hi:[1,1]")
            A(f"v_cvt_pk_bf16_f32 v{PX + 2*t}, v{o}, v{o+1}")
            A(f"v_cvt_pk_bf16_f32 v{PX + 2*t + 1}, v{o+2}, v{o+3}")
            A(f"ds_write_b64 v{vOw}, v[{PX+2*t}:{PX+2*t+1}] offset:{8*t}")
    norm()
    A(f"""v_max_f32 v32, v30, v31
v_cmp_nlt_f32 vcc, v32, s{sBig}
s_mov_b64 exec, -1
s_cbranch_vccnz {L('slow')} ;exit""")
    A.label(L('slowret') + ' ;soft')
    lds_blk(('o', 8), 0, 34)
    zero(18, 8); zero(VX, 8)
    A("s_waitcnt lgkmcnt(W)")
    A("s_barrier")
    stamp(2)
    OA = [10, 14]
    A(f"ds_read_b128 v[{OA[0]}:{OA[0]+3}], v{vL16} offset:{L_O}")
    A(f"ds_read_b128 v[{OA[1]}:{OA[1]+3}], v{vL16} offset:{L_O + 1024}")
    zero(26, 8)
    ACT = {(2, 0): 18, (2, 1): 22, (3, 0): VX, (3, 1): VX + 4, (0, 0): 30, (0, 1): 18, (1, 0): 22, (1, 1): 34}
    RES = 58
    mf = []
    for r in (2, 3, 0, 1):
        if r == 0:
            mf.append(lambda: smf(26, OA[0], 'v[34:41]'))
            mf.append(lambda: smf(26, OA[1], blk_regs(('o', 8), 1)))
        for jj in ((0, 1) if r != 1 else (1, 0)):
            for tt in range(2):
                ch = ('o', (r, jj))
                b = blk_regs(ch, tt) if (ch, tt) in _blk else rng('v', SB + 8 * tt, 8)
                mf.append(lambda r=r, jj=jj, tt=tt, b=b: smf(ACT[(r, tt)], OA[jj], b))
    def P(a, dst, g0):
        return [(g0, g0, lambda: ps(a, dst, 0)), (g0, g0 + 1, lambda: ps(a, dst, 1)), (g0 + 1, g0 + 1, lambda: ps(a, dst, 2))]
    side = P(18, RES, 4) + [(6, 6, lambda: tagit(RES))] + P(22, RES + 1, 6) + P(VX, RES + 2, 8) + P(VX + 4, RES + 3, 9)
    side += [(8, 9, lambda: zero(18, 2)), (8, 9, lambda: zero(20, 2))]
    side += [(10, 10, lambda: A(f"buffer_store_dwordx4 v[{RES}:{RES+3}], v{vPst}, {WS}, s{sP1} offen{SC}"))]
    side += [(10, 11, lambda: lds_half(('o', (1, 0)), 0, 0, SB)), (10, 12, lambda: lds_half(('o', (1, 0)), 0, 1, SB)),
             (11, 12, lambda: lds_half(('o', (1, 0)), 1, 0, SB + 8)), (11, 13, lambda: lds_half(('o', (1, 0)), 1, 1, SB + 8))]
    side += P(26, 62, 11) + [(12, 12, lambda: tagit(62)), (12, 12, lambda: A(f"buffer_store_dword v62, v{vPc}, {WS}, s{sP2} offen{SC}"))]
    side += [(8, 11, lambda: zero(22, 2)), (8, 12, lambda: zero(24, 2)), (13, 13, lambda: zero(34, 2)), (13, 13, lambda: zero(36, 2))]
    side += P(30, RES, 15) + [(16, 16, lambda: tagit(RES))] + P(18, RES + 1, 16)
    side += [(15, 17, lambda: A(f"ds_read_b128 v[{VX}:{VX+3}], v{vL16} offset:{L_SEL}", manual=True))]
    sched(mf, side)
    psum(22, RES + 2)
    psum(34, RES + 3)
    A(f"buffer_store_dwordx4 v[{RES}:{RES+3}], v{vPst}, {WS}, s{sP0} offen{SC}")
    D = VX + 4
    def rpoll(srd_):
        for i in range(4):
            A(f"buffer_load_dwordx4 v[{10+4*i}:{13+4*i}], v{vL16}, s[{srd_}:{srd_+3}], s{sRa} offen offset:{i*1024} sc1", manual=True)
    stamp(3)
    A(f"s_add_u32 s{sStep}, s{sStep}, 1")
    ts(A, 8, SRD_WS, 62, sStep)
    pre_a()
    A(f"""s_mov_b32 s{sCnt}, 0
s_cmp_eq_u32 s{sRole}, 0
s_waitcnt lgkmcnt(0) vmcnt({os.environ.get('WE', '3')})
s_cbranch_scc1 {L('r_poll')} ;exit
s_cmp_eq_u32 s{sRole}, 2
s_waitcnt vmcnt({os.environ.get('W0', '0')})
s_cbranch_scc1 {L('gather')} ;exit""")
    A.label(L('r_poll'))
    for n in range(3):
        rpoll(SRD_WS)
        if n == 0: A.label(L('r_chk'))
        for i in range(4):
            A(f"s_waitcnt vmcnt({3 - i})")
            A(f"v_mfma_f32_16x16x32_bf16 v[{D}:{D+3}], v[{VX}:{VX+3}], v[{10+4*i}:{13+4*i}], {'0' if i == 0 else rng('v', D, 4)}")
            if i == 1:
                A(f"v_bitop3_b32 v62, v10, v14, s{sTagM} bitop3:0x7e")
        A(f"""buffer_load_dwordx4 v[{R0}:{R0+3}], v{vL16}, s[{SRD_R}:{SRD_R+3}], s{sGa} offen sc1
buffer_load_dwordx4 v[{R2}:{R2+3}], v{vL16}, s[{SRD_R}:{SRD_R+3}], s{sGb} offen sc1""", manual=True)
        A(f"""v_bitop3_b32 v63, v18, v22, s{sTagM} bitop3:0x7e
v_bitop3_b32 v62, v62, v63, 1 bitop3:0xa8
v_cmp_ne_u32 vcc, 0, v62""")
        for r in range(D, D + 4):
            A(f"v_add_f32_dpp v{r}, v{r}, v{r} row_ror:8 row_mask:0xf bank_mask:0xf")
        A(f"""v_cvt_pk_bf16_f32 v{D}, v{D}, v{D+1}
v_cvt_pk_bf16_f32 v{D+1}, v{D+2}, v{D+3}""")
        if dbg == 2: A(f"s_add_u32 s90, s90, 1")
        A(f"s_cbranch_vccz {L('r_go')} ;exit")
    A(f"""s_add_u32 s{sCnt}, s{sCnt}, 1
s_cmp_lt_u32 s{sCnt}, {POLL_MAX}
s_cbranch_scc1 {L('r_poll')} ;nofence""")
    A.label(L('r_go'))
    A(f"buffer_store_dwordx2 v[{D}:{D+1}], v{vMst}, {WS}, s{sMw} offen{SC}")
    stamp(4)
    A(f"""v_mov_b64 v[62:63], s[{sPz}:{sPz+1}]
buffer_store_dwordx2 v[62:63], v{vMst}, {WS}, s{sMp} offen{SC}
s_cmp_eq_u32 s{sRole}, 1
s_cbranch_scc1 {L('gather2')} ;exit
s_branch {L('gather')} ;exit""")
    for lab, buf, so, off in (('late1', R1, sGa, 1024),):
        A.label(L(lab))
        A(f"s_mov_b32 s{sCnt}, 0")
        A.label(L(lab + 'l'))
        if dbg == 2: A(f"s_add_u32 s89, s89, 1")
        A(f"""buffer_load_dwordx4 v[{buf}:{buf+3}], v{vL16}, {WS}, s{so} offen offset:{off} sc1
s_add_u32 s{sCnt}, s{sCnt}, 1
v_cmp_eq_u32 s[{sT2+1}:{sT2+2}], s{sPz}, v{buf}
v_cmp_eq_u32 vcc, s{sPz}, v{buf+2}
s_or_b64 vcc, vcc, s[{sT2+1}:{sT2+2}]
s_cmp_gt_u32 s{sCnt}, {POLL_MAX}
s_cbranch_scc1 {L(lab + 'r')} ;exit
s_cbranch_vccnz {L(lab + 'l')} ;nofence
s_branch {L(lab + 'r')} ;exit""")
    if flags:
        A.label(L('kvw'))
        A("s_nop 3")
        kv_wait(A, L('kvl'), VX)
        A(f"s_branch {L('kvr')}")
    A.label(L('slow'))
    A("s_nop 15")
    A(f"""v_max3_f32 v30, v{sv[0]}, v{sv[1]}, v{sv[2]}
v_max3_f32 v31, v{sv[3]}, v{sv[4]}, v{sv[5]}
v_max3_f32 v30, v30, v{sv[6]}, v{sv[7]}
v_max3_f32 v31, v31, v{sv[8]}, v{sv[9]}
v_max_f32 v30, v30, v31
v_mov_b32 v31, v30
v_permlane32_swap_b32 v30, v31
v_max_f32 v30, v30, v31
v_mov_b32 v31, v30
v_permlane16_swap_b32 v30, v31
v_max_f32 v30, v30, v31""")
    for r in sv:
        A(f"v_sub_f32 v{r}, v{r}, v30")
    for r in sv:
        A(f"v_exp_f32 v{r}, v{r}")
    for n in range(4):
        A(f"v_cvt_pk_bf16_f32 v{PX+n}, v{sv[2*n]}, v{sv[2*n+1]}")
    A(f"""v_cvt_pk_bf16_f32 v20, v{SM}, v{SM+1}
v_mov_b32 v21, 0
v_mov_b32 v18, 0
v_mov_b32 v19, v20
v_mfma_f32_16x16x32_bf16 v[{O1}:{O1+3}], v[{VX+4}:{VX+7}], v[{PX}:{PX+3}], 0
v_mfma_f32_16x16x32_bf16 v[{O0}:{O0+3}], v[{VX}:{VX+3}], v[{PX}:{PX+3}], 0
v_mfma_f32_16x16x32_bf16 v[{LSUM}:{LSUM+3}], v[{ONE}:{ONE+3}], v[{PX}:{PX+3}], 0
v_mfma_f32_16x16x16_bf16 v[{O1}:{O1+3}], v[{VMr}:{VMr+1}], v[18:19], v[{O1}:{O1+3}]
v_mfma_f32_16x16x16_bf16 v[{O0}:{O0+3}], v[{VMr}:{VMr+1}], v[20:21], v[{O0}:{O0+3}]
v_mfma_f32_16x16x16_bf16 v[{LSUM}:{LSUM+3}], v[{ONE}:{ONE+1}], v[20:21], v[{LSUM}:{LSUM+3}]
v_rcp_f32 v31, v30""")
    norm()
    A(f"""s_mov_b64 exec, -1
s_waitcnt lgkmcnt(0)
s_branch {L('slowret')}""")
```

```python
import os
from layout import *
PROF = bool(os.environ.get('PROF'))
DBGP = bool(os.environ.get('DBGP'))
TS_OFF = DBG_OFF + 0x300000
def ts(A, slot, srd, vt, sslot=None, dbg=None):
    if DBGP:
        if dbg is None: return
        word, op = dbg
        A(f"""s_memrealtime s[92:93]
s_waitcnt lgkmcnt(0)
s_and_b32 s92, s92, 0xffffff""")
        if op == 'min':
            A("s_sub_u32 s92, 0x1000000, s92")
        A(f"""v_mov_b32 v{vt}, s92
v_mov_b32 v{vt+1}, {4*word}
s_mov_b64 exec, 1
global_atomic_umax v{vt+1}, v{vt}, s[28:29]
s_mov_b64 exec, -1""")
        return
    if not PROF: return
    A(f"""s_memrealtime s[92:93]
s_lshl_b32 s94, s2, 9
s_add_u32 s94, s94, {TS_OFF + 4 * slot}""")
    if sslot is not None:
        A(f"s_lshl_b32 s95, s{sslot}, 2\ns_add_u32 s94, s94, s95")
    A(f"""s_waitcnt lgkmcnt(0)
v_mov_b32 v{vt}, s92
v_mov_b32 v{vt+1}, 0
s_mov_b64 exec, 1
buffer_store_dword v{vt}, v{vt+1}, s[{srd}:{srd+3}], s94 offen
s_mov_b64 exec, -1""")
```

```python
from asmlib import Asm
from layout import *
from gemm import *
from chain import fbits, srd
import math
from prof import ts, PROF
POLL_MAX = 400000
CA = (18 ** -0.5) * math.log2(math.e)

sA, sW = 3, 4
SXA, SWQ, SWO, SWOB, SWS, SOUT = 8, 12, 16, 20, 24, 76
sDBG = 28
sT0, sT1, sT2, sLds, sCol, sSeg, sPair, sBuf, sXw, sLw, sSc, sOut, sCnt, sNext, sBufN, sFirst = range(32, 48)
WS = f"s[{SWS}:{SWS+3}]"
OUT = f"s[{SOUT}:{SOUT+3}]"
vL16, vTr, vTr1, vWo, vXo, vX, vTr0 = 1, 2, 3, 4, 5, 6, 7
XB = [8, 12, 16, 20]
ACC = 24
DEPTH = 12

def a_setup(A, pretouch=False):
    A(f"""s_load_dwordx4 s[60:63], s[0:1], 0
s_load_dwordx2 s[64:65], s[0:1], 16
s_load_dwordx2 s[66:67], s[0:1], 64
s_load_dwordx2 s[68:69], s[0:1], 80
s_load_dwordx4 s[72:75], s[0:1], 88
v_lshrrev_b32 v10, 6, v0
v_and_b32 v0, 63, v0
v_readfirstlane_b32 s{sW}, v10
s_waitcnt lgkmcnt(0)""")
    srd(A, SXA, 60, 2048 * 1152)
    srd(A, SWQ, 62, 576 * 3456)
    srd(A, SWO, 64, 576 * 1152)
    srd(A, SWOB, 66, 4096 * 1152)
    srd(A, SWS, 74, WS_BYTES)
    srd(A, SOUT, 68, 2048 * 2304)
    A(f"""s_mov_b32 s{sDBG}, s72
s_mov_b32 s{sDBG+1}, s73""")
    ts(A, 0, SWS, 10)
    emit_lane_consts(A, vL16, vTr0, 10, 11)
    if pretouch:
        A(f"""s_load_dwordx4 s[80:83], s[0:1], 40
s_load_dwordx2 s[84:85], s[0:1], 56
s_lshl_b32 s{sT0}, s{sA}, 2
s_add_u32 s{sT0}, s{sT0}, s{sW}
s_mul_i32 s{sT0}, s{sT0}, 9216
v_add_u32 v10, s{sT0}, v{vL16}
v_add_u32 v11, 4096, v10
v_add_u32 v12, 8192, v10
s_waitcnt lgkmcnt(0)""")
        n = 0
        for base in (80, 82, 84, 66):
            for k in range(9):
                A(f"global_load_dwordx4 v[{100+4*n}:{103+4*n}], v{10 + k // 4}, s[{base}:{base+1}] offset:{(k % 4) * 1024}", manual=True)
                n += 1
    emit_xdma_off(A, vXo, 1152, 10)
    A(f"""s_lshr_b32 s{sT0}, s{sW}, 1
s_mul_i32 s{sXw}, s{sT0}, {16 * 1152}
s_and_b32 s{sT0}, s{sW}, 1
s_mul_i32 s{sT0}, s{sT0}, 576
s_add_u32 s{sXw}, s{sXw}, s{sT0}
s_mul_i32 s{sLw}, s{sW}, 9216""")

def divmod_const(A, sq, sr, sx, d, st):
    m = (1 << 16) // d + 1
    A(f"""s_mul_i32 s{sq}, s{sx}, {m}
s_lshr_b32 s{sq}, s{sq}, 16
s_mul_i32 s{st}, s{sq}, {d}
s_sub_u32 s{sr}, s{sx}, s{st}""")

def wait_flags(A, lab, soff, nlanes=64, slp=8):
    A(f"""s_cmp_lg_u32 s{sW}, 0
s_cbranch_scc1 {lab}_d
v_lshrrev_b32 v10, 1, v{vL16}
v_min_u32 v10, {8 * (nlanes - 1)}, v10
s_mov_b32 s{sCnt}, 0""")
    A.label(lab)
    A(f"""buffer_load_dwordx2 v[20:21], v10, {WS}, s{soff} offen sc1
s_add_u32 s{sCnt}, s{sCnt}, 1
v_and_b32 v20, v20, v21
v_cmp_ne_u32 vcc, 1, v20
s_cmp_gt_u32 s{sCnt}, {POLL_MAX}
s_cbranch_scc1 {lab}_d
s_cbranch_vccz {lab}_d
s_sleep {slp}
s_branch {lab}""")
    A.label(lab + '_d')
    A("s_barrier")

def signal_wg(A, lab, base):
    A(f"""s_waitcnt vmcnt(0)
s_barrier
s_cmp_lg_u32 s{sW}, 0
s_cbranch_scc1 {lab}
s_lshl_b32 s{sT0}, s{sA}, 2
s_add_u32 s{sT0}, s{sT0}, {base}
v_mov_b32 v11, 1
s_mov_b64 exec, 1
buffer_store_dword v11, v{vL16}, {WS}, s{sT0} offen sc1
s_mov_b64 exec, -1""")
    A.label(lab)

def gemm_phase(A, tag, SX, xbase, xmods, SWt, ldw, stride, orient, epi, pre_x=None):
    L = lambda x: f'{tag}_{x}'
    d1 = emit_wdma_off(A, vWo, ldw, 10, 11)
    A(f"""s_mul_i32 s{sLds}, s{sW}, {DEPTH * 2048}
v_add_u32 v{vTr}, s{sLds}, v{vTr0}
v_xor_b32 v{vTr1}, 32, v{vTr}
s_lshl_b32 s{sCol}, s{sPair}, 6""")
    items = [(SWt, vWo, sCol, u * 32 * ldw, d1 * ldw, u, 18 + u) for u in range(18)]
    def xdma(sseg, sbuf):
        A(f"""s_min_u32 s{sT1}, s{sseg}, 63
s_mul_i32 s{sT1}, s{sT1}, {32 * 1152}
s_add_u32 s{sT1}, s{sT1}, s{sXw}
s_add_u32 s{sT1}, s{sT1}, {xbase}
s_add_u32 s{sT2}, s{sbuf}, s{sLw}""")
        emit_xdma(A, SX, vXo, sT1, None, sT2, sT0, None, 1152, xmods)
    A(f"""s_mov_b32 s{sSeg}, s{sFirst}
s_mov_b32 s{sBuf}, {3 * 36864}
s_add_u32 s{sNext}, s{sFirst}, {stride}
s_mov_b32 s{sBufN}, 0""")
    if pre_x is None:
        xdma(sSeg, sBuf)
    emit_wload(A, items, vTr, vTr1, sLds, sT0, DEPTH)
    if pre_x is not None:
        pre_x()
        xdma(sSeg, sBuf)
    A("s_barrier")
    xdma(sNext, sBufN)
    A("s_waitcnt vmcnt(9)")
    A.label(L('loop'))
    A("s_barrier")
    A(f"""s_add_u32 s{sNext}, s{sNext}, {stride}
s_add_u32 s{sBufN}, s{sBufN}, 36864
s_cmp_eq_u32 s{sBufN}, {4 * 36864}
s_cselect_b32 s{sBufN}, 0, s{sBufN}""")
    xdma(sNext, sBufN)
    A(f"v_add_u32 v{vX}, s{sBuf}, v{vL16}")
    emit_group_mma(A, [(0, orient), (18, orient)], vX, XB, ACC)
    A("s_waitcnt vmcnt(9)")
    epi()
    A(f"""s_add_u32 s{sSeg}, s{sSeg}, {stride}
s_add_u32 s{sBuf}, s{sBuf}, 36864
s_cmp_eq_u32 s{sBuf}, {4 * 36864}
s_cselect_b32 s{sBuf}, 0, s{sBuf}
s_cmp_lt_u32 s{sSeg}, 64
s_cbranch_scc1 {L('loop')}""")
    A("s_waitcnt vmcnt(0)")

def gen_a1(A, flags, tag='A1'):
    L = lambda x: f'{tag}_{x}'
    A(f"s_cmp_ge_u32 s{sA}, 126")
    A(f"s_cbranch_scc1 {L('skip')}")
    divmod_const(A, sT1, sFirst, sA, 9, sT0)
    A(f"""s_lshl_b32 s{sPair}, s{sT1}, 2
s_add_u32 s{sPair}, s{sPair}, s{sW}
s_min_u32 s{sPair}, s{sPair}, 53
s_cmp_lt_u32 s{sPair}, 18
s_cselect_b32 s{sSc}, {fbits(CA):#x}, 1.0
s_cmp_ge_u32 s{sT1}, 9
s_cbranch_scc1 {L('v')}""")
    A(f"""v_and_b32 v10, 15, v0
v_mul_u32_u24 v10, 2304, v10
v_lshrrev_b32 v11, 4, v0
v_lshl_add_u32 v56, v11, 3, v10""")
    def epi_qk():
        A(f"""s_mul_i32 s{sOut}, s{sSeg}, {32 * 2304}
s_add_u32 s{sOut}, s{sOut}, s{sCol}
s_add_u32 s{sOut}, s{sOut}, {QKA_OFF}
s_add_u32 s{sT0}, s{sOut}, {16 * 2304}""")
        for t in range(2):
            for tt in range(2):
                a = ACC + (2 * t + tt) * 4; d = 58 + 2 * (2 * t + tt)
                for r in range(4):
                    A(f"v_mul_f32 v{a+r}, s{sSc}, v{a+r}")
                A(f"v_cvt_pk_bf16_f32 v{d}, v{a}, v{a+1}")
                A(f"v_cvt_pk_bf16_f32 v{d+1}, v{a+2}, v{a+3}")
                A(f"buffer_store_dwordx2 v[{d}:{d+1}], v56, {WS}, s{sT0 if tt else sOut} offen offset:{32*t} sc1")
    gemm_phase(A, tag + 'q', SXA, 0, '', SWQ, 3456, 9, 'F', epi_qk)
    A(f"s_branch {L('done')}")
    A.label(L('v'))
    A(f"""v_and_b32 v10, 15, v0
v_lshlrev_b32 v10, 12, v10
v_bfe_u32 v11, v0, 4, 1
v_lshl_add_u32 v10, v11, 4, v10
v_lshrrev_b32 v11, 5, v0
v_lshl_add_u32 v56, v11, 3, v10""")
    def epi_v():
        A(f"""s_sub_u32 s{sOut}, s{sPair}, 36
s_lshl_b32 s{sOut}, s{sOut}, 17
s_lshl_b32 s{sT0}, s{sSeg}, 6
s_add_u32 s{sOut}, s{sOut}, s{sT0}
s_add_u32 s{sOut}, s{sOut}, {VTA_OFF}
s_add_u32 s{sT0}, s{sOut}, 65536""")
        for t in range(2):
            for tt in range(2):
                a = ACC + (2 * t + tt) * 4; d = 58 + 2 * (2 * t + tt)
                A(f"v_cvt_pk_bf16_f32 v{d}, v{a}, v{a+1}")
                A(f"v_cvt_pk_bf16_f32 v{d+1}, v{a+2}, v{a+3}")
                A(f"buffer_store_dwordx2 v[{d}:{d+1}], v56, {WS}, s{sT0 if t else sOut} offen offset:{32*tt} sc1")
    gemm_phase(A, tag + 'v', SXA, 0, '', SWQ, 3456, 9, 'T', epi_v)
    A.label(L('done'))
    if flags:
        emit_init_wait(A, L('iw'), sDBG, sW, sT0, sCnt, 10, POLL_MAX)
        signal_wg(A, L('sg'), FLG_OFF + 2048)
    A.label(L('skip'))
    A("s_barrier")

def gen_a3(A, flags, tag='A3'):
    L = lambda x: f'{tag}_{x}'
    A(f"s_cmp_ge_u32 s{sA}, 125")
    A(f"s_cbranch_scc1 {L('skip')}")
    divmod_const(A, sT1, sFirst, sA, 25, sT0)
    A(f"""s_lshl_b32 s{sPair}, s{sT1}, 2
s_add_u32 s{sPair}, s{sPair}, s{sW}
s_min_u32 s{sPair}, s{sPair}, 17
v_and_b32 v10, 15, v0
v_mul_u32_u24 v10, 2304, v10
v_lshrrev_b32 v11, 4, v0
v_lshl_add_u32 v56, v11, 3, v10""")
    def epi():
        A(f"""s_mul_i32 s{sOut}, s{sSeg}, {32 * 2304}
s_add_u32 s{sOut}, s{sOut}, s{sCol}
s_add_u32 s{sT0}, s{sOut}, {16 * 2304}""")
        for t in range(2):
            for tt in range(2):
                a = ACC + (2 * t + tt) * 4; d = 58 + 2 * (2 * t + tt)
                A(f"v_cvt_pk_bf16_f32 v{d}, v{a}, v{a+1}")
                A(f"v_cvt_pk_bf16_f32 v{d+1}, v{a+2}, v{a+3}")
                A(f"buffer_store_dwordx2 v[{d}:{d+1}], v56, {OUT}, s{sT0 if tt else sOut} offen offset:{32*t}")
    def pre():
        if flags:
            A(f"s_mov_b32 s{sT1}, {FLG_OFF + 4096 + 2048}")
            wait_flags(A, L('w'), sT1)
    gemm_phase(A, tag, SWS, OA_OFF, ' sc1', SWO, 1152, 25, 'F', epi, pre_x=pre)
    A.label(L('skip'))
    A("s_barrier")

def gen_a4(A, flags, tag='A4'):
    L = lambda x: f'{tag}_{x}'
    ts(A, 5, SWS, 10)
    A(f"s_cmp_ge_u32 s{sA}, 120")
    A(f"s_cbranch_scc1 {L('skip')}")
    divmod_const(A, sSeg, sPair, sA, 12, sT0)
    d1 = emit_wdma_off(A, vWo, 1152, 10, 11, 'perm')
    D4 = 16
    A(f"""s_mul_i32 s{sLds}, s{sW}, {D4 * 2048}
v_add_u32 v{vTr}, s{sLds}, v{vTr0}
v_xor_b32 v{vTr1}, 32, v{vTr}
s_mul_i32 s{sCol}, s{sPair}, 96
s_mul_i32 s{sT0}, s{sW}, {1024 * 1152}
s_add_u32 s{sT2}, s{sCol}, s{sT0}""")
    items = []
    for ks in range(32):
        items.append((SWOB, vWo, sT2, ks * 32 * 1152, d1 * 1152, ks, 32 + ks))
        items.append((SWOB, vWo, sT2, ks * 32 * 1152 + 64, d1 * 1152, 64 + ks, 96))
    emit_wload(A, items, vTr, vTr1, sLds, sT0, D4)
    A("s_barrier")
    ts(A, 6, SWS, 10, dbg=(10, 'max'))
    NBUF = 24
    bufs = [8 + 4 * i for i in range(13)] + [208 + 4 * i for i in range(11)]
    AC = 60
    A(f"""s_mul_i32 s{sT0}, s{sW}, 3072
v_add_u32 v72, s{sT0}, v{vL16}
s_lshl_b32 s{sT0}, s{sW}, 10
v_add_u32 v73, s{sT0}, v{vL16}
v_and_b32 v10, 15, v0
v_mul_u32_u24 v10, 2304, v10
v_lshrrev_b32 v11, 4, v0
v_lshl_add_u32 v74, v11, 3, v10""")
    A.label(L('loop'))
    if flags:
        A(f"""s_lshr_b32 s{sT1}, s{sSeg}, 2
s_lshl_b32 s{sT1}, s{sT1}, 12
s_and_b32 s{sT2}, s{sSeg}, 3
s_lshl_b32 s{sT2}, s{sT2}, 8
s_add_u32 s{sT1}, s{sT1}, s{sT2}
s_add_u32 s{sT1}, s{sT1}, {FLG_OFF + 1024}""")
        wait_flags(A, L('w'), sT1, 32, 2)
    A(f"""s_lshl_b32 s{sT0}, s{sSeg}, 17
s_lshl_b32 s{sT1}, s{sW}, 15
s_add_u32 s{sT0}, s{sT0}, s{sT1}
s_add_u32 s{sT0}, s{sT0}, {OB_OFF}""")
    def ld(ks):
        if ks and ks % 4 == 0:
            A(f"s_add_u32 s{sT0}, s{sT0}, 4096")
        b = bufs[ks % NBUF]
        A(f"buffer_load_dwordx4 v[{b}:{b+3}], v{vL16}, {WS}, s{sT0} offen offset:{(ks % 4) * 1024} sc1")
    for n in range(NBUF):
        ld(n)
    for ks in range(32):
        b = bufs[ks % NBUF]
        for t in range(3):
            f, wb = wreg(t * 32 + ks)
            a = AC + t * 4
            A(f"v_mfma_f32_16x16x32_bf16 v[{a}:{a+3}], {rng(f, wb, 4)}, v[{b}:{b+3}], {'0' if ks == 0 else rng('v', a, 4)}")
        if ks + NBUF < 32:
            ld(ks + NBUF)
    for i in range(3):
        A(f"ds_write_b128 v72, v[{AC+4*i}:{AC+4*i+3}] offset:{i*1024}")
    A("s_waitcnt lgkmcnt(0)")
    A("s_barrier")
    A(f"s_cmp_eq_u32 s{sW}, 3")
    A(f"s_cbranch_scc1 {L('nored')}")
    b = 8
    for p in range(4):
        A(f"ds_read_b128 v[{b+4*p}:{b+4*p+3}], v73 offset:{p * 3072}")
    A(f"""s_mul_i32 s{sOut}, s{sSeg}, {16 * 2304}
s_add_u32 s{sOut}, s{sOut}, s{sCol}
s_lshl_b32 s{sT0}, s{sW}, 5
s_add_u32 s{sOut}, s{sOut}, s{sT0}
s_add_u32 s{sOut}, s{sOut}, 1152""")
    for h in range(2):
        A(f"v_pk_add_f32 v[{b+2*h}:{b+2*h+1}], v[{b+2*h}:{b+2*h+1}], v[{b+4+2*h}:{b+5+2*h}]")
        A(f"v_pk_add_f32 v[{b+8+2*h}:{b+9+2*h}], v[{b+8+2*h}:{b+9+2*h}], v[{b+12+2*h}:{b+13+2*h}]")
        A(f"v_pk_add_f32 v[{b+2*h}:{b+2*h+1}], v[{b+2*h}:{b+2*h+1}], v[{b+8+2*h}:{b+9+2*h}]")
        A(f"v_cvt_pk_bf16_f32 v{b+4+h}, v{b+2*h}, v{b+2*h+1}")
    A(f"buffer_store_dwordx2 v[{b+4}:{b+5}], v74, {OUT}, s{sOut} offen")
    A.label(L('nored'))
    if PROF:
        A(f"s_lshr_b32 s{sT2}, s{sSeg}, 1")
        ts(A, 8, SWS, 76, sT2)
    A(f"""s_barrier
s_add_u32 s{sSeg}, s{sSeg}, 10
s_cmp_lt_u32 s{sSeg}, 128
s_cbranch_scc1 {L('loop')}""")
    ts(A, 7, SWS, 76, dbg=(11, 'max'))
    A.label(L('skip'))

def gen_a2(A, flags, tag='A2'):
    L = lambda x: f'{tag}_{x}'
    LK, LT, LV = 0, 65536, 73728
    sHd, sQ0, sIt, sPass, sBig = sSeg, sFirst, sNext, sBufN, sSc
    A(f"""s_lshr_b32 s{sHd}, s{sA}, 2
s_and_b32 s{sQ0}, s{sA}, 3
s_lshl_b32 s{sQ0}, s{sQ0}, 2
s_add_u32 s{sQ0}, s{sQ0}, s{sW}
s_lshl_b32 s{sQ0}, s{sQ0}, 7
s_mul_i32 s{sCol}, s{sHd}, 36
s_mov_b32 s{sBig}, {fbits(2.0**60):#x}""")
    A(f"""v_and_b32 v10, 31, v0
v_mul_u32_u24 v10, 2304, v10
v_lshrrev_b32 v11, 5, v0
v_lshl_add_u32 v12, v11, 4, v10
v_mul_u32_u24 v13, 2304, v0""")
    for p in range(5):
        A(f"""v_add_u32 v10, {64 * p}, v0
v_mul_u32_u24 v11, 3277, v10
v_lshrrev_b32 v11, 16, v11
v_mul_u32_u24 v19, 20, v11
v_sub_u32 v10, v10, v19
v_min_u32 v10, 17, v10
v_lshlrev_b32 v10, 12, v10
v_lshl_add_u32 v{14+p}, v11, 4, v10""")
    ts(A, 1, SWS, 10)
    if flags:
        emit_init_wait(A, L('iw'), sDBG, sW, sT0, sCnt, 10, POLL_MAX)
        A(f"s_mov_b32 s{sT1}, {FLG_OFF + 2048}")
        wait_flags(A, L('w'), sT1, 63)
    ts(A, 2, SWS, 10, dbg=(8, 'max'))
    A(f"""s_mul_i32 s{sT1}, s{sW}, {512 * 2304}
s_add_u32 s{sT1}, s{sT1}, s{sCol}
s_add_u32 s{sT1}, s{sT1}, {QKA_OFF + 1152}
s_lshl_b32 s{sT2}, s{sW}, 14""")
    for i in range(16):
        A(f"""s_add_u32 m0, s{sT2}, {LK + i * 1024}
s_add_u32 s{sT0}, s{sT1}, {i * 32 * 2304}
buffer_load_dwordx4 v12, {WS}, s{sT0} offen sc1 lds""")
    A(f"s_lshl_b32 s{sT2}, s{sW}, 11")
    for i in range(8):
        A(f"""s_add_u32 m0, s{sT2}, {LT + i * 256}
s_add_u32 s{sT0}, s{sT1}, {i * 64 * 2304 + 32}
buffer_load_dword v13, {WS}, s{sT0} offen sc1 lds""")
    A(f"""s_mul_i32 s{sT1}, s{sHd}, {18 * 4096}
s_lshl_b32 s{sT0}, s{sW}, 10
s_add_u32 s{sT1}, s{sT1}, s{sT0}
s_add_u32 s{sT1}, s{sT1}, {VTA_OFF}
s_mul_i32 s{sT2}, s{sW}, 20480""")
    for b in range(4):
        for p in range(5):
            A(f"""s_add_u32 m0, s{sT2}, {LV + b * 5120 + p * 1024}
s_add_u32 s{sT0}, s{sT1}, {b * 256}
buffer_load_dwordx4 v{14+p}, {WS}, s{sT0} offen sc1 lds""")
    QM = lambda i: 32 + 8 * i
    QT = lambda i: 36 + 8 * i
    A(f"""s_mul_i32 s{sT1}, s{sQ0}, 2304
s_add_u32 s{sT1}, s{sT1}, s{sCol}
s_add_u32 s{sT1}, s{sT1}, {QKA_OFF}""")
    for i in range(4):
        A(f"""s_add_u32 s{sT0}, s{sT1}, {i * 32 * 2304}
buffer_load_dwordx4 v[{QM(i)}:{QM(i)+3}], v12, {WS}, s{sT0} offen sc1
buffer_load_dword v{QT(i)}, v12, {WS}, s{sT0} offen offset:32 sc1
v_mov_b32 v{QT(i)+1}, 0
v_mov_b64 v[{QT(i)+2}:{QT(i)+3}], 0""")
    A("v_cmp_gt_u32 vcc, 32, v0")
    for i in range(4):
        A(f"v_cndmask_b32 v{QT(i)}, 0, v{QT(i)}, vcc")
    A(f"""v_mul_u32_u24 v10, 320, v0
s_add_u32 s{sT2}, s{sT2}, {LV + 18 * 16}
v_add_u32 v10, s{sT2}, v10
v_mov_b32 v20, 0x3f803f80
v_mov_b32 v21, 0x3f803f80
v_mov_b32 v22, 0x3f803f80
v_mov_b32 v23, 0x3f803f80
s_waitcnt vmcnt(0)
ds_write_b128 v10, v[20:23]""")
    KM = [64, 80]; KT = [68, 84]; VF = [72, 88]
    S = [96, 112]; P0, P1 = 128, 132
    O = lambda i: 16 * i
    NM = lambda i: 136 + 16 * i
    aK, aT, aV_ = 24, 25, 26
    for par in range(2):
        A(f"v_mov_b32 v{KT[par]+1}, 0")
        A(f"v_mov_b64 v[{KT[par]+2}:{KT[par]+3}], 0")
    for r in range(NM(0), NM(4), 2):
        A(f"v_mov_b64 v[{r}:{r+1}], 0")
    A(f"s_mov_b32 s{sPass}, 0")
    A("s_waitcnt lgkmcnt(0)")
    A("s_barrier")
    ts(A, 3, SWS, 10)
    def addr_init():
        A(f"""v_mov_b32 v{aK}, v{vL16}
v_and_b32 v10, 31, v0
v_lshlrev_b32 v{aT}, 2, v10
v_add_u32 v{aT}, {LT}, v{aT}
v_min_u32 v10, 19, v10
v_lshlrev_b32 v10, 4, v10
v_lshrrev_b32 v11, 5, v0
v_mul_u32_u24 v11, 320, v11
v_add3_u32 v{aV_}, v10, v11, s{sT0}""")
    def rdK(par, off, manual=False):
        A(f"ds_read_b128 v[{KM[par]}:{KM[par]+3}], v{aK} offset:{off * 1024}", manual)
        A(f"ds_read_b32 v{KT[par]}, v{aT} offset:{off * 128}", manual)
    def rdV(par, off, manual=False):
        A(f"ds_read_b128 v[{VF[par]}:{VF[par]+3}], v{aV_} offset:{off * 1280}", manual)
        A(f"ds_read_b128 v[{VF[par]+4}:{VF[par]+7}], v{aV_} offset:{off * 1280 + 640}", manual)
    def qk(par, i, sb, part):
        if part == 0:
            A(f"v_mfma_f32_32x32x16_bf16 v[{sb}:{sb+15}], v[{KM[par]}:{KM[par]+3}], v[{QM(i)}:{QM(i)+3}], v[{NM(i)}:{NM(i)+15}]")
        else:
            A(f"v_mfma_f32_32x32x16_bf16 v[{sb}:{sb+15}], v[{KT[par]}:{KT[par]+3}], v[{QT(i)}:{QT(i)+3}], v[{sb}:{sb+15}]")
    def pv(par, i, half):
        v = VF[par] + 4 * half; p = P1 if half else P0
        A(f"v_mfma_f32_32x32x16_bf16 a[{O(i)}:{O(i)+15}], v[{v}:{v+3}], v[{p}:{p+3}], a[{O(i)}:{O(i)+15}]")
    A.label(L('pass'))
    A(f"s_mov_b32 s{sT0}, {LV}")
    addr_init()
    rdK(0, 0); rdV(0, 0); rdV(1, 0)
    for r in range(64):
        A(f"v_accvgpr_write_b32 a{r}, 0")
    A(f"v_mov_b64 v[{P1}:{P1+1}], 0")
    A(f"v_mov_b64 v[{P1+2}:{P1+3}], 0")
    qk(0, 0, S[0], 0); qk(0, 0, S[0], 1)
    A(f"s_mov_b32 s{sIt}, 0")
    A("s_waitcnt lgkmcnt(0)")
    A("s_nop 7")
    A.label(L('loop'))
    for n in range(8):
        par, i = n >> 2, n & 3
        npar, ni = ((n + 1) >> 2) & 1, (n + 1) & 3
        ppar, pi = ((n - 1) >> 2) & 1, (n - 1) & 3
        sb, nsb = S[n & 1], S[(n + 1) & 1]
        def ex(q):
            for r in range(4 * q, 4 * q + 4):
                A(f"v_exp_f32 v{sb+r}, v{sb+r}")
        def cv(q):
            d = (P0, P0 + 2, P1, P1 + 2)[q]
            A(f"v_cvt_pk_bf16_f32 v{d}, v{sb+4*q}, v{sb+4*q+1}")
            A(f"v_cvt_pk_bf16_f32 v{d+1}, v{sb+4*q+2}, v{sb+4*q+3}")
        if i == 3:
            A("s_waitcnt lgkmcnt(0)")
        qk(npar, ni, nsb, 0)
        if i == 0:
            rdK(1 - par, par + 1, True)
        ex(0)
        qk(npar, ni, nsb, 1)
        cv(0); ex(1)
        pv(ppar, pi, 1)
        if i == 0:
            rdV(1 - par, par + 1, True)
        cv(1); ex(2)
        pv(par, i, 0)
        cv(2); ex(3)
        if n == 7:
            A(f"""v_add_u32 v{aK}, 2048, v{aK}
v_add_u32 v{aT}, 256, v{aT}
v_add_u32 v{aV_}, 2560, v{aV_}
s_add_u32 s{sIt}, s{sIt}, 1
s_cmp_lt_u32 s{sIt}, 32""")
        cv(3)
    A(f"s_cbranch_scc1 {L('loop')} ;nofence")
    pv(1, 3, 1)
    A("s_waitcnt lgkmcnt(0)")
    for i in range(4):
        A(f"""v_accvgpr_read_b32 v{100+2*i}, a{O(i)+10}
v_accvgpr_read_b32 v{101+2*i}, a{O(i)+10}
v_permlane32_swap_b32 v{100+2*i}, v{101+2*i}
v_rcp_f32 v{101+2*i}, v{100+2*i}""")
    A(f"""v_max3_f32 v108, v100, v101, v102
v_max3_f32 v109, v103, v104, v105
v_max3_f32 v108, v108, v106, v107
v_add_f32 v110, v100, v102
v_add_f32 v111, v104, v106
v_add_f32 v110, v110, v111
v_max_f32 v108, v108, v109
v_cmp_nlt_f32 vcc, v108, s{sBig}
v_cmp_u_f32 s[50:51], v110, v110
s_or_b64 vcc, vcc, s[50:51]
s_cmp_lg_u32 s{sPass}, 0
s_cbranch_scc1 {L('store')}
s_cbranch_vccz {L('store')}""")
    A(f"s_mov_b32 s{sT0}, {LV}")
    addr_init()
    for i in range(4):
        A(f"v_mov_b32 v{200+i}, 0xff800000")
    A(f"s_mov_b32 s{sIt}, 0")
    A.label(L('mx'))
    rdK(0, 0)
    for i in range(4):
        sb = S[i & 1]
        qk(0, i, sb, 0); qk(0, i, sb, 1)
        for r in range(0, 16, 2):
            A(f"v_max3_f32 v{200+i}, v{200+i}, v{sb+r}, v{sb+r+1}")
    A(f"""v_add_u32 v{aK}, 1024, v{aK}
v_add_u32 v{aT}, 128, v{aT}
s_add_u32 s{sIt}, s{sIt}, 1
s_cmp_lt_u32 s{sIt}, 64
s_cbranch_scc1 {L('mx')}""")
    for i in range(4):
        A(f"""v_mov_b32 v204, v{200+i}
v_permlane32_swap_b32 v{200+i}, v204
v_max_f32 v204, v204, v{200+i}
v_sub_f32 v204, 0, v204""")
        for r in range(16):
            A(f"v_mov_b32 v{NM(i)+r}, v204")
    A(f"s_mov_b32 s{sPass}, 1")
    A(f"s_branch {L('pass')}")
    A.label(L('store'))
    ts(A, 4, SWS, 10, dbg=(9, 'max'))
    A(f"""v_and_b32 v10, 31, v0
v_mul_u32_u24 v10, 1152, v10
v_lshrrev_b32 v11, 5, v0
v_lshl_add_u32 v12, v11, 3, v10
s_mul_i32 s{sT1}, s{sQ0}, 1152
s_add_u32 s{sT1}, s{sT1}, s{sCol}
s_add_u32 s{sT1}, s{sT1}, {OA_OFF}""")
    for i in range(4):
        o = NM(i)
        for r in range(10):
            A(f"v_accvgpr_read_b32 v{o+r}, a{O(i)+r}")
        for r in range(10):
            A(f"v_mul_f32 v{o+r}, v{o+r}, v{101+2*i}")
        for r in range(5):
            A(f"v_cvt_pk_bf16_f32 v{o+10+r}, v{o+2*r}, v{o+2*r+1}")
        A(f"""s_add_u32 s{sT0}, s{sT1}, {i * 32 * 1152}
buffer_store_dwordx2 v[{o+10}:{o+11}], v12, {WS}, s{sT0} offen sc1
buffer_store_dwordx2 v[{o+12}:{o+13}], v12, {WS}, s{sT0} offen offset:16 sc1
s_mov_b32 exec_hi, 0
buffer_store_dword v{o+14}, v12, {WS}, s{sT0} offen offset:32 sc1
s_mov_b64 exec, -1""")
    if flags:
        signal_wg(A, L('sg'), FLG_OFF + 4096 + 2048)
    A("s_waitcnt vmcnt(0)")
    A("s_barrier")
```

```python
from asmlib import Asm
from layout import *
import struct, math, os
from prof import ts

NSTEPS = 64
C_SCALE = (128 ** -0.5) * math.log2(math.e)
def fbits(x): return struct.unpack('<I', struct.pack('<f', x))[0]
EXP = os.environ.get('EXP', 'E')

LDS_CHUNKS = [('q', 0), ('k', 0), ('q', 2), ('k', 2), ('o', (0, 0)), ('o', (1, 0)), ('v', 6), ('v', 7)]
REG_CHUNKS = [(m, j) for j in range(9) for m in 'qk' if (m, j) not in LDS_CHUNKS] + \
             [('v', j) for j in (0, 2, 1, 3, 8, 4, 5)] + \
             [('o', (0, 1)), ('o', (1, 1)), ('o', (2, 0)), ('o', (3, 0)), ('o', (2, 1)), ('o', (3, 1))]
assert len(REG_CHUNKS) == 27
def lds_off(ch, tt, k5):
    if ch == ('o', 8):
        return 32768 + k5 * 1024
    i = LDS_CHUNKS.index(ch)
    if i < 6:
        return ((i >> 1) * 2 + k5) * 4096 + ((i & 1) * 2 + tt) * 1024
    return i * 4096 + k5 * 2048 + tt * 1024
_blk = {}
def _regblock(n):
    return ('a', 8 * n) if n < 32 else ('v', 72 + 8 * (n - 32))
n = 0
for ch in REG_CHUNKS:
    for tt in range(2):
        _blk[(ch, tt)] = _regblock(n); n += 1
_blk[(('o', 8), 1)] = _regblock(n); n += 1
assert n == 55
def rng(f, b, n): return '%s[%d:%d]' % (f, b, b + n - 1)
def blk_regs(ch, tt):
    f, b = _blk[(ch, tt)]
    return rng(f, b, 8)

vDummy, vL16, vL8, vIdx, vQKw, vOw, vPst, vMst, vW, vPc = 0, 1, 2, 3, 4, 5, 6, 7, 8, 9
VX = 64
sH, sW = 3, 4
SRD_Q, SRD_K, SRD_V, SRD_O, SRD_WS = 8, 12, 16, 20, 24
sDBG, sMEM0 = 28, 30
sStep, sTag, sMw, sMp, sRa, sReady, sRole, sFast, sC = 32, 33, 34, 35, 36, 37, 38, 39, 40
sT0, sT1, sT2, sT3 = 41, 42, 43, 44
sSeg, sNeed, sCnt = 101, 46, 47
sEx = 48
sPz = 50
sTm = 52
sKMa, sTa, sVMa, sVXa, sKXa, sP0, sP1, sP2, sGa, sGb, sLate = 60, 61, 62, 63, 64, 65, 66, 67, 69, 70, 71
sKF, sW10 = 68, 100
sOnes, sBig, sRep = 72, 74, 75
sXcc, sW11, sTouch, sTagM = 76, 77, 78, 79
SRD_R = 96
sQP = 96
POLL_MAX = 20000
NREP = int(os.environ.get('NREP', '4'))
WS = f"s[{SRD_WS}:{SRD_WS+3}]"

def srd(A, d, ptr, nbytes):
    A(f"""s_mov_b32 s{d}, s{ptr}
s_and_b32 s{d+1}, s{ptr+1}, 0xffff
s_mov_b32 s{d+2}, {nbytes}
s_mov_b32 s{d+3}, 0x20000""")

def kv_eval(A, v):
    A(f"""v_cmp_eq_u32 vcc, 0x01010101, v{v}
s_ff0_i32_b64 s{sReady}, vcc
s_min_u32 s{sReady}, s{sReady}, 64""")

def kv_wait(A, lab, vt):
    A(f"""v_lshrrev_b32 v{vt+1}, 2, v{vL16}
s_mov_b32 s{sCnt}, 0""")
    A.label(lab)
    A(f"""buffer_load_dword v{vt}, v{vt+1}, {WS}, s{sKF} offen sc1
s_add_u32 s{sCnt}, s{sCnt}, 1""")
    kv_eval(A, vt)
    A(f"""s_cmp_gt_u32 s{sCnt}, {POLL_MAX * 8}
s_cbranch_scc1 {lab}_d
s_cmp_gt_u32 s{sReady}, s{sNeed}
s_cbranch_scc1 {lab}_d
s_sleep 4
s_branch {lab}""")
    A.label(lab + '_d')

def bits(A, dst, terms, tmp, first=True):
    for (b, wd, sh) in terms:
        A(f"v_bfe_u32 v{tmp}, v0, {b}, {wd}")
        if first:
            A(f"v_lshlrev_b32 v{dst}, {sh}, v{tmp}"); first = False
        else:
            A(f"v_lshl_add_u32 v{dst}, v{tmp}, {sh}, v{dst}")

def gen_chain(A, dbg=0, tag='C', flags=False):
    L = lambda x: f'{tag}_{x}'
    NST = 12
    R0, R1, R2 = 34, 38, 58
    if dbg:
        A(f"s_memtime s[{sTm+6}:{sTm+7}]")
    A(f"""s_lshr_b32 s{sH}, s2, 3
s_load_dwordx4 s[60:63], s[0:1], 32
s_load_dwordx4 s[64:67], s[0:1], 48
s_load_dwordx2 s[68:69], s[0:1], 64
s_load_dwordx4 s[72:75], s[0:1], 88
v_lshrrev_b32 v10, 6, v0
v_and_b32 v0, 63, v0
v_readfirstlane_b32 s{sW}, v10
s_getreg_b32 s{sXcc}, hwreg(HW_REG_XCC_ID)
v_lshlrev_b32 v{vL16}, 4, v0
v_lshlrev_b32 v{vL8}, 3, v0
s_waitcnt lgkmcnt(0)""")
    srd(A, SRD_Q, 62, 576 * 4096 * 2)
    srd(A, SRD_K, 64, 576 * 4096 * 2)
    srd(A, SRD_V, 66, 576 * 4096 * 2)
    srd(A, SRD_O, 68, 576 * 4096 * 2)
    srd(A, SRD_WS, 74, WS_BYTES)
    A(f"""s_mov_b32 s{sDBG}, s72
s_mov_b32 s{sDBG+1}, s73
s_mov_b32 s{sMEM0}, s60
s_mov_b32 s{sMEM0+1}, s61
s_mov_b32 s{sC}, {fbits(C_SCALE):#x}
s_lshl_b32 s{sW11}, s{sW}, 11
s_and_b32 s{sXcc}, s{sXcc}, 15
s_mov_b32 s{sPz}, {POISON:#x}
s_mov_b32 s{sPz+1}, {POISON:#x}""")
    ts(A, 0, SRD_WS, 10, dbg=(0, 'min'))
    A(f"""s_add_u32 s{sT0}, s{sH}, 32
s_cmp_eq_u32 s{sW}, 1
s_cselect_b32 s{sT0}, s{sH}, s{sT0}
s_cselect_b32 s{sRole}, 1, 0
s_add_u32 s{sT1}, s{sH}, 64
s_min_u32 s{sT1}, s{sT1}, 71
s_cmp_ge_u32 s{sW}, 2
s_cselect_b32 s{sT0}, s{sT1}, s{sT0}
s_lshl_b32 s{sRa}, s{sT0}, 12
s_add_u32 s{sRa}, s{sRa}, {PART_OFF}
s_cmp_lt_u32 s{sH}, 8
s_cselect_b32 s{sT1}, 0, 2
s_cmp_eq_u32 s{sW}, 2
s_cselect_b32 s{sRole}, s{sT1}, s{sRole}
s_cmp_eq_u32 s{sW}, 3
s_cselect_b32 s{sRole}, 2, s{sRole}""")
    A(f"""s_bfe_u32 s{sT1}, s{sT0}, 0x20003
s_lshl_b32 s{sT1}, s{sT1}, 11
s_cmp_lt_u32 s{sT0}, 32
s_cselect_b32 s{sT3}, 1024, 0
s_add_u32 s{sT1}, s{sT1}, s{sT3}
s_and_b32 s{sT3}, s{sT0}, 1
s_lshl_b32 s{sT3}, s{sT3}, 9
s_add_u32 s{sT1}, s{sT1}, s{sT3}
s_bfe_u32 s{sT3}, s{sT0}, 0x20001
s_lshl_b32 s{sT3}, s{sT3}, 6
s_add_u32 s{sT1}, s{sT1}, s{sT3}
s_lshl_b32 s{sT2}, s{sT0}, 7
s_cmp_ge_u32 s{sT0}, 64
s_cselect_b32 s{sT1}, s{sT2}, s{sT1}
s_cselect_b32 s{sT2}, 6, 8
v_bfe_u32 v10, v0, 2, 1
v_lshlrev_b32 v10, s{sT2}, v10""")
    bits(A, 10, [(1, 1, 5), (4, 1, 4), (0, 1, 3)], 11, False)
    A(f"""v_lshrrev_b32 v11, 5, v0
v_bfe_u32 v12, v0, 3, 1
v_lshl_add_u32 v11, v11, 1, v12
v_and_b32 v11, {NREP - 1}, v11
v_mul_u32_u24 v11, {MREP}, v11
v_add3_u32 v{vMst}, v10, v11, s{sT1}""")
    A(f"""v_mov_b64 v[12:13], 0
v_mov_b64 v[14:15], 0
v_mov_b64 v[16:17], 1
v_mov_b64 v[18:19], 1
v_mov_b64 v[20:21], s[{sPz}:{sPz+1}]""")
    if flags:
        A(f"""s_lshl_b32 s{sT0}, s{sH}, 12
s_lshl_b32 s{sT1}, s{sW}, 10
s_add_u32 s{sT0}, s{sT0}, s{sT1}
s_add_u32 s{sT0}, s{sT0}, {FLG_OFF}
buffer_store_dwordx4 v[12:15], v{vL16}, {WS}, s{sT0} offen sc1""")
    A(f"""s_cmp_eq_u32 s{sRole}, 2
s_cbranch_scc1 {L('noinit')}""")
    for i in range(4):
        A(f"buffer_store_dwordx4 v[16:19], v{vL16}, {WS}, s{sRa} offen offset:{i*1024} sc1")
    for slot in range(3):
        A(f"s_mov_b32 s{sT0}, {MIMG_OFF + slot * MIMG_SLOT}")
        A(f"buffer_store_dwordx2 v[20:21], v{vMst}, {WS}, s{sT0} offen sc1")
    A.label(L('noinit'))
    bits(A, 10, [(2, 2, 1), (0, 1, 0)], 11)
    A("v_mul_u32_u24 v10, 1152, v10")
    A("v_mov_b32 v22, v10")
    bits(A, 10, [(4, 2, 3), (1, 1, 2)], 11, False)
    bits(A, 22, [(4, 2, 5), (1, 1, 4)], 11, False)
    A(f"""s_lshl_b32 s{sT0}, s{sW}, 7
v_add_u32 v10, s{sT0}, v10""")
    for b in range(2):
        for t in range(4):
            A(f"global_load_dword v{24+4*b+t}, v10, s[{sMEM0}:{sMEM0+1}] offset:{512*(1-b) + 32*t}", manual=True)
    A(f"global_load_dwordx4 v[{R2}:{R2+3}], v22, s[{sMEM0}:{sMEM0+1}] offset:1024", manual=True)
    A(f"""v_bfe_u32 v11, v0, 4, 1
v_lshlrev_b32 v11, 1, v11
v_xor_b32 v11, v11, v0
v_and_b32 v12, 3, v11
v_lshlrev_b32 v13, 4, v12""")
    bits(A, 66, [(5, 1, 18), (2, 1, 17), (3, 1, 14), (4, 1, 13)], 11)
    A("v_add_u32 v66, v66, v13")
    bits(A, 67, [(3, 1, 16), (4, 1, 15), (5, 1, 14), (2, 1, 13)], 11)
    A("v_add_u32 v67, v67, v13")
    bits(A, 14, [(4, 1, 4), (3, 1, 2), (5, 1, 1), (2, 1, 0)], 11)
    A(f"""v_mul_u32_u24 v15, 1152, v14
v_lshrrev_b32 v11, 1, v12
v_mul_u32_u24 v11, {64 * 1152}, v11
v_and_b32 v12, 1, v12
v_lshl_add_u32 v12, v12, 4, v15
v_add_u32 v69, v12, v11
v_lshrrev_b32 v11, 4, v0
v_lshlrev_b32 v11, 1, v11
v_xor_b32 v11, v11, v0
v_and_b32 v11, 7, v11
v_lshlrev_b32 v13, 4, v11""")
    bits(A, 68, [(3, 1, 17), (4, 1, 14), (5, 1, 13)], 11)
    A("v_add_u32 v68, v68, v13")
    bits(A, 70, [(3, 1, 13), (4, 1, 16), (5, 1, 15)], 11)
    A("v_add_u32 v70, v70, v13")
    bits(A, 14, [(3, 1, 0), (4, 1, 2), (5, 1, 4)], 11)
    A("""v_mul_u32_u24 v14, 1152, v14
v_add_u32 v71, v14, v13""")
    sCV, sCO, sCO8, sLds, sCX = sT1, sT2, sT3, sSeg, sNeed
    A(f"""s_lshl_b32 s{sCV}, s{sH}, 8
s_and_b32 s{sT0}, s{sW}, 1
s_lshl_b32 s{sT0}, s{sT0}, 7
s_add_u32 s{sCX}, s{sCV}, s{sT0}
s_lshl_b32 s{sT0}, s{sW}, 6
s_add_u32 s{sCV}, s{sCV}, s{sT0}
s_mul_i32 s{sCO}, s{sH}, {128 * 1152}
s_lshl_b32 s{sT0}, s{sW}, 5
s_add_u32 s{sCO8}, s{sCO}, s{sT0}
s_add_u32 s{sCO8}, s{sCO8}, 1024
s_lshl_b32 s{sT0}, s{sW}, 7
s_add_u32 s{sCO}, s{sCO}, s{sT0}
s_mul_i32 s{sLds}, s{sW}, {L_WSZ}
s_add_u32 s{sLds}, s{sLds}, {L_W}
s_lshl_b32 s{sKXa}, s{sW}, 12
s_cmp_lt_u32 s{sW}, 2
s_cselect_b32 s{SRD_Q}, s{SRD_Q}, s{SRD_K}
s_cselect_b32 s{SRD_Q+1}, s{SRD_Q+1}, s{SRD_K+1}""")
    for p in range(4):
        A(f"""s_xor_b32 s{sT0}, s{sW}, {p}
s_lshl_b32 s{sQP+p}, s{sT0}, 19""")
    items = [('x', j, k5) for j in (1, 3, 4, 5, 6, 7, 8) for k5 in range(2)] + \
            [('o', rp, jj, k5) for rp, jj in ((0, 1), (1, 0), (1, 1)) for k5 in range(2)] + [('v', j) for j in (0, 2, 1, 3, 8, 4, 5)] + \
            [('x', 0, 0), ('x', 0, 1), ('x', 2, 0), ('x', 2, 1), ('o', 0, 0, 0), ('o', 0, 0, 1), ('v', 6), ('v', 7), ('o8',)]
    assert len(items) == 36
    NU_ = 9
    def issue(k):
        it = items[k]; un = k % NU_
        for i in range(4):
            rot = None
            if it[0] == 'x':
                s_, sb = SRD_Q, sCX
                if it[1] == 8:
                    so, vo = (512 + 32 * it[2] + 16 * (i >> 1) + 2 * (i & 1)) * 8192, 70
                else:
                    so, vo, rot = (256 * (1 - (it[1] & 1)) + 8 * it[2] + 4 * (i >> 1) + 32 * (i & 1)) * 8192, 68, it[1] >> 1
            elif it[0] == 'o':
                s_, sb, vo = SRD_O, sCO, 71
                so = (64 * it[2] + 32 * it[3] + 8 * (i >> 1) + 2 * (i & 1)) * 1152 + it[1] * 512
            elif it[0] == 'v':
                s_, sb = SRD_V, sCV
                if it[1] == 8:
                    so, vo = (512 + 32 * (i >> 1) + 16 * (i & 1)) * 8192, 67
                else:
                    so, vo, rot = (256 * (1 - (it[1] & 1)) + 8 * (i >> 1) + 4 * (i & 1)) * 8192, 66, it[1] >> 1
            else:
                s_, sb, vo = SRD_O, sCO8, 69
                so = (32 * (i >> 1) + 8 * (i & 1)) * 1152
            A(f"s_add_u32 m0, s{sLds if un < 8 else sKXa}, {(un * 4096 if un < 8 else 0) + i * 1024}")
            A(f"s_add_u32 s{sT0}, s{sb}, {so}")
            if rot is not None:
                A(f"s_add_u32 s{sT0}, s{sT0}, s{sQP + rot}")
            A(f"buffer_load_dwordx4 v{vo}, s[{s_}:{s_+3}], s{sT0} offen lds")
    ts(A, 4, SRD_WS, 10, dbg=(4, 'max'))
    DEP = int(os.environ.get('DEP', '5'))
    for k in range(DEP):
        issue(k)
    ts(A, 5, SRD_WS, 10)
    A(f"""s_mul_i32 s{sT0}, s{sXcc}, s{sXcc}
s_lshl_b32 s{sT0}, s{sT0}, 10
s_add_u32 s{sT0}, s{sT0}, s{sXcc}
s_lshl_b32 s{sT0}, s{sT0}, 8
s_add_u32 s{sXcc}, s{sT0}, 1
v_mov_b32 v12, 128
v_mov_b32 v13, s{sXcc}
s_waitcnt vmcnt({4 * DEP})
s_barrier
s_cmp_lg_u32 s{sW}, 0
s_cbranch_scc1 {L('arr')}
s_mov_b64 exec, 1
global_atomic_add v12, v13, s[{sDBG}:{sDBG+1}]
s_mov_b64 exec, -1""")
    A.label(L('arr'))
    A(f"""s_mov_b32 s{sKMa}, 0x05040100
s_mov_b32 s{sTa}, 0x07060302""")
    for b, R in ((0, R0), (1, R1)):
        x = 24 + 4 * b
        A(f"""v_perm_b32 v{R}, v{x+1}, v{x}, s{sKMa}
v_perm_b32 v{R+1}, v{x+3}, v{x+2}, s{sKMa}
v_perm_b32 v{R+2}, v{x+1}, v{x}, s{sTa}
v_perm_b32 v{R+3}, v{x+3}, v{x+2}, s{sTa}""")
    A(f"""v_and_b32 v10, 2, v0
v_cmp_eq_u32 vcc, 0, v10
v_mov_b32 v11, 0xeeee
v_mov_b32 v12, 0x4444
v_cndmask_b32 v{vIdx}, v11, v12, vcc""")
    bits(A, 10, [(0, 4, 5), (4, 2, 3)], 11)
    A(f"""s_and_b32 s{sT0}, s{sW}, 1
s_lshl_b32 s{sT0}, s{sT0}, 11
s_add_u32 s{sT0}, s{sT0}, {L_QK}
v_add_u32 v10, s{sT0}, v10
s_cmp_lt_u32 s{sW}, 2
s_cselect_b32 s{sT0}, 4, 0
v_add_u32 v{vQKw}, s{sT0}, v10""")
    bits(A, 10, [(0, 1, 4), (2, 2, 6), (4, 1, 5), (5, 1, 8)], 11)
    A(f"""s_lshl_b32 s{sT0}, s{sW}, 9
s_add_u32 s{sT0}, s{sT0}, {L_O}
v_add_u32 v{vOw}, s{sT0}, v10""")
    bits(A, 10, [(3, 3, 12), (0, 3, 4)], 11)
    bits(A, 12, [(5, 1, 12), (0, 5, 2)], 11)
    A(f"""s_lshl_b32 s{sT0}, s{sH}, 7
v_add_u32 v{vPst}, s{sT0}, v10
v_add_u32 v{vPc}, s{sT0}, v12
s_lshl_b32 s{sT0}, s{sW}, 15
s_add_u32 s{sP0}, s{sT0}, {PART_OFF}
s_add_u32 s{sP1}, s{sP0}, {4 * 32768}
s_lshl_b32 s{sT0}, s{sW}, 13
s_add_u32 s{sP2}, s{sT0}, {PART_OFF + 8 * 32768}
v_add_u32 v{vW}, s{sLds}, v{vL16}
s_mov_b32 s{sEx}, 0xcccccccc
s_mov_b32 s{sEx+1}, 0xcccccccc
s_add_u32 s{sT0}, s{sH}, s{sW}
s_and_b32 s{sT0}, s{sT0}, {NREP - 1}
s_mul_i32 s{sRep}, s{sT0}, {MREP}
s_lshl_b32 s{sTouch}, s{sW}, 12
s_mov_b32 s{sOnes}, 0x3f803f80
s_mov_b32 s{sOnes+1}, 0x3f803f80
s_mov_b32 s{sBig}, {fbits(2.0**60):#x}""")
    A(f"""v_and_b32 v10, 4, v0
v_cmp_eq_u32 vcc, 0, v10
v_mov_b32 v11, 0x3f800000
v_mov_b32 v12, 0x3f80
v_cndmask_b32 v11, v11, v12, vcc
v_and_b32 v10, 3, v0""")
    for d in range(4):
        A(f"""v_cmp_eq_u32 vcc, {d}, v10
v_cndmask_b32 v{20+d}, 0, v11, vcc""")
    A("v_mov_b64 v[42:43], v[20:21]")
    A("v_mov_b64 v[44:45], v[22:23]")
    bits(A, 64, [(5, 1, 10), (4, 1, 8), (4, 1, 5), (2, 2, 6), (0, 2, 3)], 11)
    bits(A, 65, [(5, 1, 11), (4, 1, 9), (2, 2, 7), (3, 2, 5), (0, 2, 3)], 11)
    ts(A, 6, SRD_WS, 10)
    for k in range(36):
        issued = min(k + DEP, 36)
        it = items[k]; un = k % NU_
        A(f"s_waitcnt vmcnt({4 * (issued - (k + 1))})")
        sbase = sLds if un < 8 else sKXa
        ub = un * 4096 if un < 8 else 0
        wide = it[0] in 'xo' and it[0] != 'o8'
        wb = []
        for n in range(4):
            if wide:
                k5 = it[-1]; tt = n & 1
                ch = (('q', 'k')[n >> 1], it[1]) if it[0] == 'x' else ('o', (2 * it[1] + (n >> 1), it[2]))
                A(f"v_xor_b32 v46, {32 * n}, v65")
                o0, o1 = ub, ub + 1024
            else:
                k5 = n >> 1; tt = n & 1
                ch = ('v', it[1]) if it[0] == 'v' else ('o', 8)
                A(f"v_xor_b32 v46, {32 * tt}, v64")
                o0, o1 = ub + k5 * 2048, ub + k5 * 2048 + 512
            A(f"v_add_u32 v46, s{sbase}, v46")
            if (ch, tt) in _blk:
                f, b = _blk[(ch, tt)]; b += 4 * k5
            else:
                f, b = 'v', 10 + 4 * n
                wb.append((b, lds_off(ch, tt, k5)))
            A(f"ds_read_b64_tr_b16 {rng(f, b, 2)}, v46 offset:{o0}")
            A(f"ds_read_b64_tr_b16 {rng(f, b + 2, 2)}, v46 offset:{o1}")
        A("s_waitcnt lgkmcnt(0)")
        if k + DEP < 36:
            issue(k + DEP)
        for b, off in wb:
            A(f"ds_write_b128 v{vW}, v[{b}:{b+3}] offset:{off}")
    A("s_barrier")
    A(f"ds_write_b128 v{vL16}, v[42:45] offset:{L_SEL}")
    ts(A, 1, SRD_WS, 10, dbg=(1, 'max'))
    A(f"""v_mov_b32 v10, 128
s_mov_b32 s{sCnt}, 0""")
    A.label(L('rdv_loop'))
    A(f"""global_load_dword v12, v10, s[{sDBG}:{sDBG+1}] sc1
s_add_u32 s{sCnt}, s{sCnt}, 1
v_readfirstlane_b32 s{sT0}, v12
s_cmp_gt_u32 s{sCnt}, {POLL_MAX}
s_cbranch_scc1 {L('rdv_done')}
s_and_b32 s{sT1}, s{sT0}, 0xff
s_cmp_ge_u32 s{sT1}, 32
s_cbranch_scc1 {L('rdv_done')}
s_sleep 4
s_branch {L('rdv_loop')}""")
    A.label(L('rdv_done'))
    A(f"""s_lshl_b32 s{sT1}, s{sXcc}, 5
s_cmp_eq_u32 s{sT0}, s{sT1}
s_cselect_b32 s{sFast}, 1, 0
s_mov_b32 s{sStep}, 0
s_lshl_b32 s{sSeg}, s{sH}, 20
s_mov_b32 s{sMp}, {MIMG_OFF}
s_mov_b32 s{sMw}, {MIMG_OFF + MIMG_SLOT}
s_mov_b32 s{sReady}, 64
s_lshl_b32 s{sKF}, s{sH}, 12
s_add_u32 s{sKF}, s{sKF}, {FLG_OFF}
s_lshl_b32 s{sW10}, s{sW}, 10
s_sub_u32 s{sW10}, s{sW10}, 2048
s_mov_b32 s{SRD_K}, s{SRD_WS}
s_mov_b32 s{SRD_K+1}, s{SRD_WS+1}
s_cmp_ge_u32 s{sW}, 2
s_cselect_b32 s{SRD_K+2}, {WS_BYTES}, 0
s_mov_b32 s{SRD_R}, s{SRD_WS}
s_mov_b32 s{SRD_R+1}, s{SRD_WS+1}
s_cmp_eq_u32 s{sRole}, 1
s_cselect_b32 s{SRD_R+2}, {WS_BYTES}, 0
s_mov_b32 s{SRD_R+3}, 0x20000
s_add_u32 m0, s{sW11}, {L_KX}""")
    if flags:
        A(f"s_mov_b32 s{sNeed}, 0")
        kv_wait(A, L('kv0'), 16)
    if dbg:
        A(f"s_memtime s[{sTm}:{sTm+1}]")
        A("s_waitcnt lgkmcnt(0)")
        A(f"s_mov_b32 s{sTm+5}, s{sTm}")
        for n in range(NST): A(f"s_mov_b32 s{80+n}, 0")
    ts(A, 2, SRD_WS, 12, dbg=(2, 'max'))
    A(f"s_cmp_eq_u32 s{sFast}, 0")
    A(f"s_cbranch_scc1 {L('S_pre')}")
    gen_loop(A, dbg, tag + '_F', '', L('end'), flags)
    gen_loop(A, dbg, tag + '_S', ' sc1', L('end'), flags)
    A.label(L('end'))
    ts(A, 3, SRD_WS, 10, dbg=(3, 'max'))
    if dbg:
        A(f"""s_memtime s[{sTm+2}:{sTm+3}]
s_waitcnt lgkmcnt(0)
s_sub_u32 s{sT0}, s{sTm+2}, s{sTm}
v_mov_b32 v10, s{sT0}
v_mov_b32 v11, s{sFast}
s_lshl_b32 s{sT1}, s{sH}, 8
s_lshl_b32 s{sT2}, s{sW}, 6
s_add_u32 s{sT1}, s{sT1}, s{sT2}
s_add_u32 s{sT1}, s{sT1}, {DBG_OFF + 0x200000}
v_mov_b32 v12, 0
s_sub_u32 s{sT0}, s{sTm}, s{sTm+6}
v_mov_b32 v13, s{sT0}
s_mov_b64 exec, 1
buffer_store_dwordx2 v[10:11], v12, {WS}, s{sT1} offen
buffer_store_dword v13, v12, {WS}, s{sT1} offen offset:8""")
        for n in range(NST):
            A(f"v_mov_b32 v13, s{80+n}")
            A(f"buffer_store_dword v13, v12, {WS}, s{sT1} offen offset:{16+4*n}")
    A("s_endpgm")


def gen_loop(A, dbg, tag, SC, endlab, flags):
    L = lambda x: f'{tag}_{x}'
    def stamp(n):
        if dbg == 5:
            A(f"""s_memrealtime s[{sTm+2}:{sTm+3}]
s_cmp_eq_u32 s{sStep}, {41 if n in (4, 5, 6, 7) else 40}
s_waitcnt lgkmcnt(0)
s_cselect_b32 s{80+n}, s{sTm+2}, s{80+n}""")
            return
        if dbg not in (2, 3): return
        A(f"""s_memtime s[{sTm+2}:{sTm+3}]
s_waitcnt lgkmcnt(0)
s_sub_u32 s{sTm+4}, s{sTm+2}, s{sTm+5}
s_add_u32 s{80+n}, s{80+n}, s{sTm+4}
s_mov_b32 s{sTm+5}, s{sTm+2}""")
    aQ, aK, aV = 10, 18, 26
    R0, R1, R2 = 34, 38, 58
    SB = 42
    def lds_half(ch, tt, k5, dst, manual=False):
        A(f"ds_read_b128 v[{dst+4*k5}:{dst+4*k5+3}], v{vW} offset:{lds_off(ch, tt, k5)}", manual)
    def lds_blk(ch, tt, dst, manual=False):
        lds_half(ch, tt, 0, dst, manual); lds_half(ch, tt, 1, dst, manual)
    def sched(mf, side):
        side = sorted(enumerate(side), key=lambda x: (x[1][1], x[0]))
        for g, m in enumerate(mf):
            m()
            n = 0
            for e in list(side):
                rel, dl, fn = e[1]
                if rel <= g and (n == 0 or dl <= g):
                    fn(); side.remove(e); n += 1
        assert not side, side
    def zero(b, n):
        for r in range(b, b + n, 2):
            A(f"v_mov_b64 v[{r}:{r+1}], 0")
    def smf(acc, a, b):
        A(f"v_smfmac_f32_16x16x64_bf16 v[{acc}:{acc+3}], v[{a}:{a+3}], {b}, v{vIdx}")
    cur_p = [None]
    def xr(p):
        A(f"v_xor_b32 v62, {p * 2048}, v63")
        cur_p[0] = p
    def rdA(slot, buf, manual=False):
        p = slot >> 1
        if p == 0:
            base = 63
        else:
            if cur_p[0] != p:
                xr(p)
            base = 62
        A(f"ds_read_b128 v[{buf}:{buf+3}], v{base} offset:{L_M + (slot & 1) * 1024}", manual)
    def ps(a, dst, part):
        if part == 0: A(f"v_add_f32 v{a}, v{a}, v{a+2}")
        elif part == 1: A(f"v_add_f32 v{a+1}, v{a+1}, v{a+3}")
        else: A(f"v_cvt_pk_bf16_f32 v{dst}, v{a}, v{a+1}")
    def psum(a, dst):
        for part in range(3): ps(a, dst, part)
    def tagit(r):
        A(f"v_bfi_b32 v{r}, 1, s{sTag}, v{r}")
    def rdX(u, x):
        A(f"ds_read_b64_tr_b16 v[{x}:{x+1}], v{vL8} offset:{L_QK + u*1024}")
        A(f"ds_read_b64_tr_b16 v[{x+2}:{x+3}], v{vL8} offset:{L_QK + u*1024 + 512}")
    def pre_a():
        lds_blk(('q', 0), 0, SB, True); lds_blk(('q', 0), 1, SB + 8, True)
        A(f"""s_lshr_b32 s{sKMa}, s{sSeg}, 1
s_add_u32 s{sKMa}, s{sKMa}, {MEM_OFF}
s_lshr_b32 s{sT1}, s{sW11}, 2
s_add_u32 s{sVMa}, s{sKMa}, s{sT1}
s_add_u32 s{sVMa}, s{sVMa}, 4096
s_add_u32 s{sKMa}, s{sKMa}, s{sW10}
s_add_u32 s{sKXa}, s{sSeg}, s{sW11}
s_add_u32 s{sVXa}, s{sKXa}, 8192
s_cmp_lt_u32 s{sStep}, 63
s_cselect_b32 s{sT0}, {0 if 'a' in EXP else 16384}, 0
s_add_u32 s{sSeg}, s{sSeg}, s{sT0}
s_add_u32 s{sTa}, s{sSeg}, s{sTouch}
s_add_u32 s{sNeed}, s{sStep}, 1
s_min_u32 s{sNeed}, s{sNeed}, 63
s_add_u32 s{sGb}, s{sMw}, s{sRep}
s_add_u32 s{sGa}, s{sGb}, s{sW11}
s_add_u32 s{sGb}, s{sGb}, 8192""")
    def pre_b():
        zero(10, 24)
        A(f"""v_add_u32 v63, s{sW11}, v{vL16}
v_xor_b32 v62, 2048, v63
s_and_b32 s{sTag}, s{sStep}, 1
s_sub_u32 s{sTagM}, 0, s{sTag}""")
    A.label(L('pre'))
    pre_a(); pre_b()
    A("s_waitcnt vmcnt(0) lgkmcnt(0)")
    A(f"s_branch {L('top')}")
    A.label(L('gather'))
    GS = [(R0, R2), (R1, VX)]
    def gpoll(k, srd_=SRD_WS):
        a, b = GS[k]
        A(f"""buffer_load_dwordx4 v[{a}:{a+3}], v{vL16}, s[{srd_}:{srd_+3}], s{sGa} offen sc1
buffer_load_dwordx4 v[{b}:{b+3}], v{vL16}, s[{srd_}:{srd_+3}], s{sGb} offen sc1""", manual=True)
    def gchk(k, n):
        a, b = GS[k]
        A(f"""s_waitcnt vmcnt({n})
v_max3_u32 v{vDummy}, v{a}, v{a+2}, v{b}
v_max_u32 v{vDummy}, v{vDummy}, v{b+2}
v_cmp_eq_u32 vcc, s{sPz}, v{vDummy}""")
        if dbg in (2, 3): A(f"s_add_u32 s91, s91, 1")
    A.label(L('gather2'))
    stamp(5)
    if flags: kv_eval(A, vDummy)
    pre_b()
    A(f"""s_mov_b32 s{sCnt}, 0
s_mov_b32 s{sMp}, s{sMw}
s_add_u32 s{sMw}, s{sMw}, {MIMG_SLOT}
s_cmp_eq_u32 s{sMw}, {MIMG_OFF + 3 * MIMG_SLOT}
s_cselect_b32 s{sMw}, {MIMG_OFF}, s{sMw}
s_cmp_lg_u32 s{sRole}, 1
s_cbranch_scc1 {L('g_poll')} ;exit""")
    gchk(0, 2)
    A(f"s_cbranch_vccz {L('top')} ;exit")
    A.label(L('g_poll'))
    gpoll(0)
    A(f"""s_add_u32 s{sCnt}, s{sCnt}, 1
s_cmp_gt_u32 s{sCnt}, {3 * POLL_MAX}
s_cbranch_scc1 {L('g_out')} ;exit""")
    gchk(0, 0)
    A(f"s_cbranch_vccnz {L('g_poll')} ;nofence")
    A.label(L('top'))
    stamp(6)
    groups = [('q', 0), ('v', 0), ('q', 8), ('k', 0), ('k', 8), ('v', 8), ('q', 2), ('v', 2), ('q', 4), ('k', 2), ('k', 4), ('v', 4),
              ('q', 6), ('k', 6), ('v', 6), ('q', 1), ('k', 1), ('q', 3), ('q', 5), ('q', 7), ('k', 3), ('k', 5), ('k', 7)]
    abuf = {0: R0, 8: R2, 2: R0, 4: R2, 6: R0, 1: R1, 3: R2, 5: R0, 7: R1}
    KB = [SB, SB + 8]
    def rdK(u, t=None):
        k = KB[u & 1]
        if t in (None, 0): A(f"ds_read_b128 v[{k}:{k+3}], v{vL16} offset:{L_KX + u*1024}")
        if t in (None, 1): A(f"ds_read_b128 v[{k+4}:{k+7}], v{vL16} offset:{L_KX + 4096 + u*1024}")
    def bar(n, st=False):
        A("s_waitcnt lgkmcnt(W)")
        A("s_barrier")
        if dbg == 5 and st: stamp(7)
    def chk(buf, lab, part):
        if part == 0:
            A(f"v_cmp_eq_u32 s[{sT2+1}:{sT2+2}], s{sPz}, v{buf}")
        elif part == 1:
            A(f"v_cmp_eq_u32 vcc, s{sPz}, v{buf+2}")
        else:
            A(f"s_or_b64 vcc, vcc, s[{sT2+1}:{sT2+2}]")
            A(f"s_cbranch_scc1 {L(lab)} ;exit")
            A.label(L(lab + 'r') + ' ;soft')
    def kvchk():
        if flags:
            A(f"""s_cmp_le_u32 s{sReady}, s{sNeed}
s_cbranch_scc1 {L('kvw')} ;exit""")
            A.label(L('kvr') + ' ;soft')
    def dump(which):
        A(f"""s_mul_i32 s{sT0}, s{sStep}, 16384
s_add_u32 s{sT0}, s{sT0}, {DBG_OFF}
s_cmp_eq_u32 s{sH}, 0
s_cselect_b32 s{sT0}, s{sT0}, {DBG_OFF + 0x100000}
s_add_u32 s{sT1}, s{sT0}, 8192""")
        if which == 0:
            A(f"""buffer_store_dwordx4 v[{R0}:{R0+3}], v63, {WS}, s{sT0} offen
buffer_store_dwordx4 v[{R2}:{R2+3}], v{vL16}, {WS}, s{sT1} offen""")
        else:
            A(f"buffer_store_dwordx4 v[{R1}:{R1+3}], v63, {WS}, s{sT0} offen offset:1024")
    def wq(t, r):
        A(f"ds_write_b32 v{vQKw}, v{r} offset:{t * 512}")
    mf = []
    for ch in groups:
        acc = {'q': aQ, 'k': aK, 'v': aV}[ch[0]]
        for tt in range(2):
            b = blk_regs(ch, tt) if (ch, tt) in _blk else rng('v', SB + 8 * tt, 8)
            mf.append(lambda acc=acc, tt=tt, ch=ch, b=b: smf(acc + 4 * tt, abuf[ch[1]], b))
    def stream(ch, rel):
        return [(rel, rel + 1, lambda: lds_half(ch, 0, 0, SB)), (rel, rel + 2, lambda: lds_half(ch, 0, 1, SB)),
                (rel + 1, rel + 2, lambda: lds_half(ch, 1, 0, SB + 8)), (rel + 1, rel + 3, lambda: lds_half(ch, 1, 1, SB + 8))]
    cur_p[0] = 1
    TG = int(os.environ.get('TG', '15'))
    G1G = int(os.environ.get('G1G', '4'))
    BA = int(os.environ.get('BA', '8'))
    def g1():
        A(f"""s_cmp_lg_u32 s{sStep}, 0
s_cselect_b64 exec, -1, 0""")
        A(f"buffer_load_dwordx4 v[{R1}:{R1+3}], v{vL16}, {WS}, s{sGa} offen offset:1024 sc1", manual=True)
        A("s_mov_b64 exec, -1")
    side = [(0, 0, lambda: lds_blk(('k', 0), 0, SB)), (1, 1, lambda: lds_blk(('k', 0), 1, SB + 8)),
        (2, 2, lambda: (A(f"ds_write_b128 v63, v[{R0}:{R0+3}] offset:{L_M}"), dump(0) if dbg == 1 else None)),
        (5, 5, lambda: A(f"buffer_load_dwordx4 v{vL16}, {WS}, s{sKXa} offen sc1 lds")),
        (BA, BA, lambda: (bar('w', True), rdA(2, R0))),
        (BA + 1, 10, lambda: xr(2)),
        (9, 9, lambda: A(f"buffer_load_dwordx4 v{vL16}, {WS}, s{sKXa} offen offset:1024 sc1 lds")),
        (10, 10, lambda: A(f"buffer_load_dwordx4 v[{VX}:{VX+3}], v{vL16}, {WS}, s{sVXa} offen sc1", manual=True)),
        (11, 11, lambda: rdA(4, R2)),
        (11, 11, lambda: A(f"buffer_load_dwordx4 v[{VX+4}:{VX+7}], v{vL16}, {WS}, s{sVXa} offen offset:1024 sc1", manual=True)),
        (G1G, G1G, g1),
        (16, 17, lambda: xr(3)),
        (19, 19, lambda: rdA(6, R0)),
        (20, 20, lambda: (A("s_waitcnt vmcnt(%d)" % (6 if flags else 5)), chk(R1, 'late1', 0))),
        (21, 21, lambda: chk(R1, 'late1', 1)),
        (22, 22, lambda: (chk(R1, 'late1', 2), A(f"ds_write_b128 v63, v[{R1}:{R1+3}] offset:{L_M + 1024}"), dump(1) if dbg == 1 else None)),
        (23, 23, lambda: xr(1)),
        (4, 6, lambda: A(f"v_lshrrev_b32 v{vDummy}, 5, v{vL16}")),
        (7, TG - 1, lambda: A(f"v_lshlrev_b32 v{vDummy}, 7, v{vDummy}")),
        (28, 28, lambda: (bar('w'), rdA(3, R2))),
        (29, 29, lambda: xr(2)),
        (30, 30, lambda: rdA(5, R0)),
        (31, 32, lambda: xr(3)),
        (33, 33, lambda: rdA(7, R1)),
        (TG, TG, lambda: A(f"buffer_load_dword v{vDummy}, v{vDummy}, {WS}, s{sTa} offen sc1", manual=True)),
        (40, 40, lambda: ps(aQ, aQ + 2, 0)), (41, 41, lambda: ps(aQ, aQ + 2, 1)), (42, 42, lambda: ps(aQ, aQ + 2, 2)),
        (43, 43, lambda: (ps(aQ + 4, aQ + 3, 0), wq(0, aQ + 2))), (44, 44, lambda: ps(aQ + 4, aQ + 3, 1)),
        (45, 45, lambda: ps(aQ + 4, aQ + 3, 2)),
    ] + stream(('q', 2), 6) + stream(('k', 2), 12) + stream(('v', 6), 18)
    NBB = 0
    side += [(34, 36, lambda: lds_half(('v', 7), 0, 0, SB)), (34, 37, lambda: lds_half(('v', 7), 0, 1, SB)),
             (34, 38, lambda: lds_half(('v', 7), 1, 0, SB + 8)), (34, 39, lambda: lds_half(('v', 7), 1, 1, SB + 8))]
    if flags:
        side.append((3, 3, kvchk))
        side.append((TG + 1, TG + 2, lambda: A(f"v_lshrrev_b32 v{vDummy}, 2, v{vL16}")))
        side.append((TG + 3, TG + 3, lambda: A(f"buffer_load_dword v{vDummy}, v{vDummy}, {WS}, s{sKF} offen sc1", manual=True)))
    sched(mf, side)
    def vs(slot, buf, tts=(0, 1)):
        for tt in tts:
            b = blk_regs(('v', slot), tt) if (('v', slot), tt) in _blk else rng('v', SB + 8 * tt, 8)
            smf(aV + 4 * tt, buf, b)
    vs(3, R2, (0,))
    wq(1, aQ + 3)
    psum(aK, aQ + 4)
    wq(2, aQ + 4)
    psum(aK + 4, aQ + 5)
    wq(3, aQ + 5)
    vs(3, R2, (1,))
    A(f"buffer_store_dwordx4 v[{aQ+2}:{aQ+5}], v{vL16}, s[{SRD_K}:{SRD_K+3}], s{sKMa} offen sc1")
    vs(7, R1); rdA(1, R1)
    vs(5, R0, (0,))
    A("s_waitcnt lgkmcnt(W) vmcnt(%d)" % (3 if flags else 2))
    A("s_barrier")
    stamp(0)
    S0, S1, SM = 10, 14, 18
    XB = [22, R2]
    VMr = 28
    def pubk(u):
        if 'k' in EXP: return
        x = XB[u & 1]
        A(f"""s_cmp_eq_u32 s{sW}, {u}
s_cselect_b64 exec, -1, 0
buffer_store_dwordx4 v[{x}:{x+3}], v{vL16}, {WS}, s{sKMa} offen offset:{u*1024} sc1
s_mov_b64 exec, -1""")
    def sc(u, ex=()):
        x, k = XB[u & 1], KB[u & 1]
        c = lambda r: '0' if u == 0 else f'v[{r}:{r+3}]'
        ops = [f"v_mfma_f32_16x16x32_bf16 v[{SM}:{SM+3}], v[{x}:{x+3}], v[{x}:{x+3}], {c(SM)}",
               f"v_mfma_f32_16x16x32_bf16 v[{S0}:{S0+3}], v[{k}:{k+3}], v[{x}:{x+3}], {c(S0)}",
               f"v_mfma_f32_16x16x32_bf16 v[{S1}:{S1+3}], v[{k+4}:{k+7}], v[{x}:{x+3}], {c(S1)}"]
        for n, o in enumerate(ops):
            A(o)
            if n < len(ex) and ex[n]: ex[n]()
    rdX(0, XB[0]); rdK(0); rdX(1, XB[1]); rdK(1)
    vs(5, R0, (1,))
    rdX(2, R0)
    vs(1, R1)
    rdX(3, R1)
    sc(0, (None, lambda: rdK(2, 0), lambda: rdK(2, 1)))
    XB[0] = R0
    A(f"v_mov_b64 v[22:23], s[{sOnes}:{sOnes+1}]")
    sc(1, (lambda: ps(aV, VMr, 0), lambda: (rdK(3, 0), ps(aV, VMr, 1)), lambda: rdK(3, 1)))
    XB[1] = R1
    A(f"v_mov_b64 v[24:25], s[{sOnes}:{sOnes+1}]")
    sc(2, (lambda: ps(aV + 4, VMr + 1, 0), lambda: ps(aV + 4, VMr + 1, 1), lambda: lds_blk(('o', (0, 0)), 0, 42)))
    sc(3, (lambda: ps(aV, VMr, 2), lambda: ps(aV + 4, VMr + 1, 2), lambda: lds_blk(('o', (0, 0)), 1, 50)))
    stamp(1)
    sv = [S0, S0+1, S0+2, S0+3, S1, S1+1, S1+2, S1+3, SM, SM+1]
    PX, VMr = 58, 28
    O0, O1, LSUM, ONE = 34, 38, 30, 22
    A(f"""v_mul_f32 v{SM}, s{sC}, v{SM}
v_mul_f32 v{SM+1}, s{sC}, v{SM+1}
buffer_store_dwordx2 v[{VMr}:{VMr+1}], v{vL8}, {WS}, s{sVMa} offen sc1
s_cmp_eq_u32 s{sStep}, {NSTEPS - 1}
v_exp_f32 v62, v{SM}
v_exp_f32 v63, v{SM+1}
s_cbranch_scc1 {endlab} ;exit
v_exp_f32 v26, v{sv[0]}
v_exp_f32 v27, v{sv[1]}
v_cvt_pk_bf16_f32 v20, v62, v63
v_mov_b32 v21, 0
v_exp_f32 v32, v{sv[2]}
v_exp_f32 v33, v{sv[3]}
v_mfma_f32_16x16x16_bf16 v[{O0}:{O0+3}], v[{VMr}:{VMr+1}], v[20:21], 0
v_cvt_pk_bf16_f32 v63, v62, v63
v_mov_b32 v62, 0
v_cvt_pk_bf16_f32 v{PX}, v26, v27
v_exp_f32 v26, v{sv[4]}
v_mfma_f32_16x16x16_bf16 v[{O1}:{O1+3}], v[{VMr}:{VMr+1}], v[62:63], 0
v_exp_f32 v27, v{sv[5]}
v_cvt_pk_bf16_f32 v{PX+1}, v32, v33
v_exp_f32 v62, v{sv[6]}
v_mfma_f32_16x16x16_bf16 v[{LSUM}:{LSUM+3}], v[{ONE}:{ONE+1}], v[20:21], 0
v_exp_f32 v63, v{sv[7]}
v_cvt_pk_bf16_f32 v{PX+2}, v26, v27
v_cvt_pk_bf16_f32 v{PX+3}, v62, v63
v_mfma_f32_16x16x32_bf16 v[{LSUM}:{LSUM+3}], v[{ONE}:{ONE+3}], v[{PX}:{PX+3}], v[{LSUM}:{LSUM+3}]
v_mfma_f32_16x16x32_bf16 v[{O0}:{O0+3}], v[{VX}:{VX+3}], v[{PX}:{PX+3}], v[{O0}:{O0+3}]
v_mfma_f32_16x16x32_bf16 v[{O1}:{O1+3}], v[{VX+4}:{VX+7}], v[{PX}:{PX+3}], v[{O1}:{O1+3}]
v_rcp_f32 v31, v30""")
    def norm():
        A(f"s_mov_b64 exec, s[{sEx}:{sEx+1}]")
        for t, o in enumerate((O0, O1)):
            A(f"v_pk_mul_f32 v[{o}:{o+1}], v[{o}:{o+1}], v[30:31] op_sel:[0,1] op_sel_hi:[1,1]")
            A(f"v_pk_mul_f32 v[{o+2}:{o+3}], v[{o+2}:{o+3}], v[30:31] op_sel:[0,1] op_sel_hi:[1,1]")
            A(f"v_cvt_pk_bf16_f32 v{PX + 2*t}, v{o}, v{o+1}")
            A(f"v_cvt_pk_bf16_f32 v{PX + 2*t + 1}, v{o+2}, v{o+3}")
            A(f"ds_write_b64 v{vOw}, v[{PX+2*t}:{PX+2*t+1}] offset:{8*t}")
    norm()
    A(f"""v_max_f32 v32, v30, v31
v_cmp_nlt_f32 vcc, v32, s{sBig}
s_mov_b64 exec, -1
s_cbranch_vccnz {L('slow')} ;exit""")
    A.label(L('slowret') + ' ;soft')
    lds_blk(('o', 8), 0, 34)
    zero(18, 8); zero(VX, 8)
    A("s_waitcnt lgkmcnt(W)")
    A("s_barrier")
    stamp(2)
    OA = [10, 14]
    A(f"ds_read_b128 v[{OA[0]}:{OA[0]+3}], v{vL16} offset:{L_O}")
    A(f"ds_read_b128 v[{OA[1]}:{OA[1]+3}], v{vL16} offset:{L_O + 1024}")
    zero(26, 8)
    ACT = {(2, 0): 18, (2, 1): 22, (3, 0): VX, (3, 1): VX + 4, (0, 0): 30, (0, 1): 18, (1, 0): 22, (1, 1): 34}
    RES = 58
    mf = []
    for r in (2, 3, 0, 1):
        if r == 0:
            mf.append(lambda: smf(26, OA[0], 'v[34:41]'))
            mf.append(lambda: smf(26, OA[1], blk_regs(('o', 8), 1)))
        for jj in ((0, 1) if r != 1 else (1, 0)):
            for tt in range(2):
                ch = ('o', (r, jj))
                b = blk_regs(ch, tt) if (ch, tt) in _blk else rng('v', SB + 8 * tt, 8)
                mf.append(lambda r=r, jj=jj, tt=tt, b=b: smf(ACT[(r, tt)], OA[jj], b))
    def P(a, dst, g0):
        return [(g0, g0, lambda: ps(a, dst, 0)), (g0, g0 + 1, lambda: ps(a, dst, 1)), (g0 + 1, g0 + 1, lambda: ps(a, dst, 2))]
    side = P(18, RES, 4) + [(6, 6, lambda: tagit(RES))] + P(22, RES + 1, 6) + P(VX, RES + 2, 8) + P(VX + 4, RES + 3, 9)
    side += [(8, 9, lambda: zero(18, 2)), (8, 9, lambda: zero(20, 2))]
    side += [(10, 10, lambda: A(f"buffer_store_dwordx4 v[{RES}:{RES+3}], v{vPst}, {WS}, s{sP1} offen{SC}"))]
    side += [(10, 11, lambda: lds_half(('o', (1, 0)), 0, 0, SB)), (10, 12, lambda: lds_half(('o', (1, 0)), 0, 1, SB)),
             (11, 12, lambda: lds_half(('o', (1, 0)), 1, 0, SB + 8)), (11, 13, lambda: lds_half(('o', (1, 0)), 1, 1, SB + 8))]
    side += P(26, 62, 11) + [(12, 12, lambda: tagit(62)), (12, 12, lambda: A(f"buffer_store_dword v62, v{vPc}, {WS}, s{sP2} offen{SC}"))]
    side += [(8, 11, lambda: zero(22, 2)), (8, 12, lambda: zero(24, 2)), (13, 13, lambda: zero(34, 2)), (13, 13, lambda: zero(36, 2))]
    side += P(30, RES, 15) + [(16, 16, lambda: tagit(RES))] + P(18, RES + 1, 16)
    side += [(15, 17, lambda: A(f"ds_read_b128 v[{VX}:{VX+3}], v{vL16} offset:{L_SEL}", manual=True))]
    sched(mf, side)
    psum(22, RES + 2)
    psum(34, RES + 3)
    A(f"buffer_store_dwordx4 v[{RES}:{RES+3}], v{vPst}, {WS}, s{sP0} offen{SC}")
    D = VX + 4
    def rpoll(srd_):
        for i in range(4):
            A(f"buffer_load_dwordx4 v[{10+4*i}:{13+4*i}], v{vL16}, s[{srd_}:{srd_+3}], s{sRa} offen offset:{i*1024} sc1", manual=True)
    stamp(3)
    A(f"s_add_u32 s{sStep}, s{sStep}, 1")
    ts(A, 8, SRD_WS, 62, sStep)
    pre_a()
    A(f"""s_mov_b32 s{sCnt}, 0
s_cmp_lg_u32 s{sRole}, 0
s_waitcnt lgkmcnt(0)
s_cbranch_scc1 {L('notearly')} ;exit""")
    A.label(L('r_poll'))
    rpoll(SRD_WS)
    A(f"""s_add_u32 s{sCnt}, s{sCnt}, 1
s_cmp_lt_u32 s{sCnt}, {3 * POLL_MAX}
s_cselect_b32 s{sT1}, 1, 0""")
    for i in range(4):
        A(f"s_waitcnt vmcnt({3 - i})")
        A(f"v_mfma_f32_16x16x32_bf16 v[{D}:{D+3}], v[{VX}:{VX+3}], v[{10+4*i}:{13+4*i}], {'0' if i == 0 else rng('v', D, 4)}")
        if i == 1:
            A(f"v_bitop3_b32 v62, v10, v14, s{sTagM} bitop3:0x7e")
    gpoll(0, SRD_R)
    A(f"""v_bitop3_b32 v63, v18, v22, s{sTagM} bitop3:0x7e
v_bitop3_b32 v62, v62, v63, s{sT1} bitop3:0xa8
v_cmp_ne_u32 vcc, 0, v62""")
    for r in range(D, D + 4):
        A(f"v_add_f32_dpp v{r}, v{r}, v{r} row_ror:8 row_mask:0xf bank_mask:0xf")
    A(f"""v_cvt_pk_bf16_f32 v{D}, v{D}, v{D+1}
v_cvt_pk_bf16_f32 v{D+1}, v{D+2}, v{D+3}""")
    if dbg == 2: A(f"s_add_u32 s90, s90, 1")
    A(f"s_cbranch_vccnz {L('r_poll')} ;nofence")
    A(f"buffer_store_dwordx2 v[{D}:{D+1}], v{vMst}, {WS}, s{sMw} offen{SC}")
    stamp(4)
    A(f"""v_mov_b64 v[62:63], s[{sPz}:{sPz+1}]
buffer_store_dwordx2 v[62:63], v{vMst}, {WS}, s{sMp} offen{SC}
s_branch {L('gather')} ;exit""")
    A.label(L('notearly'))
    A(f"""s_cmp_eq_u32 s{sRole}, 2
s_waitcnt vmcnt(0)
s_cbranch_scc1 {L('gather')}
s_branch {L('r_poll')}""")
    A.label(L('g_out'))
    A(f"""s_waitcnt vmcnt(0)
s_branch {L('top')}""")
    for lab, buf, so, off in (('late1', R1, sGa, 1024),):
        A.label(L(lab))
        A(f"s_mov_b32 s{sCnt}, 0")
        A.label(L(lab + 'l'))
        if dbg == 2: A(f"s_add_u32 s89, s89, 1")
        A(f"""buffer_load_dwordx4 v[{buf}:{buf+3}], v{vL16}, {WS}, s{so} offen offset:{off} sc1
s_add_u32 s{sCnt}, s{sCnt}, 1
v_cmp_eq_u32 s[{sT2+1}:{sT2+2}], s{sPz}, v{buf}
v_cmp_eq_u32 vcc, s{sPz}, v{buf+2}
s_or_b64 vcc, vcc, s[{sT2+1}:{sT2+2}]
s_cmp_gt_u32 s{sCnt}, {POLL_MAX}
s_cbranch_scc1 {L(lab + 'r')} ;exit
s_cbranch_vccnz {L(lab + 'l')} ;nofence
s_branch {L(lab + 'r')} ;exit""")
    if flags:
        A.label(L('kvw'))
        A("s_nop 3")
        kv_wait(A, L('kvl'), VX)
        A(f"s_branch {L('kvr')}")
    A.label(L('slow'))
    A("s_nop 15")
    A(f"""v_max3_f32 v30, v{sv[0]}, v{sv[1]}, v{sv[2]}
v_max3_f32 v31, v{sv[3]}, v{sv[4]}, v{sv[5]}
v_max3_f32 v30, v30, v{sv[6]}, v{sv[7]}
v_max3_f32 v31, v31, v{sv[8]}, v{sv[9]}
v_max_f32 v30, v30, v31
v_mov_b32 v31, v30
v_permlane32_swap_b32 v30, v31
v_max_f32 v30, v30, v31
v_mov_b32 v31, v30
v_permlane16_swap_b32 v30, v31
v_max_f32 v30, v30, v31""")
    for r in sv:
        A(f"v_sub_f32 v{r}, v{r}, v30")
    for r in sv:
        A(f"v_exp_f32 v{r}, v{r}")
    for n in range(4):
        A(f"v_cvt_pk_bf16_f32 v{PX+n}, v{sv[2*n]}, v{sv[2*n+1]}")
    A(f"""v_cvt_pk_bf16_f32 v20, v{SM}, v{SM+1}
v_mov_b32 v21, 0
v_mov_b32 v18, 0
v_mov_b32 v19, v20
v_mfma_f32_16x16x32_bf16 v[{O1}:{O1+3}], v[{VX+4}:{VX+7}], v[{PX}:{PX+3}], 0
v_mfma_f32_16x16x32_bf16 v[{O0}:{O0+3}], v[{VX}:{VX+3}], v[{PX}:{PX+3}], 0
v_mfma_f32_16x16x32_bf16 v[{LSUM}:{LSUM+3}], v[{ONE}:{ONE+3}], v[{PX}:{PX+3}], 0
v_mfma_f32_16x16x16_bf16 v[{O1}:{O1+3}], v[{VMr}:{VMr+1}], v[18:19], v[{O1}:{O1+3}]
v_mfma_f32_16x16x16_bf16 v[{O0}:{O0+3}], v[{VMr}:{VMr+1}], v[20:21], v[{O0}:{O0+3}]
v_mfma_f32_16x16x16_bf16 v[{LSUM}:{LSUM+3}], v[{ONE}:{ONE+1}], v[20:21], v[{LSUM}:{LSUM+3}]
v_rcp_f32 v31, v30""")
    norm()
    A(f"""s_mov_b64 exec, -1
s_waitcnt lgkmcnt(0)
s_branch {L('slowret')}""")
```

```python
from asmlib import Asm
from layout import *
import struct, math, os
from prof import ts

NSTEPS = 64
C_SCALE = (128 ** -0.5) * math.log2(math.e)
def fbits(x): return struct.unpack('<I', struct.pack('<f', x))[0]
EXP = os.environ.get('EXP', 'E')

LDS_CHUNKS = [('q', 0), ('k', 0), ('q', 2), ('k', 2), ('o', (0, 0)), ('o', (1, 0)), ('v', 6), ('v', 7)]
REG_CHUNKS = [(m, j) for j in range(9) for m in 'qk' if (m, j) not in LDS_CHUNKS] + \
             [('v', j) for j in (0, 2, 1, 3, 8, 4, 5)] + \
             [('o', (0, 1)), ('o', (1, 1)), ('o', (2, 0)), ('o', (3, 0)), ('o', (2, 1)), ('o', (3, 1))]
assert len(REG_CHUNKS) == 27
def lds_off(ch, tt, k5):
    if ch == ('o', 8):
        return 32768 + k5 * 1024
    i = LDS_CHUNKS.index(ch)
    if i < 6:
        return ((i >> 1) * 2 + k5) * 4096 + ((i & 1) * 2 + tt) * 1024
    return i * 4096 + k5 * 2048 + tt * 1024
_blk = {}
def _regblock(n):
    return ('a', 8 * n) if n < 32 else ('v', 72 + 8 * (n - 32))
n = 0
for ch in REG_CHUNKS:
    for tt in range(2):
        _blk[(ch, tt)] = _regblock(n); n += 1
_blk[(('o', 8), 1)] = _regblock(n); n += 1
assert n == 55
def rng(f, b, n): return '%s[%d:%d]' % (f, b, b + n - 1)
def blk_regs(ch, tt):
    f, b = _blk[(ch, tt)]
    return rng(f, b, 8)

vDummy, vL16, vL8, vIdx, vQKw, vOw, vPst, vMst, vW, vPc = 0, 1, 2, 3, 4, 5, 6, 7, 8, 9
VX = 64
sH, sW = 3, 4
SRD_Q, SRD_K, SRD_V, SRD_O, SRD_WS = 8, 12, 16, 20, 24
sDBG, sMEM0 = 28, 30
sStep, sTag, sMw, sMp, sRa, sReady, sRole, sFast, sC = 32, 33, 34, 35, 36, 37, 38, 39, 40
sT0, sT1, sT2, sT3 = 41, 42, 43, 44
sSeg, sNeed, sCnt = 101, 46, 47
sEx = 48
sPz = 50
sTm = 52
sKMa, sTa, sVMa, sVXa, sKXa, sP0, sP1, sP2, sGa, sGb, sLate = 60, 61, 62, 63, 64, 65, 66, 67, 69, 70, 71
sKF, sW10 = 68, 100
sOnes, sBig, sRep = 72, 74, 75
sXcc, sW11, sTouch, sTagM = 76, 77, 78, 79
SRD_R = 96
sQP = 96
POLL_MAX = 20000
NREP = int(os.environ.get('NREP', '4'))
WS = f"s[{SRD_WS}:{SRD_WS+3}]"

def srd(A, d, ptr, nbytes):
    A(f"""s_mov_b32 s{d}, s{ptr}
s_and_b32 s{d+1}, s{ptr+1}, 0xffff
s_mov_b32 s{d+2}, {nbytes}
s_mov_b32 s{d+3}, 0x20000""")

def kv_eval(A, v):
    A(f"""v_cmp_eq_u32 vcc, 0x01010101, v{v}
s_ff0_i32_b64 s{sReady}, vcc
s_min_u32 s{sReady}, s{sReady}, 64""")

def kv_wait(A, lab, vt):
    A(f"""v_lshrrev_b32 v{vt+1}, 2, v{vL16}
s_mov_b32 s{sCnt}, 0""")
    A.label(lab)
    A(f"""buffer_load_dword v{vt}, v{vt+1}, {WS}, s{sKF} offen sc1
s_add_u32 s{sCnt}, s{sCnt}, 1""")
    kv_eval(A, vt)
    A(f"""s_cmp_gt_u32 s{sCnt}, {POLL_MAX * 8}
s_cbranch_scc1 {lab}_d
s_cmp_gt_u32 s{sReady}, s{sNeed}
s_cbranch_scc1 {lab}_d
s_sleep 4
s_branch {lab}""")
    A.label(lab + '_d')

def bits(A, dst, terms, tmp, first=True):
    for (b, wd, sh) in terms:
        A(f"v_bfe_u32 v{tmp}, v0, {b}, {wd}")
        if first:
            A(f"v_lshlrev_b32 v{dst}, {sh}, v{tmp}"); first = False
        else:
            A(f"v_lshl_add_u32 v{dst}, v{tmp}, {sh}, v{dst}")

def gen_chain(A, dbg=0, tag='C', flags=False):
    L = lambda x: f'{tag}_{x}'
    NST = 12
    R0, R1, R2 = 34, 38, 58
    if dbg:
        A(f"s_memtime s[{sTm+6}:{sTm+7}]")
    A(f"""s_lshr_b32 s{sH}, s2, 3
s_load_dwordx4 s[60:63], s[0:1], 32
s_load_dwordx4 s[64:67], s[0:1], 48
s_load_dwordx2 s[68:69], s[0:1], 64
s_load_dwordx4 s[72:75], s[0:1], 88
v_lshrrev_b32 v10, 6, v0
v_and_b32 v0, 63, v0
v_readfirstlane_b32 s{sW}, v10
s_getreg_b32 s{sXcc}, hwreg(HW_REG_XCC_ID)
v_lshlrev_b32 v{vL16}, 4, v0
v_lshlrev_b32 v{vL8}, 3, v0
s_waitcnt lgkmcnt(0)""")
    srd(A, SRD_Q, 62, 576 * 4096 * 2)
    srd(A, SRD_K, 64, 576 * 4096 * 2)
    srd(A, SRD_V, 66, 576 * 4096 * 2)
    srd(A, SRD_O, 68, 576 * 4096 * 2)
    srd(A, SRD_WS, 74, WS_BYTES)
    A(f"""s_mov_b32 s{sDBG}, s72
s_mov_b32 s{sDBG+1}, s73
s_mov_b32 s{sMEM0}, s60
s_mov_b32 s{sMEM0+1}, s61
s_mov_b32 s{sC}, {fbits(C_SCALE):#x}
s_lshl_b32 s{sW11}, s{sW}, 11
s_and_b32 s{sXcc}, s{sXcc}, 15
s_mov_b32 s{sPz}, {POISON:#x}
s_mov_b32 s{sPz+1}, {POISON:#x}""")
    ts(A, 0, SRD_WS, 10, dbg=(0, 'min'))
    A(f"""s_add_u32 s{sT0}, s{sH}, 32
s_cmp_eq_u32 s{sW}, 1
s_cselect_b32 s{sT0}, s{sH}, s{sT0}
s_cselect_b32 s{sRole}, 1, 0
s_add_u32 s{sT1}, s{sH}, 64
s_min_u32 s{sT1}, s{sT1}, 71
s_cmp_ge_u32 s{sW}, 2
s_cselect_b32 s{sT0}, s{sT1}, s{sT0}
s_lshl_b32 s{sRa}, s{sT0}, 12
s_add_u32 s{sRa}, s{sRa}, {PART_OFF}
s_cmp_lt_u32 s{sH}, 8
s_cselect_b32 s{sT1}, 0, 2
s_cmp_eq_u32 s{sW}, 2
s_cselect_b32 s{sRole}, s{sT1}, s{sRole}
s_cmp_eq_u32 s{sW}, 3
s_cselect_b32 s{sRole}, 2, s{sRole}""")
    A(f"""s_bfe_u32 s{sT1}, s{sT0}, 0x20003
s_lshl_b32 s{sT1}, s{sT1}, 11
s_cmp_lt_u32 s{sT0}, 32
s_cselect_b32 s{sT3}, 1024, 0
s_add_u32 s{sT1}, s{sT1}, s{sT3}
s_and_b32 s{sT3}, s{sT0}, 1
s_lshl_b32 s{sT3}, s{sT3}, 9
s_add_u32 s{sT1}, s{sT1}, s{sT3}
s_bfe_u32 s{sT3}, s{sT0}, 0x20001
s_lshl_b32 s{sT3}, s{sT3}, 6
s_add_u32 s{sT1}, s{sT1}, s{sT3}
s_lshl_b32 s{sT2}, s{sT0}, 7
s_cmp_ge_u32 s{sT0}, 64
s_cselect_b32 s{sT1}, s{sT2}, s{sT1}
s_cselect_b32 s{sT2}, 6, 8
v_bfe_u32 v10, v0, 2, 1
v_lshlrev_b32 v10, s{sT2}, v10""")
    bits(A, 10, [(1, 1, 5), (4, 1, 4), (0, 1, 3)], 11, False)
    A(f"""v_lshrrev_b32 v11, 5, v0
v_bfe_u32 v12, v0, 3, 1
v_lshl_add_u32 v11, v11, 1, v12
v_and_b32 v11, {NREP - 1}, v11
v_mul_u32_u24 v11, {MREP}, v11
v_add3_u32 v{vMst}, v10, v11, s{sT1}""")
    A(f"""v_mov_b64 v[12:13], 0
v_mov_b64 v[14:15], 0
v_mov_b64 v[16:17], 1
v_mov_b64 v[18:19], 1
v_mov_b64 v[20:21], s[{sPz}:{sPz+1}]""")
    if flags:
        A(f"""s_lshl_b32 s{sT0}, s{sH}, 12
s_lshl_b32 s{sT1}, s{sW}, 10
s_add_u32 s{sT0}, s{sT0}, s{sT1}
s_add_u32 s{sT0}, s{sT0}, {FLG_OFF}
buffer_store_dwordx4 v[12:15], v{vL16}, {WS}, s{sT0} offen sc1""")
    A(f"""s_cmp_eq_u32 s{sRole}, 2
s_cbranch_scc1 {L('noinit')}""")
    for i in range(4):
        A(f"buffer_store_dwordx4 v[16:19], v{vL16}, {WS}, s{sRa} offen offset:{i*1024} sc1")
    for slot in range(3):
        A(f"s_mov_b32 s{sT0}, {MIMG_OFF + slot * MIMG_SLOT}")
        A(f"buffer_store_dwordx2 v[20:21], v{vMst}, {WS}, s{sT0} offen sc1")
    A.label(L('noinit'))
    bits(A, 10, [(2, 2, 1), (0, 1, 0)], 11)
    A("v_mul_u32_u24 v10, 1152, v10")
    A("v_mov_b32 v22, v10")
    bits(A, 10, [(4, 2, 3), (1, 1, 2)], 11, False)
    bits(A, 22, [(4, 2, 5), (1, 1, 4)], 11, False)
    A(f"""s_lshl_b32 s{sT0}, s{sW}, 7
v_add_u32 v10, s{sT0}, v10""")
    for b in range(2):
        for t in range(4):
            A(f"global_load_dword v{24+4*b+t}, v10, s[{sMEM0}:{sMEM0+1}] offset:{512*(1-b) + 32*t}", manual=True)
    A(f"global_load_dwordx4 v[{R2}:{R2+3}], v22, s[{sMEM0}:{sMEM0+1}] offset:1024", manual=True)
    A(f"""v_bfe_u32 v11, v0, 4, 1
v_lshlrev_b32 v11, 1, v11
v_xor_b32 v11, v11, v0
v_and_b32 v12, 3, v11
v_lshlrev_b32 v13, 4, v12""")
    bits(A, 66, [(5, 1, 18), (2, 1, 17), (3, 1, 14), (4, 1, 13)], 11)
    A("v_add_u32 v66, v66, v13")
    bits(A, 67, [(3, 1, 16), (4, 1, 15), (5, 1, 14), (2, 1, 13)], 11)
    A("v_add_u32 v67, v67, v13")
    bits(A, 14, [(4, 1, 4), (3, 1, 2), (5, 1, 1), (2, 1, 0)], 11)
    A(f"""v_mul_u32_u24 v15, 1152, v14
v_lshrrev_b32 v11, 1, v12
v_mul_u32_u24 v11, {64 * 1152}, v11
v_and_b32 v12, 1, v12
v_lshl_add_u32 v12, v12, 4, v15
v_add_u32 v69, v12, v11
v_lshrrev_b32 v11, 4, v0
v_lshlrev_b32 v11, 1, v11
v_xor_b32 v11, v11, v0
v_and_b32 v11, 7, v11
v_lshlrev_b32 v13, 4, v11""")
    bits(A, 68, [(3, 1, 17), (4, 1, 14), (5, 1, 13)], 11)
    A("v_add_u32 v68, v68, v13")
    bits(A, 70, [(3, 1, 13), (4, 1, 16), (5, 1, 15)], 11)
    A("v_add_u32 v70, v70, v13")
    bits(A, 14, [(3, 1, 0), (4, 1, 2), (5, 1, 4)], 11)
    A("""v_mul_u32_u24 v14, 1152, v14
v_add_u32 v71, v14, v13""")
    sCV, sCO, sCO8, sLds, sCX = sT1, sT2, sT3, sSeg, sNeed
    A(f"""s_lshl_b32 s{sCV}, s{sH}, 8
s_and_b32 s{sT0}, s{sW}, 1
s_lshl_b32 s{sT0}, s{sT0}, 7
s_add_u32 s{sCX}, s{sCV}, s{sT0}
s_lshl_b32 s{sT0}, s{sW}, 6
s_add_u32 s{sCV}, s{sCV}, s{sT0}
s_mul_i32 s{sCO}, s{sH}, {128 * 1152}
s_lshl_b32 s{sT0}, s{sW}, 5
s_add_u32 s{sCO8}, s{sCO}, s{sT0}
s_add_u32 s{sCO8}, s{sCO8}, 1024
s_lshl_b32 s{sT0}, s{sW}, 7
s_add_u32 s{sCO}, s{sCO}, s{sT0}
s_mul_i32 s{sLds}, s{sW}, {L_WSZ}
s_add_u32 s{sLds}, s{sLds}, {L_W}
s_lshl_b32 s{sKXa}, s{sW}, 12
s_cmp_lt_u32 s{sW}, 2
s_cselect_b32 s{SRD_Q}, s{SRD_Q}, s{SRD_K}
s_cselect_b32 s{SRD_Q+1}, s{SRD_Q+1}, s{SRD_K+1}""")
    for p in range(4):
        A(f"""s_xor_b32 s{sT0}, s{sW}, {p}
s_lshl_b32 s{sQP+p}, s{sT0}, 19""")
    items = [('x', j, k5) for j in (1, 3, 4, 5, 6, 7, 8) for k5 in range(2)] + \
            [('o', rp, jj, k5) for rp, jj in ((0, 1), (1, 0), (1, 1)) for k5 in range(2)] + [('v', j) for j in (0, 2, 1, 3, 8, 4, 5)] + \
            [('x', 0, 0), ('x', 0, 1), ('x', 2, 0), ('x', 2, 1), ('o', 0, 0, 0), ('o', 0, 0, 1), ('v', 6), ('v', 7), ('o8',)]
    assert len(items) == 36
    NU_ = 9
    def issue(k):
        it = items[k]; un = k % NU_
        for i in range(4):
            rot = None
            if it[0] == 'x':
                s_, sb = SRD_Q, sCX
                if it[1] == 8:
                    so, vo = (512 + 32 * it[2] + 16 * (i >> 1) + 2 * (i & 1)) * 8192, 70
                else:
                    so, vo, rot = (256 * (1 - (it[1] & 1)) + 8 * it[2] + 4 * (i >> 1) + 32 * (i & 1)) * 8192, 68, it[1] >> 1
            elif it[0] == 'o':
                s_, sb, vo = SRD_O, sCO, 71
                so = (64 * it[2] + 32 * it[3] + 8 * (i >> 1) + 2 * (i & 1)) * 1152 + it[1] * 512
            elif it[0] == 'v':
                s_, sb = SRD_V, sCV
                if it[1] == 8:
                    so, vo = (512 + 32 * (i >> 1) + 16 * (i & 1)) * 8192, 67
                else:
                    so, vo, rot = (256 * (1 - (it[1] & 1)) + 8 * (i >> 1) + 4 * (i & 1)) * 8192, 66, it[1] >> 1
            else:
                s_, sb, vo = SRD_O, sCO8, 69
                so = (32 * (i >> 1) + 8 * (i & 1)) * 1152
            A(f"s_add_u32 m0, s{sLds if un < 8 else sKXa}, {(un * 4096 if un < 8 else 0) + i * 1024}")
            A(f"s_add_u32 s{sT0}, s{sb}, {so}")
            if rot is not None:
                A(f"s_add_u32 s{sT0}, s{sT0}, s{sQP + rot}")
            A(f"buffer_load_dwordx4 v{vo}, s[{s_}:{s_+3}], s{sT0} offen lds")
    ts(A, 4, SRD_WS, 10, dbg=(4, 'max'))
    DEP = int(os.environ.get('DEP', '5'))
    for k in range(DEP):
        issue(k)
    ts(A, 5, SRD_WS, 10)
    A(f"""s_mul_i32 s{sT0}, s{sXcc}, s{sXcc}
s_lshl_b32 s{sT0}, s{sT0}, 10
s_add_u32 s{sT0}, s{sT0}, s{sXcc}
s_lshl_b32 s{sT0}, s{sT0}, 8
s_add_u32 s{sXcc}, s{sT0}, 1
v_mov_b32 v12, 128
v_mov_b32 v13, s{sXcc}
s_waitcnt vmcnt({4 * DEP})
s_barrier
s_cmp_lg_u32 s{sW}, 0
s_cbranch_scc1 {L('arr')}
s_mov_b64 exec, 1
global_atomic_add v12, v13, s[{sDBG}:{sDBG+1}]
s_mov_b64 exec, -1""")
    A.label(L('arr'))
    A(f"""s_mov_b32 s{sKMa}, 0x05040100
s_mov_b32 s{sTa}, 0x07060302""")
    for b, R in ((0, R0), (1, R1)):
        x = 24 + 4 * b
        A(f"""v_perm_b32 v{R}, v{x+1}, v{x}, s{sKMa}
v_perm_b32 v{R+1}, v{x+3}, v{x+2}, s{sKMa}
v_perm_b32 v{R+2}, v{x+1}, v{x}, s{sTa}
v_perm_b32 v{R+3}, v{x+3}, v{x+2}, s{sTa}""")
    A(f"""v_and_b32 v10, 2, v0
v_cmp_eq_u32 vcc, 0, v10
v_mov_b32 v11, 0xeeee
v_mov_b32 v12, 0x4444
v_cndmask_b32 v{vIdx}, v11, v12, vcc""")
    bits(A, 10, [(0, 4, 5), (4, 2, 3)], 11)
    A(f"""s_and_b32 s{sT0}, s{sW}, 1
s_lshl_b32 s{sT0}, s{sT0}, 11
s_add_u32 s{sT0}, s{sT0}, {L_QK}
v_add_u32 v10, s{sT0}, v10
s_cmp_lt_u32 s{sW}, 2
s_cselect_b32 s{sT0}, 4, 0
v_add_u32 v{vQKw}, s{sT0}, v10""")
    bits(A, 10, [(0, 1, 4), (2, 2, 6), (4, 1, 5), (5, 1, 8)], 11)
    A(f"""s_lshl_b32 s{sT0}, s{sW}, 9
s_add_u32 s{sT0}, s{sT0}, {L_O}
v_add_u32 v{vOw}, s{sT0}, v10""")
    bits(A, 10, [(3, 3, 12), (0, 3, 4)], 11)
    bits(A, 12, [(5, 1, 12), (0, 5, 2)], 11)
    A(f"""s_lshl_b32 s{sT0}, s{sH}, 7
v_add_u32 v{vPst}, s{sT0}, v10
v_add_u32 v{vPc}, s{sT0}, v12
s_lshl_b32 s{sT0}, s{sW}, 15
s_add_u32 s{sP0}, s{sT0}, {PART_OFF}
s_add_u32 s{sP1}, s{sP0}, {4 * 32768}
s_lshl_b32 s{sT0}, s{sW}, 13
s_add_u32 s{sP2}, s{sT0}, {PART_OFF + 8 * 32768}
v_add_u32 v{vW}, s{sLds}, v{vL16}
s_mov_b32 s{sEx}, 0xcccccccc
s_mov_b32 s{sEx+1}, 0xcccccccc
s_add_u32 s{sT0}, s{sH}, s{sW}
s_and_b32 s{sT0}, s{sT0}, {NREP - 1}
s_mul_i32 s{sRep}, s{sT0}, {MREP}
s_lshl_b32 s{sTouch}, s{sW}, 12
s_mov_b32 s{sOnes}, 0x3f803f80
s_mov_b32 s{sOnes+1}, 0x3f803f80
s_mov_b32 s{sBig}, {fbits(2.0**60):#x}""")
    A(f"""v_and_b32 v10, 4, v0
v_cmp_eq_u32 vcc, 0, v10
v_mov_b32 v11, 0x3f800000
v_mov_b32 v12, 0x3f80
v_cndmask_b32 v11, v11, v12, vcc
v_and_b32 v10, 3, v0""")
    for d in range(4):
        A(f"""v_cmp_eq_u32 vcc, {d}, v10
v_cndmask_b32 v{20+d}, 0, v11, vcc""")
    A("v_mov_b64 v[42:43], v[20:21]")
    A("v_mov_b64 v[44:45], v[22:23]")
    bits(A, 64, [(5, 1, 10), (4, 1, 8), (4, 1, 5), (2, 2, 6), (0, 2, 3)], 11)
    bits(A, 65, [(5, 1, 11), (4, 1, 9), (2, 2, 7), (3, 2, 5), (0, 2, 3)], 11)
    ts(A, 6, SRD_WS, 10)
    for k in range(36):
        issued = min(k + DEP, 36)
        it = items[k]; un = k % NU_
        A(f"s_waitcnt vmcnt({4 * (issued - (k + 1)) + (2 if k > 33 else 0)})")
        sbase = sLds if un < 8 else sKXa
        ub = un * 4096 if un < 8 else 0
        wide = it[0] in 'xo' and it[0] != 'o8'
        wb = []
        for n in range(4):
            if wide:
                k5 = it[-1]; tt = n & 1
                ch = (('q', 'k')[n >> 1], it[1]) if it[0] == 'x' else ('o', (2 * it[1] + (n >> 1), it[2]))
                A(f"v_xor_b32 v46, {32 * n}, v65")
                o0, o1 = ub, ub + 1024
            else:
                k5 = n >> 1; tt = n & 1
                ch = ('v', it[1]) if it[0] == 'v' else ('o', 8)
                A(f"v_xor_b32 v46, {32 * tt}, v64")
                o0, o1 = ub + k5 * 2048, ub + k5 * 2048 + 512
            A(f"v_add_u32 v46, s{sbase}, v46")
            if (ch, tt) in _blk:
                f, b = _blk[(ch, tt)]; b += 4 * k5
            else:
                f, b = 'v', 10 + 4 * n
                wb.append((b, lds_off(ch, tt, k5)))
            A(f"ds_read_b64_tr_b16 {rng(f, b, 2)}, v46 offset:{o0}")
            A(f"ds_read_b64_tr_b16 {rng(f, b + 2, 2)}, v46 offset:{o1}")
        A("s_waitcnt lgkmcnt(0)")
        if k + DEP < 36:
            issue(k + DEP)
        if k == 33:
            A(f"""v_mov_b32 v47, 128
v_lshrrev_b32 v48, 2, v{vL16}
s_lshl_b32 s{sKF}, s{sH}, 12
s_add_u32 s{sKF}, s{sKF}, {FLG_OFF}""")
            A(f"""global_load_dword v47, v47, s[{sDBG}:{sDBG+1}] sc1
buffer_load_dword v48, v48, {WS}, s{sKF} offen sc1""", manual=True)
        for b, off in wb:
            A(f"ds_write_b128 v{vW}, v[{b}:{b+3}] offset:{off}")
    A("s_barrier")
    A(f"ds_write_b128 v{vL16}, v[42:45] offset:{L_SEL}")
    ts(A, 1, SRD_WS, 10, dbg=(1, 'max'))
    A(f"""v_mov_b32 v10, 128
s_mov_b32 s{sCnt}, 0
s_waitcnt vmcnt(0)
v_readfirstlane_b32 s{sT0}, v47
s_and_b32 s{sT1}, s{sT0}, 0xff
s_cmp_ge_u32 s{sT1}, 32
s_cbranch_scc1 {L('rdv_done')}""")
    A.label(L('rdv_loop'))
    A(f"""global_load_dword v12, v10, s[{sDBG}:{sDBG+1}] sc1
s_add_u32 s{sCnt}, s{sCnt}, 1
v_readfirstlane_b32 s{sT0}, v12
s_cmp_gt_u32 s{sCnt}, {POLL_MAX}
s_cbranch_scc1 {L('rdv_done')}
s_and_b32 s{sT1}, s{sT0}, 0xff
s_cmp_ge_u32 s{sT1}, 32
s_cbranch_scc1 {L('rdv_done')}
s_sleep 4
s_branch {L('rdv_loop')}""")
    A.label(L('rdv_done'))
    A(f"""s_lshl_b32 s{sT1}, s{sXcc}, 5
s_cmp_eq_u32 s{sT0}, s{sT1}
s_cselect_b32 s{sFast}, 1, 0
s_mov_b32 s{sStep}, 0
s_lshl_b32 s{sSeg}, s{sH}, 20
s_mov_b32 s{sMp}, {MIMG_OFF}
s_mov_b32 s{sMw}, {MIMG_OFF + MIMG_SLOT}
s_mov_b32 s{sReady}, 64
s_lshl_b32 s{sW10}, s{sW}, 10
s_sub_u32 s{sW10}, s{sW10}, 2048
s_mov_b32 s{SRD_K}, s{SRD_WS}
s_mov_b32 s{SRD_K+1}, s{SRD_WS+1}
s_cmp_ge_u32 s{sW}, 2
s_cselect_b32 s{SRD_K+2}, {WS_BYTES}, 0
s_mov_b32 s{SRD_R}, s{SRD_WS}
s_mov_b32 s{SRD_R+1}, s{SRD_WS+1}
s_cmp_eq_u32 s{sRole}, 1
s_cselect_b32 s{SRD_R+2}, {WS_BYTES}, 0
s_mov_b32 s{SRD_R+3}, 0x20000
s_add_u32 m0, s{sW11}, {L_KX}""")
    if flags:
        A(f"s_mov_b32 s{sNeed}, 0")
        kv_eval(A, 48)
        A(f"""s_cmp_gt_u32 s{sReady}, 0
s_cbranch_scc1 {L('kv0_d')}""")
        kv_wait(A, L('kv0'), 16)
    if dbg:
        A(f"s_memtime s[{sTm}:{sTm+1}]")
        A("s_waitcnt lgkmcnt(0)")
        A(f"s_mov_b32 s{sTm+5}, s{sTm}")
        for n in range(NST): A(f"s_mov_b32 s{80+n}, 0")
    ts(A, 2, SRD_WS, 12, dbg=(2, 'max'))
    A(f"s_cmp_eq_u32 s{sFast}, 0")
    A(f"s_cbranch_scc1 {L('S_pre')}")
    gen_loop(A, dbg, tag + '_F', '', L('end'), flags)
    gen_loop(A, dbg, tag + '_S', ' sc1', L('end'), flags)
    A.label(L('end'))
    ts(A, 3, SRD_WS, 10, dbg=(3, 'max'))
    if dbg:
        A(f"""s_memtime s[{sTm+2}:{sTm+3}]
s_waitcnt lgkmcnt(0)
s_sub_u32 s{sT0}, s{sTm+2}, s{sTm}
v_mov_b32 v10, s{sT0}
v_mov_b32 v11, s{sFast}
s_lshl_b32 s{sT1}, s{sH}, 8
s_lshl_b32 s{sT2}, s{sW}, 6
s_add_u32 s{sT1}, s{sT1}, s{sT2}
s_add_u32 s{sT1}, s{sT1}, {DBG_OFF + 0x200000}
v_mov_b32 v12, 0
s_sub_u32 s{sT0}, s{sTm}, s{sTm+6}
v_mov_b32 v13, s{sT0}
s_mov_b64 exec, 1
buffer_store_dwordx2 v[10:11], v12, {WS}, s{sT1} offen
buffer_store_dword v13, v12, {WS}, s{sT1} offen offset:8""")
        for n in range(NST):
            A(f"v_mov_b32 v13, s{80+n}")
            A(f"buffer_store_dword v13, v12, {WS}, s{sT1} offen offset:{16+4*n}")
    A("s_endpgm")


def gen_loop(A, dbg, tag, SC, endlab, flags):
    L = lambda x: f'{tag}_{x}'
    def stamp(n):
        if dbg == 5:
            A(f"""s_memrealtime s[{sTm+2}:{sTm+3}]
s_cmp_eq_u32 s{sStep}, {41 if n in (4, 5, 6, 7) else 40}
s_waitcnt lgkmcnt(0)
s_cselect_b32 s{80+n}, s{sTm+2}, s{80+n}""")
            return
        if dbg not in (2, 3): return
        A(f"""s_memtime s[{sTm+2}:{sTm+3}]
s_waitcnt lgkmcnt(0)
s_sub_u32 s{sTm+4}, s{sTm+2}, s{sTm+5}
s_add_u32 s{80+n}, s{80+n}, s{sTm+4}
s_mov_b32 s{sTm+5}, s{sTm+2}""")
    aQ, aK, aV = 10, 18, 26
    R0, R1, R2 = 34, 38, 58
    SB = 42
    def lds_half(ch, tt, k5, dst, manual=False):
        A(f"ds_read_b128 v[{dst+4*k5}:{dst+4*k5+3}], v{vW} offset:{lds_off(ch, tt, k5)}", manual)
    def lds_blk(ch, tt, dst, manual=False):
        lds_half(ch, tt, 0, dst, manual); lds_half(ch, tt, 1, dst, manual)
    def sched(mf, side):
        side = sorted(enumerate(side), key=lambda x: (x[1][1], x[0]))
        for g, m in enumerate(mf):
            m()
            n = 0
            for e in list(side):
                rel, dl, fn = e[1]
                if rel <= g and (n == 0 or dl <= g):
                    fn(); side.remove(e); n += 1
        assert not side, side
    def zero(b, n):
        for r in range(b, b + n, 2):
            A(f"v_mov_b64 v[{r}:{r+1}], 0")
    def smf(acc, a, b):
        A(f"v_smfmac_f32_16x16x64_bf16 v[{acc}:{acc+3}], v[{a}:{a+3}], {b}, v{vIdx}")
    cur_p = [None]
    def xr(p):
        A(f"v_xor_b32 v62, {p * 2048}, v63")
        cur_p[0] = p
    def rdA(slot, buf, manual=False):
        p = slot >> 1
        if p == 0:
            base = 63
        else:
            if cur_p[0] != p:
                xr(p)
            base = 62
        A(f"ds_read_b128 v[{buf}:{buf+3}], v{base} offset:{L_M + (slot & 1) * 1024}", manual)
    def ps(a, dst, part):
        if part == 0: A(f"v_add_f32 v{a}, v{a}, v{a+2}")
        elif part == 1: A(f"v_add_f32 v{a+1}, v{a+1}, v{a+3}")
        else: A(f"v_cvt_pk_bf16_f32 v{dst}, v{a}, v{a+1}")
    def psum(a, dst):
        for part in range(3): ps(a, dst, part)
    def tagit(r):
        A(f"v_bfi_b32 v{r}, 1, s{sTag}, v{r}")
    def rdX(u, x):
        A(f"ds_read_b64_tr_b16 v[{x}:{x+1}], v{vL8} offset:{L_QK + u*1024}")
        A(f"ds_read_b64_tr_b16 v[{x+2}:{x+3}], v{vL8} offset:{L_QK + u*1024 + 512}")
    def pre_a():
        lds_blk(('q', 0), 0, SB, True); lds_blk(('q', 0), 1, SB + 8, True)
        A(f"""s_lshr_b32 s{sKMa}, s{sSeg}, 1
s_add_u32 s{sKMa}, s{sKMa}, {MEM_OFF}
s_lshr_b32 s{sT1}, s{sW11}, 2
s_add_u32 s{sVMa}, s{sKMa}, s{sT1}
s_add_u32 s{sVMa}, s{sVMa}, 4096
s_add_u32 s{sKMa}, s{sKMa}, s{sW10}
s_add_u32 s{sKXa}, s{sSeg}, s{sW11}
s_add_u32 s{sVXa}, s{sKXa}, 8192
s_cmp_lt_u32 s{sStep}, 63
s_cselect_b32 s{sT0}, {0 if 'a' in EXP else 16384}, 0
s_add_u32 s{sSeg}, s{sSeg}, s{sT0}
s_add_u32 s{sTa}, s{sSeg}, s{sTouch}
s_add_u32 s{sNeed}, s{sStep}, 1
s_min_u32 s{sNeed}, s{sNeed}, 63
s_add_u32 s{sGb}, s{sMw}, s{sRep}
s_add_u32 s{sGa}, s{sGb}, s{sW11}
s_add_u32 s{sGb}, s{sGb}, 8192""")
    def pre_b():
        zero(10, 24)
        A(f"""v_add_u32 v63, s{sW11}, v{vL16}
v_xor_b32 v62, 2048, v63
s_and_b32 s{sTag}, s{sStep}, 1
s_sub_u32 s{sTagM}, 0, s{sTag}""")
    A.label(L('pre'))
    pre_a(); pre_b()
    A("s_waitcnt vmcnt(0) lgkmcnt(0)")
    A(f"s_branch {L('top')}")
    A.label(L('gather'))
    GS = [(R0, R2), (R1, VX)]
    def gpoll(k, srd_=SRD_WS):
        a, b = GS[k]
        A(f"""buffer_load_dwordx4 v[{a}:{a+3}], v{vL16}, s[{srd_}:{srd_+3}], s{sGa} offen sc1
buffer_load_dwordx4 v[{b}:{b+3}], v{vL16}, s[{srd_}:{srd_+3}], s{sGb} offen sc1""", manual=True)
    def gchk(k, n):
        a, b = GS[k]
        A(f"""s_waitcnt vmcnt({n})
v_max3_u32 v{vDummy}, v{a}, v{a+2}, v{b}
v_max_u32 v{vDummy}, v{vDummy}, v{b+2}
v_cmp_eq_u32 vcc, s{sPz}, v{vDummy}""")
        if dbg in (2, 3): A(f"s_add_u32 s91, s91, 1")
    A.label(L('gather2'))
    stamp(5)
    if flags: kv_eval(A, vDummy)
    pre_b()
    A(f"""s_mov_b32 s{sCnt}, 0
s_mov_b32 s{sMp}, s{sMw}
s_add_u32 s{sMw}, s{sMw}, {MIMG_SLOT}
s_cmp_eq_u32 s{sMw}, {MIMG_OFF + 3 * MIMG_SLOT}
s_cselect_b32 s{sMw}, {MIMG_OFF}, s{sMw}
s_cmp_lg_u32 s{sRole}, 1
s_cbranch_scc1 {L('g_poll')} ;exit""")
    gchk(0, 2)
    A(f"s_cbranch_vccz {L('top')} ;exit")
    A.label(L('g_poll'))
    gpoll(0)
    A(f"""s_add_u32 s{sCnt}, s{sCnt}, 1
s_cmp_gt_u32 s{sCnt}, {3 * POLL_MAX}
s_cbranch_scc1 {L('g_out')} ;exit""")
    gchk(0, 0)
    A(f"s_cbranch_vccnz {L('g_poll')} ;nofence")
    A.label(L('top'))
    stamp(6)
    groups = [('q', 0), ('v', 0), ('q', 8), ('k', 0), ('k', 8), ('v', 8), ('q', 2), ('v', 2), ('q', 4), ('k', 2), ('k', 4), ('v', 4),
              ('q', 6), ('k', 6), ('v', 6), ('q', 1), ('k', 1), ('q', 3), ('q', 5), ('q', 7), ('k', 3), ('k', 5), ('k', 7)]
    abuf = {0: R0, 8: R2, 2: R0, 4: R2, 6: R0, 1: R1, 3: R2, 5: R0, 7: R1}
    KB = [SB, SB + 8]
    def rdK(u, t=None):
        k = KB[u & 1]
        if t in (None, 0): A(f"ds_read_b128 v[{k}:{k+3}], v{vL16} offset:{L_KX + u*1024}")
        if t in (None, 1): A(f"ds_read_b128 v[{k+4}:{k+7}], v{vL16} offset:{L_KX + 4096 + u*1024}")
    def bar(n, st=False):
        A("s_waitcnt lgkmcnt(W)")
        A("s_barrier")
        if dbg == 5 and st: stamp(7)
    def chk(buf, lab, part):
        if part == 0:
            A(f"v_cmp_eq_u32 s[{sT2+1}:{sT2+2}], s{sPz}, v{buf}")
        elif part == 1:
            A(f"v_cmp_eq_u32 vcc, s{sPz}, v{buf+2}")
        else:
            A(f"s_or_b64 vcc, vcc, s[{sT2+1}:{sT2+2}]")
            A(f"s_cbranch_scc1 {L(lab)} ;exit")
            A.label(L(lab + 'r') + ' ;soft')
    def kvchk():
        if flags:
            A(f"""s_cmp_le_u32 s{sReady}, s{sNeed}
s_cbranch_scc1 {L('kvw')} ;exit""")
            A.label(L('kvr') + ' ;soft')
    def dump(which):
        A(f"""s_mul_i32 s{sT0}, s{sStep}, 16384
s_add_u32 s{sT0}, s{sT0}, {DBG_OFF}
s_cmp_eq_u32 s{sH}, 0
s_cselect_b32 s{sT0}, s{sT0}, {DBG_OFF + 0x100000}
s_add_u32 s{sT1}, s{sT0}, 8192""")
        if which == 0:
            A(f"""buffer_store_dwordx4 v[{R0}:{R0+3}], v63, {WS}, s{sT0} offen
buffer_store_dwordx4 v[{R2}:{R2+3}], v{vL16}, {WS}, s{sT1} offen""")
        else:
            A(f"buffer_store_dwordx4 v[{R1}:{R1+3}], v63, {WS}, s{sT0} offen offset:1024")
    def wq(t, r):
        A(f"ds_write_b32 v{vQKw}, v{r} offset:{t * 512}")
    mf = []
    for ch in groups:
        acc = {'q': aQ, 'k': aK, 'v': aV}[ch[0]]
        for tt in range(2):
            b = blk_regs(ch, tt) if (ch, tt) in _blk else rng('v', SB + 8 * tt, 8)
            mf.append(lambda acc=acc, tt=tt, ch=ch, b=b: smf(acc + 4 * tt, abuf[ch[1]], b))
    def stream(ch, rel):
        return [(rel, rel + 1, lambda: lds_half(ch, 0, 0, SB)), (rel, rel + 2, lambda: lds_half(ch, 0, 1, SB)),
                (rel + 1, rel + 2, lambda: lds_half(ch, 1, 0, SB + 8)), (rel + 1, rel + 3, lambda: lds_half(ch, 1, 1, SB + 8))]
    cur_p[0] = 1
    TG = int(os.environ.get('TG', '15'))
    G1G = int(os.environ.get('G1G', '4'))
    BA = int(os.environ.get('BA', '8'))
    def g1():
        A(f"""s_cmp_lg_u32 s{sStep}, 0
s_cselect_b64 exec, -1, 0""")
        A(f"buffer_load_dwordx4 v[{R1}:{R1+3}], v{vL16}, {WS}, s{sGa} offen offset:1024 sc1", manual=True)
        A("s_mov_b64 exec, -1")
    side = [(0, 0, lambda: lds_blk(('k', 0), 0, SB)), (1, 1, lambda: lds_blk(('k', 0), 1, SB + 8)),
        (2, 2, lambda: (A(f"ds_write_b128 v63, v[{R0}:{R0+3}] offset:{L_M}"), dump(0) if dbg == 1 else None)),
        (5, 5, lambda: A(f"buffer_load_dwordx4 v{vL16}, {WS}, s{sKXa} offen sc1 lds")),
        (BA, BA, lambda: (bar('w', True), rdA(2, R0))),
        (BA + 1, 10, lambda: xr(2)),
        (9, 9, lambda: A(f"buffer_load_dwordx4 v{vL16}, {WS}, s{sKXa} offen offset:1024 sc1 lds")),
        (10, 10, lambda: A(f"buffer_load_dwordx4 v[{VX}:{VX+3}], v{vL16}, {WS}, s{sVXa} offen sc1", manual=True)),
        (11, 11, lambda: rdA(4, R2)),
        (11, 11, lambda: A(f"buffer_load_dwordx4 v[{VX+4}:{VX+7}], v{vL16}, {WS}, s{sVXa} offen offset:1024 sc1", manual=True)),
        (G1G, G1G, g1),
        (16, 17, lambda: xr(3)),
        (19, 19, lambda: rdA(6, R0)),
        (20, 20, lambda: (A("s_waitcnt vmcnt(%d)" % (6 if flags else 5)), chk(R1, 'late1', 0))),
        (21, 21, lambda: chk(R1, 'late1', 1)),
        (22, 22, lambda: (chk(R1, 'late1', 2), A(f"ds_write_b128 v63, v[{R1}:{R1+3}] offset:{L_M + 1024}"), dump(1) if dbg == 1 else None)),
        (23, 23, lambda: xr(1)),
        (4, 6, lambda: A(f"v_lshrrev_b32 v{vDummy}, 5, v{vL16}")),
        (7, TG - 1, lambda: A(f"v_lshlrev_b32 v{vDummy}, 7, v{vDummy}")),
        (28, 28, lambda: (bar('w'), rdA(3, R2))),
        (29, 29, lambda: xr(2)),
        (30, 30, lambda: rdA(5, R0)),
        (31, 32, lambda: xr(3)),
        (33, 33, lambda: rdA(7, R1)),
        (TG, TG, lambda: A(f"buffer_load_dword v{vDummy}, v{vDummy}, {WS}, s{sTa} offen sc1", manual=True)),
        (40, 40, lambda: ps(aQ, aQ + 2, 0)), (41, 41, lambda: ps(aQ, aQ + 2, 1)), (42, 42, lambda: ps(aQ, aQ + 2, 2)),
        (43, 43, lambda: (ps(aQ + 4, aQ + 3, 0), wq(0, aQ + 2))), (44, 44, lambda: ps(aQ + 4, aQ + 3, 1)),
        (45, 45, lambda: ps(aQ + 4, aQ + 3, 2)),
    ] + stream(('q', 2), 6) + stream(('k', 2), 12) + stream(('v', 6), 18)
    NBB = 0
    side += [(34, 36, lambda: lds_half(('v', 7), 0, 0, SB)), (34, 37, lambda: lds_half(('v', 7), 0, 1, SB)),
             (34, 38, lambda: lds_half(('v', 7), 1, 0, SB + 8)), (34, 39, lambda: lds_half(('v', 7), 1, 1, SB + 8))]
    if flags:
        side.append((3, 3, kvchk))
        side.append((TG + 1, TG + 2, lambda: A(f"v_lshrrev_b32 v{vDummy}, 2, v{vL16}")))
        side.append((TG + 3, TG + 3, lambda: A(f"buffer_load_dword v{vDummy}, v{vDummy}, {WS}, s{sKF} offen sc1", manual=True)))
    sched(mf, side)
    def vs(slot, buf, tts=(0, 1)):
        for tt in tts:
            b = blk_regs(('v', slot), tt) if (('v', slot), tt) in _blk else rng('v', SB + 8 * tt, 8)
            smf(aV + 4 * tt, buf, b)
    vs(3, R2, (0,))
    wq(1, aQ + 3)
    psum(aK, aQ + 4)
    wq(2, aQ + 4)
    psum(aK + 4, aQ + 5)
    wq(3, aQ + 5)
    vs(3, R2, (1,))
    A(f"buffer_store_dwordx4 v[{aQ+2}:{aQ+5}], v{vL16}, s[{SRD_K}:{SRD_K+3}], s{sKMa} offen sc1")
    vs(7, R1); rdA(1, R1)
    vs(5, R0, (0,))
    A("s_waitcnt lgkmcnt(W) vmcnt(%d)" % (3 if flags else 2))
    A("s_barrier")
    stamp(0)
    S0, S1, SM = 10, 14, 18
    XB = [22, R2]
    VMr = 28
    def pubk(u):
        if 'k' in EXP: return
        x = XB[u & 1]
        A(f"""s_cmp_eq_u32 s{sW}, {u}
s_cselect_b64 exec, -1, 0
buffer_store_dwordx4 v[{x}:{x+3}], v{vL16}, {WS}, s{sKMa} offen offset:{u*1024} sc1
s_mov_b64 exec, -1""")
    def sc(u, ex=()):
        x, k = XB[u & 1], KB[u & 1]
        c = lambda r: '0' if u == 0 else f'v[{r}:{r+3}]'
        ops = [f"v_mfma_f32_16x16x32_bf16 v[{SM}:{SM+3}], v[{x}:{x+3}], v[{x}:{x+3}], {c(SM)}",
               f"v_mfma_f32_16x16x32_bf16 v[{S0}:{S0+3}], v[{k}:{k+3}], v[{x}:{x+3}], {c(S0)}",
               f"v_mfma_f32_16x16x32_bf16 v[{S1}:{S1+3}], v[{k+4}:{k+7}], v[{x}:{x+3}], {c(S1)}"]
        for n, o in enumerate(ops):
            A(o)
            if n < len(ex) and ex[n]: ex[n]()
    rdX(0, XB[0]); rdK(0); rdX(1, XB[1]); rdK(1)
    vs(5, R0, (1,))
    rdX(2, R0)
    vs(1, R1)
    rdX(3, R1)
    sc(0, (None, lambda: rdK(2, 0), lambda: rdK(2, 1)))
    XB[0] = R0
    A(f"v_mov_b64 v[22:23], s[{sOnes}:{sOnes+1}]")
    sc(1, (lambda: ps(aV, VMr, 0), lambda: (rdK(3, 0), ps(aV, VMr, 1)), lambda: rdK(3, 1)))
    XB[1] = R1
    A(f"v_mov_b64 v[24:25], s[{sOnes}:{sOnes+1}]")
    sc(2, (lambda: ps(aV + 4, VMr + 1, 0), lambda: ps(aV + 4, VMr + 1, 1), lambda: lds_blk(('o', (0, 0)), 0, 42)))
    sc(3, (lambda: ps(aV, VMr, 2), lambda: ps(aV + 4, VMr + 1, 2), lambda: lds_blk(('o', (0, 0)), 1, 50)))
    stamp(1)
    sv = [S0, S0+1, S0+2, S0+3, S1, S1+1, S1+2, S1+3, SM, SM+1]
    PX, VMr = 58, 28
    O0, O1, LSUM, ONE = 34, 38, 30, 22
    A(f"""v_mul_f32 v{SM}, s{sC}, v{SM}
v_mul_f32 v{SM+1}, s{sC}, v{SM+1}
buffer_store_dwordx2 v[{VMr}:{VMr+1}], v{vL8}, {WS}, s{sVMa} offen sc1
s_cmp_eq_u32 s{sStep}, {NSTEPS - 1}
v_exp_f32 v62, v{SM}
v_exp_f32 v63, v{SM+1}
s_cbranch_scc1 {endlab} ;exit
v_exp_f32 v26, v{sv[0]}
v_exp_f32 v27, v{sv[1]}
v_cvt_pk_bf16_f32 v20, v62, v63
v_mov_b32 v21, 0
v_exp_f32 v32, v{sv[2]}
v_exp_f32 v33, v{sv[3]}
v_mfma_f32_16x16x16_bf16 v[{O0}:{O0+3}], v[{VMr}:{VMr+1}], v[20:21], 0
v_cvt_pk_bf16_f32 v63, v62, v63
v_mov_b32 v62, 0
v_cvt_pk_bf16_f32 v{PX}, v26, v27
v_exp_f32 v26, v{sv[4]}
v_mfma_f32_16x16x16_bf16 v[{O1}:{O1+3}], v[{VMr}:{VMr+1}], v[62:63], 0
v_exp_f32 v27, v{sv[5]}
v_cvt_pk_bf16_f32 v{PX+1}, v32, v33
v_exp_f32 v62, v{sv[6]}
v_mfma_f32_16x16x16_bf16 v[{LSUM}:{LSUM+3}], v[{ONE}:{ONE+1}], v[20:21], 0
v_exp_f32 v63, v{sv[7]}
v_cvt_pk_bf16_f32 v{PX+2}, v26, v27
v_cvt_pk_bf16_f32 v{PX+3}, v62, v63
v_mfma_f32_16x16x32_bf16 v[{LSUM}:{LSUM+3}], v[{ONE}:{ONE+3}], v[{PX}:{PX+3}], v[{LSUM}:{LSUM+3}]
v_mfma_f32_16x16x32_bf16 v[{O0}:{O0+3}], v[{VX}:{VX+3}], v[{PX}:{PX+3}], v[{O0}:{O0+3}]
v_mfma_f32_16x16x32_bf16 v[{O1}:{O1+3}], v[{VX+4}:{VX+7}], v[{PX}:{PX+3}], v[{O1}:{O1+3}]
v_rcp_f32 v31, v30""")
    def norm():
        A(f"s_mov_b64 exec, s[{sEx}:{sEx+1}]")
        for t, o in enumerate((O0, O1)):
            A(f"v_pk_mul_f32 v[{o}:{o+1}], v[{o}:{o+1}], v[30:31] op_sel:[0,1] op_sel_hi:[1,1]")
            A(f"v_pk_mul_f32 v[{o+2}:{o+3}], v[{o+2}:{o+3}], v[30:31] op_sel:[0,1] op_sel_hi:[1,1]")
            A(f"v_cvt_pk_bf16_f32 v{PX + 2*t}, v{o}, v{o+1}")
            A(f"v_cvt_pk_bf16_f32 v{PX + 2*t + 1}, v{o+2}, v{o+3}")
            A(f"ds_write_b64 v{vOw}, v[{PX+2*t}:{PX+2*t+1}] offset:{8*t}")
    norm()
    A(f"""v_max_f32 v32, v30, v31
v_cmp_nlt_f32 vcc, v32, s{sBig}
s_mov_b64 exec, -1
s_cbranch_vccnz {L('slow')} ;exit""")
    A.label(L('slowret') + ' ;soft')
    lds_blk(('o', 8), 0, 34)
    zero(18, 8); zero(VX, 8)
    A("s_waitcnt lgkmcnt(W)")
    A("s_barrier")
    stamp(2)
    OA = [10, 14]
    A(f"ds_read_b128 v[{OA[0]}:{OA[0]+3}], v{vL16} offset:{L_O}")
    A(f"ds_read_b128 v[{OA[1]}:{OA[1]+3}], v{vL16} offset:{L_O + 1024}")
    zero(26, 8)
    ACT = {(2, 0): 18, (2, 1): 22, (3, 0): VX, (3, 1): VX + 4, (0, 0): 30, (0, 1): 18, (1, 0): 22, (1, 1): 34}
    RES = 58
    mf = []
    for r in (2, 3, 0, 1):
        if r == 0:
            mf.append(lambda: smf(26, OA[0], 'v[34:41]'))
            mf.append(lambda: smf(26, OA[1], blk_regs(('o', 8), 1)))
        for jj in ((0, 1) if r != 1 else (1, 0)):
            for tt in range(2):
                ch = ('o', (r, jj))
                b = blk_regs(ch, tt) if (ch, tt) in _blk else rng('v', SB + 8 * tt, 8)
                mf.append(lambda r=r, jj=jj, tt=tt, b=b: smf(ACT[(r, tt)], OA[jj], b))
    def P(a, dst, g0):
        return [(g0, g0, lambda: ps(a, dst, 0)), (g0, g0 + 1, lambda: ps(a, dst, 1)), (g0 + 1, g0 + 1, lambda: ps(a, dst, 2))]
    side = P(18, RES, 4) + [(6, 6, lambda: tagit(RES))] + P(22, RES + 1, 6) + P(VX, RES + 2, 8) + P(VX + 4, RES + 3, 9)
    side += [(8, 9, lambda: zero(18, 2)), (8, 9, lambda: zero(20, 2))]
    side += [(10, 10, lambda: A(f"buffer_store_dwordx4 v[{RES}:{RES+3}], v{vPst}, {WS}, s{sP1} offen{SC}"))]
    side += [(10, 11, lambda: lds_half(('o', (1, 0)), 0, 0, SB)), (10, 12, lambda: lds_half(('o', (1, 0)), 0, 1, SB)),
             (11, 12, lambda: lds_half(('o', (1, 0)), 1, 0, SB + 8)), (11, 13, lambda: lds_half(('o', (1, 0)), 1, 1, SB + 8))]
    side += P(26, 62, 11) + [(12, 12, lambda: tagit(62)), (12, 12, lambda: A(f"buffer_store_dword v62, v{vPc}, {WS}, s{sP2} offen{SC}"))]
    side += [(8, 11, lambda: zero(22, 2)), (8, 12, lambda: zero(24, 2)), (13, 13, lambda: zero(34, 2)), (13, 13, lambda: zero(36, 2))]
    side += P(30, RES, 15) + [(16, 16, lambda: tagit(RES))] + P(18, RES + 1, 16)
    side += [(15, 17, lambda: A(f"ds_read_b128 v[{VX}:{VX+3}], v{vL16} offset:{L_SEL}", manual=True))]
    sched(mf, side)
    psum(22, RES + 2)
    psum(34, RES + 3)
    A(f"buffer_store_dwordx4 v[{RES}:{RES+3}], v{vPst}, {WS}, s{sP0} offen{SC}")
    D = VX + 4
    def rpoll(srd_):
        for i in range(4):
            A(f"buffer_load_dwordx4 v[{10+4*i}:{13+4*i}], v{vL16}, s[{srd_}:{srd_+3}], s{sRa} offen offset:{i*1024} sc1", manual=True)
    stamp(3)
    A(f"s_add_u32 s{sStep}, s{sStep}, 1")
    ts(A, 8, SRD_WS, 62, sStep)
    pre_a()
    A(f"""s_mov_b32 s{sCnt}, 0
s_cmp_lg_u32 s{sRole}, 0
s_waitcnt lgkmcnt(0)
s_cbranch_scc1 {L('notearly')} ;exit""")
    A.label(L('r_poll'))
    rpoll(SRD_WS)
    A(f"""s_add_u32 s{sCnt}, s{sCnt}, 1
s_cmp_lt_u32 s{sCnt}, {3 * POLL_MAX}
s_cselect_b32 s{sT1}, 1, 0""")
    for i in range(4):
        A(f"s_waitcnt vmcnt({3 - i})")
        A(f"v_mfma_f32_16x16x32_bf16 v[{D}:{D+3}], v[{VX}:{VX+3}], v[{10+4*i}:{13+4*i}], {'0' if i == 0 else rng('v', D, 4)}")
        if i == 1:
            A(f"v_bitop3_b32 v62, v10, v14, s{sTagM} bitop3:0x7e")
    gpoll(0, SRD_R)
    A(f"""v_bitop3_b32 v63, v18, v22, s{sTagM} bitop3:0x7e
v_bitop3_b32 v62, v62, v63, s{sT1} bitop3:0xa8
v_cmp_ne_u32 vcc, 0, v62""")
    for r in range(D, D + 4):
        A(f"v_add_f32_dpp v{r}, v{r}, v{r} row_ror:8 row_mask:0xf bank_mask:0xf")
    A(f"""v_cvt_pk_bf16_f32 v{D}, v{D}, v{D+1}
v_cvt_pk_bf16_f32 v{D+1}, v{D+2}, v{D+3}""")
    if dbg == 2: A(f"s_add_u32 s90, s90, 1")
    A(f"s_cbranch_vccnz {L('r_poll')} ;nofence")
    A(f"buffer_store_dwordx2 v[{D}:{D+1}], v{vMst}, {WS}, s{sMw} offen{SC}")
    stamp(4)
    A(f"""v_mov_b64 v[62:63], s[{sPz}:{sPz+1}]
buffer_store_dwordx2 v[62:63], v{vMst}, {WS}, s{sMp} offen{SC}
s_branch {L('gather')} ;exit""")
    A.label(L('notearly'))
    A(f"""s_cmp_eq_u32 s{sRole}, 2
s_waitcnt vmcnt(0)
s_cbranch_scc1 {L('gather')}
s_branch {L('r_poll')}""")
    A.label(L('g_out'))
    A(f"""s_waitcnt vmcnt(0)
s_branch {L('top')}""")
    for lab, buf, so, off in (('late1', R1, sGa, 1024),):
        A.label(L(lab))
        A(f"s_mov_b32 s{sCnt}, 0")
        A.label(L(lab + 'l'))
        if dbg == 2: A(f"s_add_u32 s89, s89, 1")
        A(f"""buffer_load_dwordx4 v[{buf}:{buf+3}], v{vL16}, {WS}, s{so} offen offset:{off} sc1
s_add_u32 s{sCnt}, s{sCnt}, 1
v_cmp_eq_u32 s[{sT2+1}:{sT2+2}], s{sPz}, v{buf}
v_cmp_eq_u32 vcc, s{sPz}, v{buf+2}
s_or_b64 vcc, vcc, s[{sT2+1}:{sT2+2}]
s_cmp_gt_u32 s{sCnt}, {POLL_MAX}
s_cbranch_scc1 {L(lab + 'r')} ;exit
s_cbranch_vccnz {L(lab + 'l')} ;nofence
s_branch {L(lab + 'r')} ;exit""")
    if flags:
        A.label(L('kvw'))
        A("s_nop 3")
        kv_wait(A, L('kvl'), VX)
        A(f"s_branch {L('kvr')}")
    A.label(L('slow'))
    A("s_nop 15")
    A(f"""v_max3_f32 v30, v{sv[0]}, v{sv[1]}, v{sv[2]}
v_max3_f32 v31, v{sv[3]}, v{sv[4]}, v{sv[5]}
v_max3_f32 v30, v30, v{sv[6]}, v{sv[7]}
v_max3_f32 v31, v31, v{sv[8]}, v{sv[9]}
v_max_f32 v30, v30, v31
v_mov_b32 v31, v30
v_permlane32_swap_b32 v30, v31
v_max_f32 v30, v30, v31
v_mov_b32 v31, v30
v_permlane16_swap_b32 v30, v31
v_max_f32 v30, v30, v31""")
    for r in sv:
        A(f"v_sub_f32 v{r}, v{r}, v30")
    for r in sv:
        A(f"v_exp_f32 v{r}, v{r}")
    for n in range(4):
        A(f"v_cvt_pk_bf16_f32 v{PX+n}, v{sv[2*n]}, v{sv[2*n+1]}")
    A(f"""v_cvt_pk_bf16_f32 v20, v{SM}, v{SM+1}
v_mov_b32 v21, 0
v_mov_b32 v18, 0
v_mov_b32 v19, v20
v_mfma_f32_16x16x32_bf16 v[{O1}:{O1+3}], v[{VX+4}:{VX+7}], v[{PX}:{PX+3}], 0
v_mfma_f32_16x16x32_bf16 v[{O0}:{O0+3}], v[{VX}:{VX+3}], v[{PX}:{PX+3}], 0
v_mfma_f32_16x16x32_bf16 v[{LSUM}:{LSUM+3}], v[{ONE}:{ONE+3}], v[{PX}:{PX+3}], 0
v_mfma_f32_16x16x16_bf16 v[{O1}:{O1+3}], v[{VMr}:{VMr+1}], v[18:19], v[{O1}:{O1+3}]
v_mfma_f32_16x16x16_bf16 v[{O0}:{O0+3}], v[{VMr}:{VMr+1}], v[20:21], v[{O0}:{O0+3}]
v_mfma_f32_16x16x16_bf16 v[{LSUM}:{LSUM+3}], v[{ONE}:{ONE+1}], v[20:21], v[{LSUM}:{LSUM+3}]
v_rcp_f32 v31, v30""")
    norm()
    A(f"""s_mov_b64 exec, -1
s_waitcnt lgkmcnt(0)
s_branch {L('slowret')}""")
```

```python
from asmlib import Asm
from layout import *
from gemm import *
from chain import C_SCALE, fbits, srd
from prof import ts
POLL_MAX = 200000
NB = 3

def gen_b(A, do1=True, do2=True, flags=True, tag='B'):
    L = lambda x: f'{tag}_{x}'
    sH, sW, sJ = 3, 4, 5
    SQ, SK, SV, SX, SWS = 8, 12, 16, 20, 24
    sDBG = 28
    sT0, sT1, sT2, sLds, sCol, sSeg, sN, sBuf, sXw, sLw, sC, sOut, sCnt, sNext, sBufN, sPrev = range(32, 48)
    sKF, sOF = 48, 49
    WS = f"s[{SWS}:{SWS+3}]"
    vL16, vTr, vTr1, vWo, vXo, vX, vOne = 1, 2, 3, 4, 5, 6, 7
    XB = [8, 12, 16, 20]
    ACC = 24
    A(f"""s_load_dwordx2 s[60:61], s[0:1], 24
s_load_dwordx4 s[64:67], s[0:1], 40
s_load_dwordx2 s[68:69], s[0:1], 56
s_load_dwordx4 s[72:75], s[0:1], 88
v_lshrrev_b32 v10, 6, v0
v_and_b32 v0, 63, v0
v_readfirstlane_b32 s{sW}, v10
s_waitcnt lgkmcnt(0)""")
    srd(A, SX, 60, 2048 * 1152)
    srd(A, SQ, 64, 576 * 8192); srd(A, SK, 66, 576 * 8192); srd(A, SV, 68, 576 * 8192)
    srd(A, SWS, 74, WS_BYTES)
    A(f"""s_mov_b32 s{sDBG}, s72
s_mov_b32 s{sDBG+1}, s73
s_mov_b32 s{sC}, {fbits(C_SCALE):#x}
v_mov_b32 v{vOne}, 1""")
    emit_lane_consts(A, vL16, vTr, 10, 11)
    d1 = emit_wdma_off(A, vWo, 8192, 10, 11)
    emit_xdma_off(A, vXo, 1152, 10)
    DEPTH = 12
    A(f"""s_mul_i32 s{sLds}, s{sW}, {DEPTH * 2048}
s_add_u32 s{sLds}, s{sLds}, 36864
v_add_u32 v{vTr}, s{sLds}, v{vTr}
v_xor_b32 v{vTr1}, 32, v{vTr}
s_lshl_b32 s{sCol}, s{sH}, 8
s_lshl_b32 s{sT0}, s{sW}, 6
s_add_u32 s{sCol}, s{sCol}, s{sT0}
s_lshr_b32 s{sT0}, s{sW}, 1
s_mul_i32 s{sXw}, s{sT0}, {16 * 1152}
s_and_b32 s{sT0}, s{sW}, 1
s_mul_i32 s{sT0}, s{sT0}, 576
s_add_u32 s{sXw}, s{sXw}, s{sT0}
s_mul_i32 s{sLw}, s{sW}, 9216
s_lshl_b32 s{sKF}, s{sH}, 12
s_add_u32 s{sKF}, s{sKF}, s{sW}
s_add_u32 s{sKF}, s{sKF}, {FLG_OFF}
s_lshl_b32 s{sOF}, s{sH}, 3
s_lshr_b32 s{sT0}, s{sW}, 1
s_lshl_b32 s{sT0}, s{sT0}, 2
s_add_u32 s{sOF}, s{sOF}, s{sT0}
s_and_b32 s{sT0}, s{sW}, 1
s_lshl_b32 s{sT0}, s{sT0}, 8
s_add_u32 s{sOF}, s{sOF}, s{sT0}
s_add_u32 s{sOF}, s{sOF}, {FLG_OFF + 1024}""")
    def xdma(sseg, sbuf):
        A(f"""s_min_u32 s{sT1}, s{sseg}, 63
s_mul_i32 s{sT1}, s{sT1}, {32 * 1152}
s_add_u32 s{sT1}, s{sT1}, s{sXw}
s_add_u32 s{sT2}, s{sbuf}, s{sLw}""")
        emit_xdma(A, SX, vXo, sT1, None, sT2, sT0, None, 1152)
    def witems(mats):
        it = []
        for m, s_ in mats:
            for u in range(18):
                it.append((s_, vWo, sCol, u * 32 * 8192, d1 * 8192, (2 * m) * 18 + u, (2 * m + 1) * 18 + u))
        return it
    def flag(soff, kind='dword'):
        A(f"""s_mov_b64 exec, 1
buffer_store_{kind} v{vOne}, v{vL16}, {WS}, s{soff} offen sc1
s_mov_b64 exec, -1""")
    def kv_flag(sseg):
        A(f"""s_lshl_b32 s{sT1}, s{sseg}, 2
s_add_u32 s{sT1}, s{sT1}, s{sKF}""")
        flag(sT1, 'byte')
    def ring_start():
        A(f"""s_mov_b32 s{sSeg}, s{sJ}
s_mov_b32 s{sBuf}, 0
s_add_u32 s{sNext}, s{sJ}, {NB}
s_mov_b32 s{sBufN}, 36864""")
    def ring_adv():
        A(f"""s_mov_b32 s{sPrev}, s{sSeg}
s_add_u32 s{sSeg}, s{sSeg}, {NB}
s_add_u32 s{sBuf}, s{sBuf}, 36864
s_cmp_eq_u32 s{sBuf}, {3 * 36864}
s_cselect_b32 s{sBuf}, 0, s{sBuf}""")
    def next_dma():
        A(f"""s_add_u32 s{sNext}, s{sNext}, {NB}
s_add_u32 s{sBufN}, s{sBufN}, 36864
s_cmp_eq_u32 s{sBufN}, {3 * 36864}
s_cselect_b32 s{sBufN}, 0, s{sBufN}""")
        xdma(sNext, sBufN)

    ts(A, 0, SWS, 10)
    if do1:
        ring_start()
        xdma(sSeg, sBuf)
        A(f"""v_lshrrev_b32 v12, 1, v0
v_lshlrev_b32 v12, 13, v12
v_and_b32 v13, 1, v0
v_lshl_add_u32 v12, v13, 7, v12
s_lshl_b32 s{sT0}, s{sJ}, 2
s_add_u32 s{sT0}, s{sT0}, s{sW}
s_mul_i32 s{sT0}, s{sT0}, {48 * 8192}
s_lshl_b32 s{sT1}, s{sH}, 8
s_add_u32 s{sT0}, s{sT0}, s{sT1}
s_add_u32 s{sT1}, s{sT0}, {16 * 8192}""")
        for n, (s_, so) in enumerate(((SK, sT0), (SK, sT1), (SV, sT0), (SV, sT1))):
            A(f"buffer_load_dword v{74+n}, v12, s[{s_}:{s_+3}], s{so} offen", manual=True)
        A(f"""v_mov_b32 v72, {POISON:#x}
v_mov_b32 v73, {POISON:#x}
v_lshrrev_b32 v78, 1, v{vL16}""")
        emit_wload(A, witems([(0, SK), (1, SV)]), vTr, vTr1, sLds, sT0, DEPTH)
        ts(A, 1, SWS, 10, dbg=(5, 'max'))
        if flags:
            emit_init_wait(A, L('iw'), sDBG, sW, sT0, sCnt, 10, POLL_MAX)
        A("s_barrier")
        xdma(sNext, sBufN)
        A(f"s_mov_b32 s{sPrev}, 192")
        A("s_waitcnt vmcnt(9)")
        A.label(L('kv'))
        A("s_barrier")
        next_dma()
        A(f"v_add_u32 v{vX}, s{sBuf}, v{vL16}")
        def sig_prev():
            A("s_waitcnt vmcnt(9)")
            if flags:
                kv_flag(sPrev)
        tiles = [(0, 'F'), (18, 'F'), (36, 'T'), (54, 'T')]
        emit_group_mma(A, tiles, vX, XB, ACC, side={4: sig_prev})
        A(f"""s_lshl_b32 s{sT0}, s{sH}, 6
s_add_u32 s{sT0}, s{sT0}, s{sSeg}
s_lshl_b32 s{sT0}, s{sT0}, 14
s_lshl_b32 s{sT1}, s{sW}, 10
s_add_u32 s{sOut}, s{sT0}, s{sT1}
s_add_u32 s{sT2}, s{sOut}, 4096
s_add_u32 s{sT1}, s{sOut}, s{sT1}
s_add_u32 s{sT1}, s{sT1}, 8192""")
        for tt in range(2):
            d = 56 + 4 * tt
            for t in range(2):
                a = ACC + (2 * t + tt) * 4
                for r in range(4):
                    A(f"v_mul_f32 v{a+r}, s{sC}, v{a+r}")
                A(f"v_cvt_pk_bf16_f32 v{d+2*t}, v{a}, v{a+1}")
                A(f"v_cvt_pk_bf16_f32 v{d+2*t+1}, v{a+2}, v{a+3}")
            A(f"buffer_store_dwordx4 v[{d}:{d+3}], v{vL16}, {WS}, s{sOut if tt == 0 else sT2} offen sc1")
        for t in range(2):
            d = 64 + 4 * t
            for tt in range(2):
                a = ACC + (2 * (2 + t) + tt) * 4
                A(f"v_cvt_pk_bf16_f32 v{d+2*tt}, v{a}, v{a+1}")
                A(f"v_cvt_pk_bf16_f32 v{d+2*tt+1}, v{a+2}, v{a+3}")
            A(f"buffer_store_dwordx4 v[{d}:{d+3}], v{vL16}, {WS}, s{sT1} offen offset:{t*1024} sc1")
        if flags:
            A(f"""s_lshr_b32 s{sT0}, s{sOut}, 1
s_add_u32 s{sT0}, s{sT0}, {MEM_OFF}
s_add_u32 s{sT1}, s{sT0}, 4096
buffer_store_dwordx2 v[72:73], v78, {WS}, s{sT0} offen sc1
buffer_store_dwordx2 v[72:73], v78, {WS}, s{sT1} offen sc1""")
        ring_adv()
        A(f"s_cmp_lt_u32 s{sSeg}, 64")
        A(f"s_cbranch_scc1 {L('kv')}")
        A("s_waitcnt vmcnt(0)")
        if flags:
            kv_flag(sPrev)
        A("s_barrier")

    ts(A, 2, SWS, 10, dbg=(6, 'max'))
    if do2:
        LQ = 3 * 36864
        ring_start()
        xdma(sSeg, sBuf)
        emit_wload(A, witems([(2, SQ)]), vTr, vTr1, sLds, sT0, DEPTH)
        ts(A, 3, SWS, 10)
        A("s_barrier")
        xdma(sNext, sBufN)
        sTT, sEH, sKx, sVx, sKm, sVm = 50, 51, 52, 53, 54, 55
        A(f"""s_and_b32 s{sTT}, s{sW}, 1
s_lshr_b32 s{sEH}, s{sW}, 1
v_and_b32 v10, 15, v0
v_lshrrev_b32 v11, 4, v0
v_lshlrev_b32 v11, 2, v11
s_lshl_b32 s{sT0}, s{sTT}, 4
v_add_u32 v10, s{sT0}, v10
v_mov_b32 v12, 0xf149f2ca""")
        for kt in range(2):
            for r in range(4):
                A(f"""v_add_u32 v13, {16 * kt + r}, v11
v_cmp_le_u32 vcc, v13, v10
v_cndmask_b32 v{80 + 4*kt + r}, v12, 0, vcc""")
        A(f"""v_mov_b32 v88, 0x3f803f80
v_mov_b32 v89, 0x3f803f80
v_mov_b32 v90, 0x3f803f80
v_mov_b32 v91, 0x3f803f80
v_lshrrev_b32 v92, 1, v{vL16}
s_lshl_b32 s{sT0}, s{sW}, 10
s_add_u32 s{sT0}, s{sT0}, {LQ}
v_add_u32 v93, s{sT0}, v{vL16}
s_lshl_b32 s{sT0}, s{sTT}, 12
s_add_u32 s{sT0}, s{sT0}, {LQ}
v_add_u32 v94, s{sT0}, v{vL16}
s_lshl_b32 s{sT0}, s{sW}, 12
s_add_u32 s{sT0}, s{sT0}, {LQ + 8192}
v_add_u32 v96, s{sT0}, v92
v_and_b32 v10, 15, v0
v_lshlrev_b32 v10, 5, v10
v_lshrrev_b32 v11, 4, v0
v_lshl_add_u32 v10, v11, 3, v10
v_add_u32 v95, s{sT0}, v10
s_waitcnt vmcnt(9)""")
        A.label(L('at'))
        A("s_barrier")
        A(f"""s_lshl_b32 s{sT0}, s{sH}, 6
s_add_u32 s{sT0}, s{sT0}, s{sSeg}
s_lshl_b32 s{sKx}, s{sT0}, 14
s_add_u32 s{sT1}, s{sKx}, 4096
s_lshl_b32 s{sT2}, s{sEH}, 12
s_add_u32 s{sVx}, s{sKx}, s{sT2}
s_add_u32 s{sVx}, s{sVx}, 8192
s_lshl_b32 s{sKm}, s{sT0}, 13
s_add_u32 s{sKm}, s{sKm}, {MEM_OFF}
s_lshl_b32 s{sT2}, s{sEH}, 10
s_add_u32 s{sVm}, s{sKm}, s{sT2}
s_add_u32 s{sVm}, s{sVm}, 4096""")
        for kt in range(2):
            for u in range(4):
                b = 16 * kt + 4 * u
                A(f"buffer_load_dwordx4 a[{b}:{b+3}], v{vL16}, {WS}, s{sKx if kt == 0 else sT1} offen offset:{u*1024} sc1")
        for e in range(4):
            A(f"buffer_load_dwordx4 a[{32+4*e}:{35+4*e}], v{vL16}, {WS}, s{sVx} offen offset:{e*1024} sc1")
        next_dma()
        A(f"v_add_u32 v{vX}, s{sBuf}, v{vL16}")
        emit_group_mma(A, [(72, 'F'), (90, 'F')], vX, XB, ACC)
        for tt in range(2):
            d = 56 + 4 * tt
            for t in range(2):
                a = ACC + (2 * t + tt) * 4
                A(f"v_cvt_pk_bf16_f32 v{d+2*t}, v{a}, v{a+1}")
                A(f"v_cvt_pk_bf16_f32 v{d+2*t+1}, v{a+2}, v{a+3}")
            A(f"ds_write_b128 v93, v[{d}:{d+3}] offset:{tt * 4096}")
        A("s_waitcnt lgkmcnt(0)")
        A("s_barrier")
        Q = 8
        for u in range(4):
            A(f"ds_read_b128 v[{Q+4*u}:{Q+4*u+3}], v94 offset:{u*1024}")
        S0, S1, SM = 24, 28, 32
        for u in range(4):
            for kt, s_ in ((0, S0), (1, S1)):
                c = rng('v', 80 + 4 * kt, 4) if u == 0 else rng('v', s_, 4)
                A(f"v_mfma_f32_16x16x32_bf16 v[{s_}:{s_+3}], a[{16*kt+4*u}:{16*kt+4*u+3}], v[{Q+4*u}:{Q+4*u+3}], {c}")
        A(f"s_mov_b32 s{sCnt}, 0")
        A("s_waitcnt vmcnt(9)")
        A.label(L('mp'))
        for u in range(2):
            A(f"buffer_load_dwordx4 v[{64+4*u}:{67+4*u}], v{vL16}, {WS}, s{sKm} offen offset:{u*1024} sc1")
        if flags:
            A(f"""s_add_u32 s{sCnt}, s{sCnt}, 1
v_max3_u32 v60, v64, v67, v68
v_max_u32 v60, v60, v71
v_cmp_eq_u32 vcc, {POISON:#x}, v60
s_cmp_gt_u32 s{sCnt}, {POLL_MAX}
s_cbranch_scc1 {L('mg')} ;nofence
s_cbranch_vccz {L('mg')} ;nofence
s_sleep 3
s_branch {L('mp')} ;nofence""")
            A.label(L('mg') + ' ;soft')
        A(f"buffer_load_dwordx2 v[56:57], v92, {WS}, s{sVm} offen sc1")
        A(f"buffer_load_dwordx2 v[58:59], v92, {WS}, s{sVm} offen offset:512 sc1")
        for n in range(8):
            A(f"ds_write_b32 v95, v{64+n} offset:{n*512}")
        for u in range(4):
            A(f"ds_read_b64_tr_b16 v[{40+4*u}:{41+4*u}], v96 offset:{u*1024}")
            A(f"ds_read_b64_tr_b16 v[{42+4*u}:{43+4*u}], v96 offset:{u*1024+512}")
        for u in range(4):
            c = '0' if u == 0 else rng('v', SM, 4)
            A(f"v_mfma_f32_16x16x32_bf16 v[{SM}:{SM+3}], v[{40+4*u}:{43+4*u}], v[{Q+4*u}:{Q+4*u+3}], {c}")
        sv = list(range(S0, S0 + 10))
        A(f"""v_max3_f32 v60, v{sv[0]}, v{sv[1]}, v{sv[2]}
v_max3_f32 v61, v{sv[3]}, v{sv[4]}, v{sv[5]}
v_max3_f32 v60, v60, v{sv[6]}, v{sv[7]}
v_mul_f32 v{SM}, s{sC}, v{SM}
v_mul_f32 v{SM+1}, s{sC}, v{SM+1}
v_max3_f32 v61, v61, v{sv[8]}, v{sv[9]}
v_max_f32 v60, v60, v61
v_mov_b32 v61, v60
v_permlane32_swap_b32 v60, v61
v_max_f32 v60, v60, v61
v_mov_b32 v61, v60
v_permlane16_swap_b32 v60, v61
v_max_f32 v60, v60, v61""")
        for r in sv:
            A(f"v_sub_f32 v{r}, v{r}, v60")
        for r in sv:
            A(f"v_exp_f32 v{r}, v{r}")
        PX, PM = 64, 68
        for n in range(4):
            A(f"v_cvt_pk_bf16_f32 v{PX+n}, v{sv[2*n]}, v{sv[2*n+1]}")
        A(f"""v_cvt_pk_bf16_f32 v{PM}, v{SM}, v{SM+1}
v_mov_b32 v{PM+1}, 0
v_mov_b32 v{PM+2}, 0
v_cvt_pk_bf16_f32 v{PM+3}, v{SM}, v{SM+1}""")
        O, LS = 40, 36
        A(f"v_mfma_f32_16x16x32_bf16 v[{LS}:{LS+3}], v[88:91], v[{PX}:{PX+3}], 0")
        for e in range(4):
            A(f"v_mfma_f32_16x16x32_bf16 v[{O+4*e}:{O+4*e+3}], a[{32+4*e}:{35+4*e}], v[{PX}:{PX+3}], 0")
        A(f"v_mfma_f32_16x16x16_bf16 v[{LS}:{LS+3}], v[88:89], v[{PM}:{PM+1}], v[{LS}:{LS+3}]")
        if flags:
            A(f"""v_max_u32 v60, v56, v58
v_cmp_eq_u32 vcc, {POISON:#x}, v60
s_cbranch_vccz {L('vg')}
s_mov_b32 s{sCnt}, 0""")
            A.label(L('vp'))
            A(f"""buffer_load_dwordx2 v[56:57], v92, {WS}, s{sVm} offen sc1
buffer_load_dwordx2 v[58:59], v92, {WS}, s{sVm} offen offset:512 sc1
s_add_u32 s{sCnt}, s{sCnt}, 1
v_max_u32 v60, v56, v58
v_cmp_eq_u32 vcc, {POISON:#x}, v60
s_cmp_gt_u32 s{sCnt}, {POLL_MAX}
s_cbranch_scc1 {L('vg')}
s_cbranch_vccnz {L('vp')}""")
            A.label(L('vg'))
        for e in range(4):
            vm = 56 + 2 * (e >> 1); p = PM + 2 * (e & 1)
            A(f"v_mfma_f32_16x16x16_bf16 v[{O+4*e}:{O+4*e+3}], v[{vm}:{vm+1}], v[{p}:{p+1}], v[{O+4*e}:{O+4*e+3}]")
        A(f"""v_rcp_f32 v60, v{LS}
s_lshl_b32 s{sT0}, s{sSeg}, 1
s_add_u32 s{sT0}, s{sT0}, s{sTT}
s_lshl_b32 s{sT0}, s{sT0}, 17
s_lshl_b32 s{sT1}, s{sH}, 12
s_add_u32 s{sT0}, s{sT0}, s{sT1}
s_lshl_b32 s{sT1}, s{sEH}, 11
s_add_u32 s{sT0}, s{sT0}, s{sT1}
s_add_u32 s{sT0}, s{sT0}, {OB_OFF}""")
        for x in range(2):
            d = 24 + 4 * x
            for n in range(4):
                o = O + 8 * x + 2 * n
                A(f"v_mul_f32 v{o}, v{o}, v60")
                A(f"v_mul_f32 v{o+1}, v{o+1}, v60")
                A(f"v_cvt_pk_bf16_f32 v{d+n}, v{o}, v{o+1}")
            A(f"buffer_store_dwordx4 v[{d}:{d+3}], v{vL16}, {WS}, s{sT0} offen offset:{x*1024} sc1")
        A("s_waitcnt vmcnt(0)")
        if flags:
            A(f"""s_lshr_b32 s{sT1}, s{sSeg}, 1
s_lshl_b32 s{sT1}, s{sT1}, 12
s_and_b32 s{sT2}, s{sSeg}, 1
s_lshl_b32 s{sT2}, s{sT2}, 9
s_add_u32 s{sT1}, s{sT1}, s{sT2}
s_add_u32 s{sT1}, s{sT1}, s{sOF}""")
            flag(sT1)
        ts(A, 8, SWS, 72, sSeg)
        ring_adv()
        A(f"s_cmp_lt_u32 s{sSeg}, 64")
        A(f"s_cbranch_scc1 {L('at')}")
    ts(A, 7, SWS, 72, dbg=(7, 'max'))
    A("s_endpgm")
```
